```python
import torch

def _softmax(x, axis=-1):
    return torch.softmax(x, dim=axis)
def _gelu(x):
    return torch.nn.functional.gelu(x, approximate="tanh")
def _silu(x):
    return torch.nn.functional.silu(x)
def _sigmoid(x):
    return torch.sigmoid(x)
def _layernorm(x, axis=-1, eps=1e-5):
    m = x.mean(dim=axis, keepdim=True)
    v = x.var(dim=axis, keepdim=True, unbiased=False)
    return (x - m) / torch.sqrt(v + eps)
def _scatter_add(tgt, idx, src, axis=0):
    return tgt.clone().index_add_(axis, idx, src)
def _segment_sum(src, seg, n):
    out = torch.zeros((n,) + src.shape[1:], dtype=src.dtype)
    return out.index_add_(0, seg, src)
def _pad(x, pw):
    flat = tuple(v for pair in reversed(pw) for v in pair)
    return torch.nn.functional.pad(x, flat)

kernel_name = 'gated_mix__linear_kernel_hedgehog__ssm_conv_s4__prompt'

def setup_inputs():

    _w = (lambda a: (lambda t: t.to(torch.bfloat16) if t.is_floating_point() else t)(torch.as_tensor(a)))
    def _A_setup():
        B, S, D, H = 1, 2048, 448, 16
        Dh = D // H
        return {
            "x": _w((lambda *s: torch.randn(*s, dtype=torch.bfloat16) * 0.05)(B, S, D)),
            "wqkv": _w((lambda *s: torch.randn(*s, dtype=torch.bfloat16) * 0.8)(D, 3 * D)),
            "w_phi": _w((lambda *s: torch.randn(*s, dtype=torch.bfloat16) * 0.8)(H, Dh, Dh) * (Dh ** -0.5)),
            "wo": _w((lambda *s: torch.randn(*s, dtype=torch.bfloat16) * 0.05)(D, D)),
        }
    _A_in = _A_setup()

    def _B_setup():
        B, L, D, N = 1, 2048, 448, 256
        A_re = -(lambda _x: torch.exp(torch.as_tensor(_x)))((lambda *s: torch.randn(*s, dtype=torch.bfloat16) * 6.4)(D, N))
        A_im = torch.pi * (lambda *s: torch.randn(*s, dtype=torch.bfloat16) * 0.05)(D, N)
        B_re = (lambda *s: torch.randn(*s, dtype=torch.bfloat16) * 0.1)(D, N)
        B_im = (lambda *s: torch.randn(*s, dtype=torch.bfloat16) * 0.1)(D, N)
        C_re = (lambda *s: torch.randn(*s, dtype=torch.bfloat16) * 0.1)(D, N)
        C_im = (lambda *s: torch.randn(*s, dtype=torch.bfloat16) * 0.1)(D, N)
        log_dt = (lambda *s: torch.randn(*s, dtype=torch.bfloat16) * 0.05)(D) * 0.5 - 4.0
        Dskip = (lambda *s: torch.randn(*s, dtype=torch.bfloat16) * 0.05)(D)
        return {
            "u": _w((lambda *s: torch.randn(*s, dtype=torch.bfloat16) * 0.05)(B, L, D)),
            "A_re": _w(A_re),
            "A_im": _w(A_im),
            "B_re": _w(B_re),
            "B_im": _w(B_im),
            "C_re": _w(C_re),
            "C_im": _w(C_im),
            "log_dt": _w(log_dt),
            "Dskip": _w(Dskip),
        }
    _B_in = _B_setup()

    return {
        "A_x": _A_in["x"],
        "A_wqkv": _A_in["wqkv"],
        "A_w_phi": _A_in["w_phi"],
        "A_wo": _A_in["wo"],
        "B_u": _B_in["u"],
        "B_A_re": _B_in["A_re"],
        "B_A_im": _B_in["A_im"],
        "B_B_re": _B_in["B_re"],
        "B_B_im": _B_in["B_im"],
        "B_C_re": _B_in["C_re"],
        "B_C_im": _B_in["C_im"],
        "B_log_dt": _B_in["log_dt"],
        "B_Dskip": _B_in["Dskip"],
        "gate_w": _w((lambda *s: torch.randn(*s, dtype=torch.bfloat16) * 0.05)(448) * 16.0),
    }

def reference(A_x, A_wqkv, A_w_phi, A_wo, B_u, B_A_re, B_A_im, B_B_re, B_B_im, B_C_re, B_C_im, B_log_dt, B_Dskip, gate_w):
    def _A_ref(x, wqkv, w_phi, wo):
        B, S, D = x.shape
        H = 16; Dh = D // H
        qkv = (lambda x, *d: x.permute(*d))((x @ wqkv).reshape(B, S, 3, H, Dh), 2, 0, 3, 1, 4)
        q, k, v = qkv[0], qkv[1], qkv[2]
        pq = torch.einsum("bhsd,hdf->bhsf", q, w_phi)
        pk = torch.einsum("bhsd,hdf->bhsf", k, w_phi)
        phi_q = torch.concatenate([_softmax(pq, axis=-1), _softmax(-pq, axis=-1)], axis=-1)
        phi_k = torch.concatenate([_softmax(pk, axis=-1), _softmax(-pk, axis=-1)], axis=-1)
        kv = torch.einsum("bhsf,bhsd->bhfd", phi_k, v)
        z  = torch.einsum("bhsf->bhf", phi_k)
        num = torch.einsum("bhqf,bhfd->bhqd", phi_q, kv)
        den = torch.einsum("bhqf,bhf->bhq", phi_q, z)[..., None] + 1e-6
        o = num / den
        return (lambda x, *d: x.permute(*d))(o, 0, 2, 1, 3).reshape(B, S, D) @ wo

    def _B_ref(u, A_re, A_im, B_re, B_im, C_re, C_im, log_dt, Dskip):
        Bsz, L, D = u.shape
        dt = torch.exp(log_dt)[:, None]
        A = A_re + 1j * A_im
        Bc = B_re + 1j * B_im
        Cc = C_re + 1j * C_im
        logdA = dt * A
        dB = dt * Bc
        l = (lambda x, dt: x.to(dt))(torch.arange(L), A_re.dtype)
        P = torch.exp(logdA[:, :, None] * l[None, None, :])
        K = torch.einsum("dn,dnl,dn->dl", Cc, P, dB).real
        L2 = 2 * L
        Kp = _pad(K, ((0, 0), (0, L)))
        up = (lambda x, *d: x.permute(*d))(u, 0, 2, 1)
        up = _pad(up, ((0, 0), (0, 0), (0, L)))
        Kf = (lambda x, axes=(-2,-1): torch.fft.rfft2(x.float(), dim=axes))(Kp[:, None, :], axes=(-2, -1))
        Uf = (lambda x, axes=(-2,-1): torch.fft.rfft2(x.float(), dim=axes))(up[:, :, None, :], axes=(-2, -1))
        Yf = Uf * Kf[None, :, :, :]
        y = (lambda x, s, axes=(-2,-1): torch.fft.irfft2(x, s=s, dim=axes).to(torch.bfloat16))(Yf, (1, L2), axes=(-2, -1))[:, :, 0, :L]
        y = (lambda x, *d: x.permute(*d))(y, 0, 2, 1) + u * Dskip[None, None, :]
        return y

    x = A_x
    g = _sigmoid((x * gate_w).sum(-1, keepdims=True))
    a = _A_ref(x, A_wqkv, A_w_phi, A_wo)
    b = _B_ref(x, B_A_re, B_A_im, B_B_re, B_B_im, B_C_re, B_C_im, B_log_dt, B_Dskip)
    return g * a + (1 - g) * b
```

```python
import re

REG_RE = re.compile(r'(?<![\w.])([vsa])\[(\d+):(\d+)\]|(?<![\w.\[:])([vsa])(\d+)(?![\w\]:])|\b(vcc|exec_hi|exec_lo|exec|m0|scc)\b')

def regs_in(op):
    out = []
    for m in REG_RE.finditer(op):
        if m.group(1):
            f = m.group(1)
            out += [(f, i) for i in range(int(m.group(2)), int(m.group(3)) + 1)]
        elif m.group(4):
            out.append((m.group(4), int(m.group(5))))
        else:
            n = m.group(6)
            if n == 'vcc':
                out += [('s', 106), ('s', 107)]
            elif n == 'exec_hi':
                out.append(('s', 127))
            elif n == 'exec_lo':
                out.append(('s', 126))
            elif n == 'exec':
                out += [('s', 126), ('s', 127)]
            elif n == 'm0':
                out.append(('s', 124))
    return out

def split_ops(s):
    ops = []; depth = 0; cur = ''
    for ch in s:
        if ch in '[(':
            depth += 1
        if ch in '])':
            depth -= 1
        if ch == ',' and depth == 0:
            ops.append(cur.strip()); cur = ''
        else:
            cur += ch
    if cur.strip():
        ops.append(cur.strip())
    return ops

TRANS = ('v_exp_f32', 'v_log_f32', 'v_rcp_f32', 'v_rsq_f32', 'v_sqrt_f32', 'v_sin_f32', 'v_cos_f32')

class Ins:
    def __init__(self, text):
        self.text = text
        t = text.split(';')[0].strip()
        self.is_label = t.endswith(':')
        self.empty = (t == '' or t.startswith('.'))
        self.mn = ''
        self.reads = set(); self.writes = set()
        self.kind = 'none'
        self.states = 0
        if self.is_label or self.empty:
            return
        parts = t.split(None, 1)
        mn = parts[0]; self.mn = mn
        rest = parts[1] if len(parts) > 1 else ''
        ops = split_ops(rest)
        oregs = []
        for i, o in enumerate(ops):
            oo = o.split()[0] if o.split() else o
            oregs.append(regs_in(oo))
        self.ops = ops
        self.states = 1
        if mn == 's_nop':
            self.states = int(ops[0], 0) + 1; self.kind = 'nop'; return
        allr = [r for o in oregs for r in o]
        if mn.startswith('v_mfma'):
            self.kind = 'mfma'
            self.passes = 8 if '32x32x16' in mn or '32x32x8' in mn else 4
            self.writes = set(oregs[0]); self.srcA = set(oregs[1]); self.srcB = set(oregs[2])
            self.srcC = set(oregs[3]) if len(oregs) > 3 else set()
            self.reads = self.srcA | self.srcB | self.srcC
        elif mn.startswith('v_'):
            self.kind = 'valu'
            self.trans = mn.replace('_e32', '').replace('_e64', '') in TRANS
            if mn.startswith('v_cmp'):
                self.writes = set(oregs[0]); self.reads = set(r for o in oregs[1:] for r in o)
            elif mn.startswith(('v_add_co', 'v_sub_co', 'v_addc_co', 'v_subb_co', 'v_subrev_co')):
                self.writes = set(oregs[0]) | set(oregs[1]); self.reads = set(r for o in oregs[2:] for r in o)
            elif mn.startswith('v_permlane32_swap') or mn.startswith('v_permlane16_swap'):
                self.writes = set(oregs[0]) | set(oregs[1]); self.reads = set(self.writes); self.perm = True
            elif mn.startswith(('v_fmac', 'v_dot2c', 'v_pk_fmac')):
                self.writes = set(oregs[0]); self.reads = set(allr)
            else:
                self.writes = set(oregs[0]); self.reads = set(r for o in oregs[1:] for r in o)
            self.dpp = 'dpp' in mn or 'row_' in t or 'quad_perm' in t
        elif mn.startswith('ds_'):
            self.kind = 'mem'
            if mn.startswith('ds_read') or mn.startswith(('ds_bpermute', 'ds_permute', 'ds_swizzle')):
                self.writes = set(oregs[0]); self.reads = set(r for o in oregs[1:] for r in o)
                if 'd16' in mn: self.reads |= self.writes
            else:
                self.reads = set(allr)
        elif mn.startswith(('buffer_', 'global_')):
            self.kind = 'mem'
            islds = ' lds' in t or '_lds_' in mn
            if ('load' in mn) and not islds:
                self.writes = set(oregs[0]); self.reads = set(r for o in oregs[1:] for r in o)
                if 'd16' in mn: self.reads |= self.writes
            else:
                self.reads = set(allr)
            self.islds = islds
            self.widestore = ('store_dwordx4' in mn or 'store_dwordx3' in mn)
            if self.widestore:
                self.stdata = set(oregs[0]) if mn.startswith('buffer_') else set(oregs[1])
        elif mn.startswith('s_'):
            self.kind = 'salu'
            nod = ('s_cmp', 's_cbranch', 's_waitcnt', 's_barrier', 's_sleep', 's_setprio', 's_endpgm', 's_branch', 's_bitcmp', 's_setreg')
            if mn.startswith(nod):
                self.reads = set(allr)
            else:
                self.writes = set(oregs[0]) if oregs else set(); self.reads = set(r for o in oregs[1:] for r in o)
        else:
            raise ValueError('unknown instr: ' + text)

def isv(r): return r[0] in 'va'

def need(prev, cur):
    n = 0
    pw = prev.writes
    if prev.kind == 'valu':
        pv = set(r for r in pw if isv(r)); ps = set(r for r in pw if r[0] == 's')
        if cur.kind == 'mfma' and (pv & cur.reads): n = max(n, 2)
        if cur.kind == 'valu':
            if prev.trans and not cur.trans and (pv & (cur.reads | cur.writes)): n = max(n, 1)
            if getattr(cur, 'perm', False) and (pv & cur.reads): n = max(n, 2)
            if cur.mn.startswith(('v_readlane', 'v_readfirstlane')) and (pv & cur.reads): n = max(n, 1)
            if cur.dpp and (pv & cur.reads): n = max(n, 2)
            if ps & cur.reads:
                n = max(n, 4 if cur.mn.startswith(('v_readlane', 'v_writelane')) else 2)
        if cur.kind == 'mem' and (ps & cur.reads): n = max(n, 5)
        if cur.kind == 'salu' and (ps & cur.reads): n = max(n, 2)
        if cur.kind == 'mfma' and (('s', 126) in ps): n = max(n, 4)
    if prev.kind == 'mfma':
        N = {4: 8, 8: 12}[prev.passes]
        Nc = {4: 6, 8: 10}[prev.passes]
        Nw = {4: 3, 8: 7}[prev.passes]
        if cur.kind in ('valu', 'mem') and (pw & (cur.reads | cur.writes)): n = max(n, N)
        if cur.kind == 'mfma':
            if pw & (cur.srcA | cur.srcB): n = max(n, N)
            if pw & cur.srcC:
                if not (pw == cur.srcC and prev.passes == cur.passes): n = max(n, Nc)
            elif pw & cur.writes:
                n = max(n, Nc)
        if cur.kind == 'valu' and (prev.srcC & cur.writes): n = max(n, Nw)
    if prev.kind == 'mem' and getattr(prev, 'widestore', False):
        if cur.kind == 'valu' and (prev.stdata & cur.writes): n = max(n, 2)
        elif cur.kind in ('mem', 'mfma') and (prev.stdata & cur.writes): n = max(n, 1)
    if prev.kind == 'salu' and (('s', 124) in pw):
        if cur.kind == 'mem' and getattr(cur, 'islds', False): n = max(n, 1)
    return n

def missing(hist, cur):
    dist = 0; worst = 0
    for p in reversed(hist):
        if p.states == 0: continue
        r = need(p, cur)
        if r > dist: worst = max(worst, r - dist)
        dist += p.states
        if dist > 24: break
    return worst

def nops(n):
    out = []
    while n > 0:
        k = min(n, 16); out.append(Ins('    s_nop %d' % (k - 1))); n -= k
    return out

def fix_hazards(lines):
    ins = [Ins(l) for l in lines]
    out = []
    for i in ins:
        if i.states:
            m = missing(out, i)
            if m: out += nops(m)
        out.append(i)
    changed = True
    it = 0
    while changed:
        changed = False; it += 1
        assert it < 50
        labels = {i.text.split(':')[0].strip(): k for k, i in enumerate(out) if i.is_label}
        for k, i in enumerate(out):
            if i.mn.startswith(('s_cbranch', 's_branch')):
                tgt = i.ops[0].split()[0]
                if tgt not in labels: continue
                t = labels[tgt]
                hist = out[max(0, k - 30):k + 1]
                h = list(hist); worst = 0
                dist = 0
                for c in out[t:t + 30]:
                    if c.states:
                        m = missing(h, c)
                        worst = max(worst, m)
                        h.append(c); dist += c.states
                        if dist > 24: break
                        if c.mn.startswith(('s_branch', 's_endpgm')): break
                if worst:
                    out[t + 1:t + 1] = nops(worst)
                    changed = True
                    break
    return [i.text for i in out]

class G:
    def __init__(self):
        self.lines = []
        self.uid = 0
    def __call__(self, s):
        for l in s.strip('\n').split('\n'):
            l = l.strip()
            if l:
                self.lines.append(('    ' + l) if not l.endswith(':') else l)
    def label(self, n): self.lines.append(n + ':')
    def newlabel(self, p='L'):
        self.uid += 1; return '%s_%d' % (p, self.uid)
    def c(self, s): self.lines.append('    ; ' + s)

def vr(b, n=1):
    return 'v%d' % b if n == 1 else 'v[%d:%d]' % (b, b + n - 1)
def sr(b, n=1):
    return 's%d' % b if n == 1 else 's[%d:%d]' % (b, b + n - 1)
```

```python
from asmlib import *

KNAME = 'gated_mix__linear_kernel_hedgehog__ssm_conv_s4__prompt_kernel'
WS_XT = 0x000000; XT_ROW = 4128
WS_Y2 = 0x200000
WS_O = 0x400000
WS_KVP = 0x600000
WS_G = 0x700000
WS_FX = 0x800000
WS_FY = 0x802000
WS_FK = 0x804000
WS_FO = 0x806000
WS_DBG = 0x1000000
NS = 224; NA = 256
S_WS = 4
S_T = 8
S_NONCE = 12
S_WAVE = 14
P_X, P_WQKV, P_WPHI, P_WO, P_U, P_ARE, P_AIM, P_BRE, P_BIM, P_CRE, P_CIM, P_LDT, P_DSK, P_GW, P_OUT, P_DBG, P_WS = [16 + 2 * i for i in range(17)]

def poll_flags(g, voff, n_lanes_mask_note, vtmp, stmp, limit=200000):
    L = g.newlabel('L_poll'); D = g.newlabel('L_polld')
    g('s_mov_b32 s%d, 0' % stmp)
    g.label(L)
    g('buffer_load_dwordx2 %s, v%d, %s, 0 offen sc1' % (vr(vtmp, 2), voff, sr(S_WS, 4)))
    g('s_waitcnt vmcnt(0)')
    g('v_cmp_eq_u64 vcc, %s, %s' % (sr(S_NONCE, 2), vr(vtmp, 2)))
    g('s_cmp_eq_u64 vcc, exec')
    g('s_cbranch_scc1 %s' % D)
    g('s_add_u32 s%d, s%d, 1' % (stmp, stmp))
    g('s_cmp_ge_u32 s%d, %d' % (stmp, limit))
    g('s_cbranch_scc1 %s' % D)
    g('s_sleep 1')
    g('s_branch %s' % L)
    g.label(D)

def get_nonce(g, vtmp, vzero, stmp, limit=200000):
    L = g.newlabel('L_non'); D = g.newlabel('L_nond')
    g('s_mov_b32 s%d, 0' % stmp)
    g.label(L)
    g('global_load_dwordx2 %s, v%d, %s sc1' % (vr(vtmp, 2), vzero, sr(P_DBG, 2)))
    g('s_waitcnt vmcnt(0)')
    g('v_readfirstlane_b32 s%d, v%d' % (S_NONCE, vtmp))
    g('v_readfirstlane_b32 s%d, v%d' % (S_NONCE + 1, vtmp + 1))
    g('s_cmp_lg_u32 s%d, 0' % S_NONCE)
    g('s_cbranch_scc1 %s' % D)
    g('s_add_u32 s%d, s%d, 1' % (stmp, stmp))
    g('s_cmp_ge_u32 s%d, %d' % (stmp, limit))
    g('s_cbranch_scc1 %s' % D)
    g('s_sleep 1')
    g('s_branch %s' % L)
    g.label(D)

def set_flag(g, voff, vtmp):
    g('v_mov_b32 v%d, s%d' % (vtmp, S_NONCE))
    g('v_mov_b32 v%d, s%d' % (vtmp + 1, S_NONCE + 1))
    g('s_mov_b64 exec, 1')
    g('buffer_store_dwordx2 %s, v%d, %s, 0 offen sc1' % (vr(vtmp, 2), voff, sr(S_WS, 4)))
    g('s_mov_b64 exec, -1')

def cmul(g, d, a, b):
    g('v_pk_mul_f32 %s, %s, %s op_sel:[0,0] op_sel_hi:[0,1]' % (vr(d, 2), vr(a, 2), vr(b, 2)))
def cmul2(g, d, a, b):
    g('v_pk_fma_f32 %s, %s, %s, %s op_sel:[1,1,0] op_sel_hi:[1,0,1] neg_lo:[1,0,0]' % (vr(d, 2), vr(a, 2), vr(b, 2), vr(d, 2)))
```

```python
from common import *
import struct
def f2u(x): return struct.unpack('<I', struct.pack('<f', x))[0]
L2E = f2u(1.4426950408889634); LN2 = f2u(0.6931471805599453)
WK = 0; WV = 28672; WQ = 0; RED = 28672; KVX = 61440
XF = 144
S_W = 64
S_P = 68
S_UP = 72
S_L28 = 74
S_F28 = 76
S_TT = 78; S_H = 79; S_L2E = 80; S_LN2 = 81; S_TT64 = 82; S_CG = 83

def srd(g, s, ptr, nbytes):
    g('s_mov_b32 s%d, s%d' % (s, ptr)); g('s_mov_b32 s%d, s%d' % (s + 1, ptr + 1))
    g('s_mov_b32 s%d, %d' % (s + 2, nbytes)); g('s_mov_b32 s%d, 0x00020000' % (s + 3))

def softmax_stats(g, DP, T, want_c):
    MX, MN, SP, SM, A, B, TM, TN = T, T + 1, T + 2, T + 3, T + 4, T + 5, T + 6, T + 7
    EP = T + 8; EM = T + 24
    for i in range(12, 16):
        g('v_cndmask_b32 v%d, v%d, v%d, %s' % (DP + i, DP + i, DP + 11, sr(S_UP, 2)))
    g('v_max3_f32 v%d, v%d, v%d, v%d' % (MX, DP, DP + 1, DP + 2))
    g('v_min3_f32 v%d, v%d, v%d, v%d' % (MN, DP, DP + 1, DP + 2))
    for i in range(3, 15, 2):
        g('v_max3_f32 v%d, v%d, v%d, v%d' % (MX, MX, DP + i, DP + i + 1))
        g('v_min3_f32 v%d, v%d, v%d, v%d' % (MN, MN, DP + i, DP + i + 1))
    g('v_max_f32 v%d, v%d, v%d' % (MX, MX, DP + 15))
    g('v_min_f32 v%d, v%d, v%d' % (MN, MN, DP + 15))
    g('v_mov_b32 v%d, v%d' % (A, MX)); g('v_mov_b32 v%d, v%d' % (B, MX))
    g('v_mov_b32 v%d, v%d' % (TM, MN)); g('v_mov_b32 v%d, v%d' % (TN, MN))
    g('v_permlane32_swap_b32 v%d, v%d' % (A, B))
    g('v_permlane32_swap_b32 v%d, v%d' % (TM, TN))
    g('v_max_f32 v%d, v%d, v%d' % (MX, A, B))
    g('v_min_f32 v%d, v%d, v%d' % (MN, TM, TN))
    g('v_mul_f32 v%d, s%d, v%d' % (TM, S_L2E, MX))
    g('v_mul_f32 v%d, s%d, v%d' % (TN, S_L2E, MN))
    for i in range(16):
        g('v_fma_f32 v%d, v%d, s%d, -v%d' % (EP + i, DP + i, S_L2E, TM))
        g('v_fma_f32 v%d, -v%d, s%d, v%d' % (EM + i, DP + i, S_L2E, TN))
    for i in range(16):
        g('v_exp_f32 v%d, v%d' % (EP + i, EP + i))
        g('v_exp_f32 v%d, v%d' % (EM + i, EM + i))
    for i in range(12, 16):
        g('v_cndmask_b32 v%d, v%d, 0, %s' % (EP + i, EP + i, sr(S_UP, 2)))
        g('v_cndmask_b32 v%d, v%d, 0, %s' % (EM + i, EM + i, sr(S_UP, 2)))
    g('v_add_f32 v%d, v%d, v%d' % (SP, EP, EP + 1)); g('v_add_f32 v%d, v%d, v%d' % (SM, EM, EM + 1))
    g('v_add_f32 v%d, v%d, v%d' % (A, EP + 2, EP + 3)); g('v_add_f32 v%d, v%d, v%d' % (B, EM + 2, EM + 3))
    for i in range(4, 16, 2):
        g('v_add_f32 v%d, v%d, v%d' % (SP, SP, EP + i)); g('v_add_f32 v%d, v%d, v%d' % (SM, SM, EM + i))
        g('v_add_f32 v%d, v%d, v%d' % (A, A, EP + i + 1)); g('v_add_f32 v%d, v%d, v%d' % (B, B, EM + i + 1))
    g('v_add_f32 v%d, v%d, v%d' % (SP, SP, A)); g('v_add_f32 v%d, v%d, v%d' % (SM, SM, B))
    g('v_mov_b32 v%d, v%d' % (A, SP)); g('v_mov_b32 v%d, v%d' % (B, SP))
    g('v_mov_b32 v%d, v%d' % (TM, SM)); g('v_mov_b32 v%d, v%d' % (TN, SM))
    g('v_permlane32_swap_b32 v%d, v%d' % (A, B))
    g('v_permlane32_swap_b32 v%d, v%d' % (TM, TN))
    g('v_add_f32 v%d, v%d, v%d' % (SP, A, B))
    g('v_add_f32 v%d, v%d, v%d' % (SM, TM, TN))
    return MX, MN, SP, SM, EP, EM

def gen_A(g, stage=99):
    g.c('---- A type')
    g('s_sub_u32 s50, s2, %d' % NS)
    g('s_and_b32 s51, s50, 7')
    g('s_lshr_b32 s52, s50, 3')
    g('s_and_b32 s53, s51, 3')
    g('s_lshl_b32 s53, s53, 2')
    g('s_and_b32 s54, s52, 3')
    g('s_add_u32 s%d, s53, s54' % S_TT)
    g('s_lshr_b32 s53, s51, 2')
    g('s_lshl_b32 s53, s53, 3')
    g('s_lshr_b32 s54, s52, 2')
    g('s_add_u32 s%d, s53, s54' % S_H)
    g('s_and_b32 s%d, s52, 7' % S_CG)
    g('s_lshl_b32 s53, s51, 2')
    g('s_lshr_b32 s54, s52, 3')
    g('s_add_u32 s%d, s53, s54' % S_TT64)
    srd(g, S_W, P_WQKV, 448 * 2688)
    g('v_and_b32 v2, 31, v1')
    g('v_lshrrev_b32 v3, 5, v1')
    g('s_lshl_b32 s53, s%d, 7' % S_TT)
    g('s_lshl_b32 s54, s14, 5')
    g('s_add_u32 s53, s53, s54')
    g('v_add_u32 v4, s53, v2')
    g('v_mul_u32_u24 v5, 896, v4')
    g('v_lshl_add_u32 v5, v3, 4, v5')
    g('v_lshrrev_b32 v6, 2, v1')
    g('v_and_b32 v7, 3, v1')
    g('v_mul_u32_u24 v8, 2688, v6')
    g('v_lshl_add_u32 v8, v7, 4, v8')
    g('s_mul_i32 s53, s%d, 56' % S_H)
    g('v_add_u32 v8, s53, v8')
    g('s_mul_i32 s55, s14, %d' % (16 * 2688))
    g('s_lshl_b32 s56, s14, 10')
    for c in range(7):
        g('s_add_u32 s57, s55, %d' % (c * 64 * 2688 + 896))
        g('s_add_u32 m0, s56, %d' % (WK + c * 4096))
        g('s_add_u32 s58, s55, %d' % (c * 64 * 2688 + 1792))
        g('buffer_load_dwordx4 v8, %s, s57 offen lds' % sr(S_W, 4))
        g('s_add_u32 m0, s56, %d' % (WV + c * 4096))
        g('s_nop 0')
        g('buffer_load_dwordx4 v8, %s, s58 offen lds' % sr(S_W, 4))
        for t in range(4 * c, 4 * c + 4):
            g('global_load_dwordx4 %s, v5, %s offset:%d' % (vr(XF + 4 * t, 4), sr(P_X, 2), 32 * t))
    srd(g, S_P, P_WPHI, 16 * 784 * 2)
    g('s_mul_i32 s53, s%d, 784' % S_H)
    g('v_mul_u32_u24 v9, 112, v3')
    g('v_add_u32 v9, v9, v2')
    g('v_add_u32 v9, s53, v9')
    g('v_lshlrev_b32 v9, 1, v9')
    g('v_cmp_lt_u32 vcc, 27, v2')
    g('s_mov_b64 %s, vcc' % sr(S_F28, 2))
    g('v_mov_b32 v10, 0x7ffff000')
    g('v_cndmask_b32 v9, v9, v10, vcc')
    W0 = 64; W1 = 68
    for tp in range(2):
        for j in range(8):
            d = 16 * tp + 8 * (j >> 2) + (j & 3)
            g('buffer_load_ushort v%d, v9, %s, 0 offen offset:%d' % (48 + 8 * tp + j, sr(S_P, 4), d * 56))
    g('v_lshlrev_b32 v10, 1, v0')
    srd(g, S_P + 16, P_GW, 896)
    g('buffer_load_ushort v12, v10, %s, 0 offen' % sr(S_P + 16, 4))
    g('buffer_load_ushort v13, v10, %s, 0 offen offset:512' % sr(S_P + 16, 4))
    NPRE = 42 + 16 + 2
    g('s_mov_b32 s%d, 0' % S_UP); g('s_mov_b32 s%d, -1' % (S_UP + 1))
    g('s_mov_b32 s%d, 0x10000000' % S_L28); g('s_mov_b32 s%d, 0x10000000' % (S_L28 + 1))
    g('s_mov_b32 s%d, 0x%x' % (S_L2E, L2E)); g('s_mov_b32 s%d, 0x%x' % (S_LN2, LN2))
    g('v_lshrrev_b32 v10, 4, v1')
    g('v_bfe_u32 v11, v1, 2, 2')
    g('v_lshrrev_b32 v14, 1, v10')
    g('v_lshl_add_u32 v11, v14, 3, v11')
    g('v_lshlrev_b32 v11, 6, v11')
    g('v_and_b32 v14, 1, v10')
    g('v_lshl_add_u32 v11, v14, 5, v11')
    g('v_lshl_add_u32 v11, v7, 3, v11')
    DK = 16; DV = 32; WF = 96
    for c in range(7):
        g('s_waitcnt vmcnt(%d)' % (NPRE - 6 * (c + 1)))
        g('s_barrier')
        for tq in range(4):
            t = 4 * c + tq
            for sg, segb in ((0, WK), (1, WV)):
                for a in range(2):
                    g('ds_read_b64_tr_b16 %s, v11 offset:%d' % (vr(WF + 8 * tq + 4 * sg + 2 * a, 2), segb + 1024 * t + 256 * a))
        for tq in range(4):
            t = 4 * c + tq
            g('s_waitcnt lgkmcnt(%d)' % (16 - 4 * tq - 2 if 16 - 4 * tq - 2 <= 15 else 15))
            g('v_mfma_f32_32x32x16_bf16 %s, %s, %s, %s' % (vr(DK, 16), vr(WF + 8 * tq, 4), vr(XF + 4 * t, 4), '0' if t == 0 else vr(DK, 16)))
            g('s_waitcnt lgkmcnt(%d)' % (16 - 4 * tq - 4))
            g('v_mfma_f32_32x32x16_bf16 %s, %s, %s, %s' % (vr(DV, 16), vr(XF + 4 * t, 4), vr(WF + 8 * tq + 4, 4), '0' if t == 0 else vr(DV, 16)))
    g('s_barrier')
    for c in range(7):
        g('s_add_u32 s57, s55, %d' % (c * 64 * 2688))
        g('s_add_u32 m0, s56, %d' % (WQ + c * 4096))
        g('s_nop 0')
        g('buffer_load_dwordx4 v8, %s, s57 offen lds' % sr(S_W, 4))
    g('s_waitcnt vmcnt(7)')
    W1Z = 72; W1P = 76; W0N = 80; W1N = 84
    g('v_mov_b32 v14, 0x3f803f80')
    g('v_mov_b32 v15, 0x80008000')
    for i in range(8):
        g('v_lshl_or_b32 v%d, v%d, 16, v%d' % (W0 + i, 48 + 2 * i + 1, 48 + 2 * i))
    for i in range(8):
        g('v_cndmask_b32 v%d, v%d, 0, %s' % (W0 + i, W0 + i, sr(S_F28, 2)))
    for i in range(4):
        g('v_xor_b32 v%d, v15, v%d' % (W0N + i, W0 + i))
        g('v_xor_b32 v%d, v15, v%d' % (W1N + i, W1 + i))
    for i in range(2):
        for dst in (W1Z, W1P):
            g('v_mov_b32 v%d, v%d' % (dst + i, W1 + i))
    g('v_cndmask_b32 v%d, v%d, 0, %s' % (W1Z + 2, W1 + 2, sr(S_UP, 2)))
    g('v_cndmask_b32 v%d, v%d, 0, %s' % (W1Z + 3, W1 + 3, sr(S_UP, 2)))
    g('v_cndmask_b32 v%d, v%d, v14, %s' % (W1P + 2, W1 + 2, sr(S_UP, 2)))
    g('v_cndmask_b32 v%d, v%d, 0, %s' % (W1P + 3, W1 + 3, sr(S_UP, 2)))
    g('v_cndmask_b32 v%d, v%d, 0, %s' % (W1N + 2, W1N + 2, sr(S_UP, 2)))
    g('v_cndmask_b32 v%d, v%d, v14, %s' % (W1N + 3, W1N + 3, sr(S_UP, 2)))
    KB = 48; VB = 56; DP = 16; T = 96
    for i in range(8):
        g('v_cvt_pk_bf16_f32 v%d, v%d, v%d' % (KB + i, DK + 2 * i, DK + 2 * i + 1))
    for i in range(8):
        g('v_cvt_pk_bf16_f32 v%d, v%d, v%d' % (VB + i, DV + 2 * i, DV + 2 * i + 1))
    g('v_mfma_f32_32x32x16_bf16 %s, %s, %s, 0' % (vr(DP, 16), vr(W0, 4), vr(KB, 4)))
    g('v_mfma_f32_32x32x16_bf16 %s, %s, %s, %s' % (vr(DP, 16), vr(W1Z, 4), vr(KB + 4, 4), vr(DP, 16)))
    for i in range(8):
        g('v_cndmask_b32 v%d, v%d, v14, %s' % (VB + i, VB + i, sr(S_L28, 2)))
    MX, MN, SP, SM, EP, EM = softmax_stats(g, DP, T, True)
    A_, B_ = T + 4, T + 5
    g('v_log_f32 v%d, v%d' % (SP, SP)); g('v_log_f32 v%d, v%d' % (SM, SM))
    g('v_fma_f32 v%d, -v%d, s%d, -v%d' % (SP, SP, S_LN2, MX))
    g('v_fma_f32 v%d, -v%d, s%d, v%d' % (SM, SM, S_LN2, MN))
    for r_, tmp in ((SP, A_), (SM, B_)):
        g('v_cvt_pk_bf16_f32 v%d, v%d, v%d' % (tmp, r_, r_))
        g('v_lshlrev_b32 v%d, 16, v%d' % (tmp, tmp))
        g('v_sub_f32 v%d, v%d, v%d' % (tmp, r_, tmp))
        g('v_cvt_pk_bf16_f32 v%d, v%d, v%d' % (tmp, r_, tmp))
    g('v_cndmask_b32 v%d, v%d, v%d, %s' % (KB + 6, KB + 6, A_, sr(S_UP, 2)))
    g('v_cndmask_b32 v%d, v%d, v%d, %s' % (KB + 7, KB + 7, B_, sr(S_UP, 2)))
    DPP = 16; DPM = 32
    g('v_mfma_f32_32x32x16_bf16 %s, %s, %s, 0' % (vr(DPP, 16), vr(KB, 4), vr(W0, 4)))
    g('v_mfma_f32_32x32x16_bf16 %s, %s, %s, 0' % (vr(DPM, 16), vr(KB, 4), vr(W0N, 4)))
    g('v_mfma_f32_32x32x16_bf16 %s, %s, %s, %s' % (vr(DPP, 16), vr(KB + 4, 4), vr(W1P, 4), vr(DPP, 16)))
    g('v_mfma_f32_32x32x16_bf16 %s, %s, %s, %s' % (vr(DPM, 16), vr(KB + 4, 4), vr(W1N, 4), vr(DPM, 16)))
    for i in range(16):
        g('v_mul_f32 v%d, s%d, v%d' % (DPP + i, S_L2E, DPP + i))
    for i in range(16):
        g('v_exp_f32 v%d, v%d' % (DPP + i, DPP + i))
        g('v_mul_f32 v%d, s%d, v%d' % (DPM + i, S_L2E, DPM + i))
    for i in range(16):
        g('v_exp_f32 v%d, v%d' % (DPM + i, DPM + i))
    PH = 96
    for i in range(8):
        g('v_cvt_pk_bf16_f32 v%d, v%d, v%d' % (PH + i, DPP + 2 * i, DPP + 2 * i + 1))
    for i in range(8):
        g('v_cvt_pk_bf16_f32 v%d, v%d, v%d' % (PH + 8 + i, DPM + 2 * i, DPM + 2 * i + 1))
    KVP_ = 16; KVM = 32
    g('v_mfma_f32_32x32x16_bf16 %s, %s, %s, 0' % (vr(KVP_, 16), vr(PH, 4), vr(VB, 4)))
    g('v_mfma_f32_32x32x16_bf16 %s, %s, %s, 0' % (vr(KVM, 16), vr(PH + 8, 4), vr(VB, 4)))
    g('v_mfma_f32_32x32x16_bf16 %s, %s, %s, %s' % (vr(KVP_, 16), vr(PH + 4, 4), vr(VB + 4, 4), vr(KVP_, 16)))
    g('v_mfma_f32_32x32x16_bf16 %s, %s, %s, %s' % (vr(KVM, 16), vr(PH + 12, 4), vr(VB + 4, 4), vr(KVM, 16)))
    g('s_lshl_b32 s57, s14, 13')
    g('s_add_u32 s57, s57, %d' % RED)
    g('v_lshlrev_b32 v14, 4, v1')
    g('v_add_u32 v15, s57, v14')
    for gq in range(8):
        g('ds_write_b128 v15, %s offset:%d' % (vr(16 + 4 * gq, 4), 1024 * gq))
    g('s_waitcnt lgkmcnt(0)')
    g('s_barrier')
    g('s_lshl_b32 s57, s14, 11')
    g('s_add_u32 s57, s57, %d' % RED)
    g('v_add_u32 v15, s57, v14')
    for wv in range(4):
        for k in range(2):
            g('ds_read_b128 %s, v15 offset:%d' % (vr(96 + 8 * wv + 4 * k, 4), 8192 * wv + 1024 * k))
    g('s_lshl_b32 s57, s%d, 4' % S_H)
    g('s_add_u32 s57, s57, s%d' % S_TT)
    g('s_lshl_b32 s57, s57, 2')
    g('s_add_u32 s57, s57, s14')
    g('s_lshl_b32 s57, s57, 10')
    g('s_add_u32 s57, s57, %d' % WS_KVP)
    g('v_add_u32 v15, s57, v14')
    g('s_waitcnt lgkmcnt(0)')
    for i in range(8):
        g('v_add_f32 v%d, v%d, v%d' % (96 + i, 96 + i, 104 + i))
        g('v_add_f32 v%d, v%d, v%d' % (112 + i, 112 + i, 120 + i))
    for i in range(8):
        g('v_add_f32 v%d, v%d, v%d' % (96 + i, 96 + i, 112 + i))
    for i in range(4):
        g('v_cvt_pk_bf16_f32 v%d, v%d, v%d' % (104 + i, 96 + 2 * i, 97 + 2 * i))
    g('buffer_store_dwordx4 v[104:107], v15, %s, 0 offen sc1' % sr(S_WS, 4))
    g('v_mov_b32 v10, 0')
    get_nonce(g, 96, 10, 57)
    g('s_lshl_b32 s57, s%d, 2' % S_H)
    g('s_add_u32 s57, s57, s14')
    g('s_lshl_b32 s57, s57, 4')
    g('s_add_u32 s58, s57, s%d' % S_TT)
    g('s_lshl_b32 s58, s58, 3')
    g('s_add_u32 s58, s58, %d' % WS_FK)
    g('v_mov_b32 v15, s58')
    set_flag(g, 15, 96)
    g('s_lshl_b32 s%d, s57, 3' % 88)
    g('s_barrier')
    g('v_lshlrev_b32 v14, 6, v0')
    g('ds_write_b16 v14, v12 offset:56')
    g('v_cmp_gt_u32 vcc, 192, v0')
    g('s_and_saveexec_b64 s[58:59], vcc')
    Lq = g.newlabel('L_gq')
    g('s_cbranch_execz %s' % Lq)
    g('ds_write_b16 v14, v13 offset:%d' % (56 + 256 * 64))
    g.label(Lq)
    g('s_mov_b64 exec, s[58:59]')
    g('s_waitcnt lgkmcnt(0)')
    g('s_barrier')
    DQ = 16; WF = 88
    for grp in range(4):
        for tq in range(7):
            t = 7 * grp + tq
            for a in range(2):
                g('ds_read_b64_tr_b16 %s, v11 offset:%d' % (vr(WF + (28 * (grp & 1)) + 4 * tq + 2 * a, 2), WQ + 1024 * t + 256 * a))
        if grp > 0:
            pg = grp - 1
            for tq in range(7):
                t = 7 * pg + tq
                if tq == 0: g('s_waitcnt lgkmcnt(14)')
                g('v_mfma_f32_32x32x16_bf16 %s, %s, %s, %s' % (vr(DQ, 16), vr(WF + 28 * (pg & 1) + 4 * tq, 4), vr(XF + 4 * t, 4), '0' if t == 0 else vr(DQ, 16)))
    g('s_waitcnt lgkmcnt(0)')
    for tq in range(7):
        t = 21 + tq
        g('v_mfma_f32_32x32x16_bf16 %s, %s, %s, %s' % (vr(DQ, 16), vr(WF + 28 + 4 * tq, 4), vr(XF + 4 * t, 4), vr(DQ, 16)))
    g('s_barrier')
    srd(g, S_P, P_WO, 448 * 896)
    g('v_mul_u32_u24 v8, 896, v6')
    g('v_lshl_add_u32 v8, v7, 4, v8')
    g('s_mul_i32 s53, s%d, 112' % S_CG)
    g('v_add_u32 v8, s53, v8')
    g('s_mul_i32 s55, s14, %d' % (16 * 896))
    for c in range(7):
        for sg in range(2):
            g('s_add_u32 s57, s55, %d' % (c * 64 * 896 + 56 * sg))
            g('s_add_u32 m0, s56, %d' % (28672 * sg + c * 4096))
            g('s_nop 0')
            g('buffer_load_dwordx4 v8, %s, s57 offen lds' % sr(S_P, 4))
    QB = 48
    g('v_mov_b32 v14, v%d' % (DQ + 12))
    for i in range(8):
        g('v_cvt_pk_bf16_f32 v%d, v%d, v%d' % (QB + i, DQ + 2 * i, DQ + 2 * i + 1))
    g('v_mfma_f32_32x32x16_bf16 %s, %s, %s, 0' % (vr(DP, 16), vr(W0, 4), vr(QB, 4)))
    g('v_mfma_f32_32x32x16_bf16 %s, %s, %s, %s' % (vr(DP, 16), vr(W1Z, 4), vr(QB + 4, 4), vr(DP, 16)))
    g('v_mul_f32 v14, s%d, v14' % S_L2E)
    g('v_exp_f32 v14, -v14')
    g('v_add_f32 v14, 1.0, v14')
    g('v_rcp_f32 v14, v14')
    Lg = g.newlabel('L_ng')
    g('s_cmp_lg_u32 s%d, 0' % S_H)
    g('s_cbranch_scc1 %s' % Lg)
    g('v_lshlrev_b32 v15, 2, v4')
    g('v_add_u32 v15, %d, v15' % WS_G)
    g('s_mov_b64 exec, %s' % sr(S_UP, 2))
    g('buffer_store_dword v14, v15, %s, 0 offen sc1' % sr(S_WS, 4))
    g('s_mov_b64 exec, -1')
    g.label(Lg)
    MX, MN, SP, SM, EP, EM = softmax_stats(g, DP, T, False)
    g('v_rcp_f32 v%d, v%d' % (SP, SP)); g('v_rcp_f32 v%d, v%d' % (SM, SM))
    for i in range(16):
        g('v_mul_f32 v%d, v%d, v%d' % (EP + i, EP + i, SP))
        g('v_mul_f32 v%d, v%d, v%d' % (EM + i, EM + i, SM))
    PQ = 48
    for i in range(8):
        g('v_cvt_pk_bf16_f32 v%d, v%d, v%d' % (PQ + i, EP + 2 * i, EP + 2 * i + 1))
        g('v_cvt_pk_bf16_f32 v%d, v%d, v%d' % (PQ + 8 + i, EM + 2 * i, EM + 2 * i + 1))
    SEL = 64
    g('v_lshrrev_b32 v8, 3, v2')
    g('v_bfe_u32 v9, v2, 2, 1')
    g('v_and_b32 v10, 3, v2')
    g('v_lshrrev_b32 v12, 1, v10')
    g('v_lshl_add_u32 v12, v8, 1, v12')
    g('v_and_b32 v13, 1, v10')
    g('v_mov_b32 v14, 0x3f80')
    g('v_mov_b32 v15, 0x3f800000')
    g('v_cmp_eq_u32 vcc, 1, v13')
    g('v_cndmask_b32 v13, v14, v15, vcc')
    g('v_cmp_eq_u32 vcc, v9, v3')
    g('v_cndmask_b32 v13, 0, v13, vcc')
    for i in range(4):
        g('v_cmp_eq_u32 vcc, %d, v12' % i)
        g('v_cndmask_b32 v%d, 0, v13, vcc' % (SEL + i))
    g('v_and_b32 v8, 15, v1')
    g('v_lshlrev_b32 v8, 3, v8')
    g('s_add_u32 s57, s88, %d' % WS_FK)
    g('v_add_u32 v8, s57, v8')
    poll_flags(g, 8, None, 96, 57)
    g('s_lshl_b32 s57, s%d, 6' % S_H)
    g('s_add_u32 s57, s57, s14')
    g('s_lshl_b32 s57, s57, 10')
    g('s_add_u32 s57, s57, %d' % WS_KVP)
    g('v_lshlrev_b32 v9, 4, v1')
    g('v_add_u32 v8, s57, v9')
    PL = 144
    for j in range(16):
        g('s_movk_i32 s57, %d' % (j * 4096) if j * 4096 < 32768 else 's_mov_b32 s57, %d' % (j * 4096))
        g('buffer_load_dwordx4 %s, v8, %s, s57 offen sc1' % (vr(PL + 4 * j, 4), sr(S_WS, 4)))
    DS_ = 16
    for j in range(16):
        g('s_waitcnt vmcnt(%d)' % (15 - j))
        g('v_mfma_f32_32x32x16_bf16 %s, %s, %s, %s' % (vr(DS_, 16), vr(SEL, 4), vr(PL + 4 * j, 4), '0' if j == 0 else vr(DS_, 16)))
    for i in range(4):
        g('v_cvt_pk_bf16_f32 v%d, v%d, v%d' % (96 + i, DS_ + 2 * i, DS_ + 2 * i + 1))
    g('s_lshl_b32 s57, s14, 10')
    g('s_add_u32 s57, s57, %d' % KVX)
    g('v_add_u32 v8, s57, v9')
    g('ds_write_b128 v8, v[96:99]')
    g('s_waitcnt lgkmcnt(0)')
    g('s_barrier')
    g('v_add_u32 v8, %d, v9' % KVX)
    KF = 100
    for t in range(4):
        g('ds_read_b128 %s, v8 offset:%d' % (vr(KF + 4 * t, 4), 1024 * t))
    DO = 16
    for t in range(4):
        g('s_waitcnt lgkmcnt(%d)' % (3 - t))
        g('v_mfma_f32_32x32x16_bf16 %s, %s, %s, %s' % (vr(DO, 16), vr(KF + 4 * t, 4), vr(PQ + 4 * t, 4), '0' if t == 0 else vr(DO, 16)))
    g('v_mov_b32 v8, v%d' % (DO + 12)); g('v_mov_b32 v9, v%d' % (DO + 12))
    g('v_permlane32_swap_b32 v8, v9')
    g('v_add_f32 v9, 0x%x, v9' % f2u(1e-6))
    g('v_rcp_f32 v9, v9')
    for i in range(16):
        g('v_mul_f32 v%d, v%d, v9' % (DO + i, DO + i))
    for i in range(8):
        g('v_cvt_pk_bf16_f32 v%d, v%d, v%d' % (96 + i, DO + 2 * i, DO + 2 * i + 1))
    g('v_mul_u32_u24 v8, 896, v4')
    g('v_lshl_add_u32 v8, v3, 3, v8')
    g('s_mul_i32 s57, s%d, 56' % S_H)
    g('s_add_u32 s57, s57, %d' % WS_O)
    g('v_add_u32 v8, s57, v8')
    for gq in range(3):
        g('buffer_store_dwordx2 %s, v8, %s, 0 offen offset:%d sc1' % (vr(96 + 2 * gq, 2), sr(S_WS, 4), 16 * gq))
    g('s_mov_b32 exec_hi, 0')
    g('buffer_store_dwordx2 %s, v8, %s, 0 offen offset:48 sc1' % (vr(102, 2), sr(S_WS, 4)))
    g('s_mov_b64 exec, -1')
    g('s_lshl_b32 s57, s%d, 2' % S_TT)
    g('s_add_u32 s57, s57, s14')
    g('s_lshl_b32 s57, s57, 4')
    g('s_add_u32 s57, s57, s%d' % S_H)
    g('s_lshl_b32 s57, s57, 3')
    g('s_add_u32 s57, s57, %d' % WS_FO)
    g('v_mov_b32 v15, s57')
    g('s_waitcnt vmcnt(0)')
    set_flag(g, 15, 96)
    g('s_barrier')
    g('v_and_b32 v2, 15, v1')
    g('v_lshrrev_b32 v3, 4, v1')
    g('s_lshl_b32 s57, s%d, 6' % S_TT64)
    g('s_lshl_b32 s58, s14, 4')
    g('s_add_u32 s57, s57, s58')
    g('v_add_u32 v4, s57, v2')
    srd(g, S_P, P_X, 2048 * 896)
    srd(g, S_W, P_DSK, 896)
    g('s_mul_i32 s58, s%d, 112' % S_CG)
    g('v_lshlrev_b32 v5, 3, v3')
    g('v_add_u32 v5, s58, v5')
    g('v_mul_u32_u24 v6, 896, v4')
    g('v_add_u32 v6, v6, v5')
    XE = 96; DE = 104
    for m in range(4):
        mo = 56 * (m >> 1) + 32 * (m & 1)
        g('buffer_load_dwordx2 %s, v6, %s, 0 offen offset:%d' % (vr(XE + 2 * m, 2), sr(S_P, 4), mo))
        g('buffer_load_dwordx2 %s, v5, %s, 0 offen offset:%d' % (vr(DE + 2 * m, 2), sr(S_W, 4), mo))
    g('v_bfe_u32 v7, v1, 2, 2')
    g('v_lshl_add_u32 v7, v3, 3, v7')
    g('v_lshlrev_b32 v7, 6, v7')
    g('v_and_b32 v8, 3, v1')
    g('v_lshl_add_u32 v7, v8, 3, v7')
    g('s_lshr_b32 s57, s%d, 1' % S_TT64)
    g('s_lshl_b32 s57, s57, 2')
    g('s_and_b32 s58, s%d, 1' % S_TT64)
    g('s_lshl_b32 s58, s58, 1')
    g('s_add_u32 s57, s57, s58')
    g('s_lshr_b32 s58, s14, 1')
    g('s_add_u32 s57, s57, s58')
    g('s_lshl_b32 s57, s57, 7')
    g('s_add_u32 s57, s57, %d' % WS_FO)
    g('v_lshlrev_b32 v8, 3, v2')
    g('v_add_u32 v8, s57, v8')
    poll_flags(g, 8, None, 112, 57)
    g('v_mul_u32_u24 v8, 896, v4')
    g('v_lshl_add_u32 v8, v3, 4, v8')
    g('v_add_u32 v8, %d, v8' % WS_O)
    OF = 144
    for t in range(14):
        g('buffer_load_dwordx4 %s, v8, %s, 0 offen offset:%d sc1' % (vr(OF + 4 * t, 4), sr(S_WS, 4), 64 * t))
    g('v_lshlrev_b32 v9, 2, v4')
    g('v_add_u32 v9, %d, v9' % WS_G)
    g('buffer_load_dword v14, v9, %s, 0 offen sc1' % sr(S_WS, 4))
    DA = 16
    WFR = 32
    def wreads(t):
        for m in range(4):
            for a in range(2):
                g('ds_read_b64_tr_b16 %s, v7 offset:%d' % (vr(WFR + 16 * (t & 1) + 4 * m + 2 * a, 2), 28672 * (m >> 1) + 2048 * t + 32 * (m & 1) + 256 * a))
    wreads(0)
    for t in range(14):
        if t < 13:
            wreads(t + 1)
            g('s_waitcnt lgkmcnt(8)')
        else:
            g('s_waitcnt lgkmcnt(0)')
        g('s_waitcnt vmcnt(%d)' % (14 - t))
        for m in range(4):
            g('v_mfma_f32_16x16x32_bf16 %s, %s, %s, %s' % (vr(DA + 4 * m, 4), vr(WFR + 16 * (t & 1) + 4 * m, 4), vr(OF + 4 * t, 4), '0' if t == 0 else vr(DA + 4 * m, 4)))
    g('s_lshl_b32 s57, s%d, 2' % S_CG)
    g('s_lshr_b32 s58, s%d, 3' % S_TT64)
    g('s_add_u32 s57, s57, s58')
    g('s_lshl_b32 s57, s57, 8')
    g('s_add_u32 s57, s57, %d' % WS_FY)
    g('v_and_b32 v8, 31, v1')
    g('v_min_u32 v8, 27, v8')
    g('v_lshlrev_b32 v8, 3, v8')
    g('v_add_u32 v8, s57, v8')
    poll_flags(g, 8, None, 112, 57)
    g('s_mul_i32 s57, s%d, %d' % (S_CG, 28 * 8192))
    g('s_add_u32 s57, s57, %d' % WS_Y2)
    g('v_lshlrev_b32 v8, 14, v3')
    g('v_lshl_add_u32 v8, v4, 2, v8')
    g('v_add_u32 v8, s57, v8')
    YE = 112
    for m in range(4):
        for k in range(2):
            pr = 14 * (m >> 1) + 8 * (m & 1) + k
            g('s_mov_b32 s57, %d' % (pr * 8192))
            g('buffer_load_dword v%d, v8, %s, s57 offen sc1' % (YE + 2 * m + k, sr(S_WS, 4)))
    srd(g, S_P, P_OUT, 2048 * 896)
    g('v_cmp_eq_u32 vcc, 3, v3')
    g('v_mov_b32 v9, 0x7ffff000')
    g('v_cndmask_b32 v9, v6, v9, vcc')
    g('v_sub_f32 v15, 1.0, v14') if False else None
    g('s_waitcnt vmcnt(0)')
    g('v_sub_f32 v15, 1.0, v14')
    for m in range(4):
        U = 64 + 16 * 0
        for k in range(2):
            g('v_lshlrev_b32 v%d, 16, v%d' % (U + 2 * k, XE + 2 * m + k))
            g('v_and_b32 v%d, 0xffff0000, v%d' % (U + 2 * k + 1, XE + 2 * m + k))
            g('v_lshlrev_b32 v%d, 16, v%d' % (U + 4 + 2 * k, DE + 2 * m + k))
            g('v_and_b32 v%d, 0xffff0000, v%d' % (U + 4 + 2 * k + 1, DE + 2 * m + k))
            g('v_lshlrev_b32 v%d, 16, v%d' % (U + 8 + 2 * k, YE + 2 * m + k))
            g('v_and_b32 v%d, 0xffff0000, v%d' % (U + 8 + 2 * k + 1, YE + 2 * m + k))
        for i in range(4):
            g('v_fma_f32 v%d, v%d, v%d, v%d' % (U + 8 + i, U + i, U + 4 + i, U + 8 + i))
            g('v_mul_f32 v%d, v15, v%d' % (U + 8 + i, U + 8 + i))
            g('v_fma_f32 v%d, v14, v%d, v%d' % (U + 8 + i, DA + 4 * m + i, U + 8 + i))
        g('v_cvt_pk_bf16_f32 v%d, v%d, v%d' % (80 + 2 * m, U + 8, U + 9))
        g('v_cvt_pk_bf16_f32 v%d, v%d, v%d' % (80 + 2 * m + 1, U + 10, U + 11))
        mo = 56 * (m >> 1) + 32 * (m & 1)
        g('buffer_store_dwordx2 %s, v%d, %s, 0 offen offset:%d' % (vr(80 + 2 * m, 2), 9 if (m & 1) else 6, sr(S_P, 4), mo))
    g('s_endpgm')
```

```python
from common import *
import struct
def f2u(x): return struct.unpack('<I', struct.pack('<f', x))[0]
LOG2E = 1.4426950408889634
L_HI = struct.unpack('<f', struct.pack('<f', LOG2E))[0]
L_LO = LOG2E - L_HI
STG = 8448
ROWS = 528
XC = 33792
CS = 5056
RB = 2688
S_LDS = XC + 8 * CS

def gen_S(g, dbg=False):
    g.label('L_S')
    g.c('---- S type: v0 tid, v1 lane, s14 wave')
    g('s_mul_hi_u32 s50, s2, 0x24924925')
    g('s_mul_i32 s51, s50, 7')
    g('s_sub_u32 s51, s2, s51')
    g('s_mul_i32 s52, s50, 57344')
    g('s_lshl_b32 s53, s51, 7')
    g('s_add_u32 s52, s52, s53')
    g('s_add_u32 s54, s%d, s52' % P_X)
    g('s_addc_u32 s55, s%d, 0' % (P_X + 1))
    g('v_lshrrev_b32 v2, 2, v0')
    g('v_and_b32 v3, 3, v0')
    g('v_mul_u32_u24 v4, 896, v2')
    g('v_lshl_add_u32 v4, v3, 5, v4')
    g('global_load_dwordx4 v[16:19], v4, s[54:55]')
    g('global_load_dwordx4 v[20:23], v4, s[54:55] offset:16')
    g('s_lshl_b32 s57, s2, 10')
    g('v_lshlrev_b32 v5, 2, v0')
    g('v_add_u32 v5, s57, v5')
    for i, p in enumerate((P_ARE, P_AIM, P_BRE, P_BIM, P_CRE, P_CIM)):
        g('global_load_dword v%d, v5, %s' % (32 + i, sr(p, 2)))
    g('s_lshl_b32 s57, s2, 2')
    g('s_load_dword s56, %s, s57' % sr(P_LDT, 2))
    Ln = g.newlabel('L_nn')
    g('s_or_b32 s58, s2, s14')
    g('s_cmp_lg_u32 s58, 0')
    g('s_cbranch_scc1 %s' % Ln)
    g('s_memrealtime s[60:61]')
    g('s_waitcnt lgkmcnt(0)')
    g('s_or_b32 s60, s60, 1')
    g('v_mov_b32 v6, s60')
    g('v_mov_b32 v7, s61')
    g('v_mov_b32 v8, 0')
    g('global_store_dwordx2 v8, v[6:7], %s sc1' % sr(P_DBG, 2))
    g.label(Ln)
    g('v_mul_u32_u24 v6, 144, v2')
    g('v_lshl_add_u32 v6, v3, 5, v6')
    g('v_add_u32 v6, %d, v6' % XC)
    g('v_lshrrev_b32 v2, 4, v1')
    g('v_and_b32 v3, 15, v1')
    g('v_lshrrev_b32 v7, 2, v3')
    g('v_lshl_add_u32 v7, v2, 3, v7')
    g('v_mul_u32_u24 v7, 144, v7')
    g('v_and_b32 v8, 3, v1')
    g('v_lshl_add_u32 v7, v8, 3, v7')
    g('s_lshl_b32 s58, s14, 5')
    g('s_add_u32 s58, s58, %d' % XC)
    g('v_add_u32 v7, s58, v7')
    g('s_lshl_b32 s58, s51, 6')
    g('s_lshl_b32 s59, s14, 4')
    g('s_add_u32 s58, s58, s59')
    g('v_add_u32 v8, s58, v3')
    g('s_movk_i32 s59, %d' % XT_ROW)
    g('v_mul_lo_u32 v8, v8, s59')
    g('s_lshl_b32 s58, s50, 7')
    g('s_add_u32 s58, s58, %d' % (WS_XT + 16))
    g('v_lshl_add_u32 v9, v2, 4, v8')
    g('v_add_u32 v9, s58, v9')
    EA = 244
    g('v_lshlrev_b32 v10, 3, v0')
    for i in range(8):
        g('v_add_u32 v%d, %d, v10' % (110 + i, 7 - i))
    for i in range(8):
        g('v_cvt_f32_u32 v%d, v%d' % (EA + i, 110 + i))
    for i in range(0, 8, 2):
        g('v_cvt_pk_bf16_f32 v%d, v%d, v%d' % (120 + i // 2, EA + i, EA + i + 1))
    g('v_cmp_gt_u32 vcc, 32, v0')
    for i in range(8):
        src = 120 + i // 2
        if i % 2 == 0:
            g('v_and_b32 v%d, 0xffff, v%d' % (EA + i, src))
        else:
            g('v_lshrrev_b32 v%d, 16, v%d' % (EA + i, src))
        g('v_subrev_u32 v%d, 17024, v%d' % (EA + i, EA + i))
        g('v_cndmask_b32 v%d, v%d, v%d, vcc' % (EA + i, EA + i, 110 + i))
        g('v_lshlrev_b32 v%d, 2, v%d' % (EA + i, EA + i))
    g('s_waitcnt vmcnt(6)')
    g('ds_write_b128 v6, v[16:19]')
    g('ds_write_b128 v6, v[20:23] offset:16')
    g('s_waitcnt lgkmcnt(0)')
    g('s_barrier')
    for m in range(2):
        for a in range(2):
            g('ds_read_b64_tr_b16 %s, v7 offset:%d' % (vr(24 + 4 * m + 2 * a, 2), (32 * m + 4 * a) * 144))
    g('s_waitcnt lgkmcnt(0)')
    g('buffer_store_dwordx4 v[24:27], v9, %s, 0 offen sc1' % sr(S_WS, 4))
    g('buffer_store_dwordx4 v[28:31], v9, %s, 0 offen offset:64 sc1' % sr(S_WS, 4))
    Lz = g.newlabel('L_nz')
    g('s_cmp_lg_u32 s50, 0')
    g('s_cbranch_scc1 %s' % Lz)
    for i in range(4):
        g('v_mov_b32 v%d, 0' % (12 + i))
    g('s_mov_b64 exec, 0xffff')
    g('buffer_store_dwordx4 v[12:15], v8, %s, 0 offen sc1' % sr(S_WS, 4))
    g('s_mov_b64 exec, -1')
    g.label(Lz)
    g('v_mov_b32 v10, 0')
    get_nonce(g, 16, 10, 58)
    g('s_lshl_b32 s58, s51, 2')
    g('s_add_u32 s58, s58, s14')
    g('s_lshl_b32 s58, s58, 5')
    g('s_add_u32 s58, s58, s50')
    g('s_lshl_b32 s58, s58, 3')
    g('s_add_u32 s58, s58, %d' % WS_FX)
    g('v_mov_b32 v11, s58')
    set_flag(g, 11, 16)
    g.c('K-gen')
    g('s_waitcnt lgkmcnt(0)')
    g('s_lshl_b32 s58, s56, 16')
    g('s_and_b32 s59, s56, 0xffff0000')
    g('s_cmp_ge_u32 s14, 2')
    g('s_cselect_b32 s58, s59, s58')
    DT = 38
    g('v_mov_b32 v40, s58')
    g('v_mul_f32 v41, 0x%x, v40' % f2u(L_HI))
    g('s_mov_b32 s59, 0x%x' % f2u(L_HI))
    g('v_fma_f32 v42, v40, s59, -v41')
    g('v_mul_f32 v43, 0x%x, v40' % f2u(L_LO))
    g('v_add_f32 v42, v42, v43')
    g('v_exp_f32 v41, v41')
    g('v_mul_f32 v42, 0x%x, v42' % f2u(0.6931471805599453))
    g('v_fma_f32 v41, v41, v42, v41')
    g('v_cvt_pk_bf16_f32 v41, v41, v41')
    g('v_lshlrev_b32 v%d, 16, v41' % DT)
    base = {0: 40, 1: 70}
    R = {}
    for m in (0, 1):
        b = base[m]
        R[m] = dict(ar=b, ai=b + 1, B=b + 2, C=b + 4, c=b + 6, t0=b + 8, t1=b + 9, t2=b + 10, t3=b + 11,
                    E1=b + 12, E2=b + 14, E3=b + 16, E4=b + 18, E5=b + 20, E6=b + 22, E7=b + 24, E8=b + 26, L0=b + 28)
    pb = {0: 100, 1: 118}
    for m in (0, 1):
        b = pb[m]
        for i, k in enumerate((128, 256, 384, 512, 640, 768, 896, 1024, 2048)):
            R[m]['E%d' % k] = b + 2 * i
    tmp = {0: [136, 138, 140, 142], 1: [144, 146, 148, 150]}
    pk = [152, 154, 156, 158]; pkc = [0]
    BL = 160; AF = 192; D = [232, 236, 240]
    def unpack(dst, src, m):
        if m == 0: g('v_lshlrev_b32 v%d, 16, v%d' % (dst, src))
        else: g('v_and_b32 v%d, 0xffff0000, v%d' % (dst, src))
    for m in (0, 1):
        r = R[m]
        unpack(r['ar'], 32, m); unpack(r['ai'], 33, m)
        unpack(r['B'], 34, m); unpack(r['B'] + 1, 35, m)
        unpack(r['C'], 36, m); unpack(r['C'] + 1, 37, m)
    for m in (0, 1):
        r = R[m]
        g('v_mul_f32 v%d, v%d, v%d' % (r['ar'], r['ar'], DT))
        g('v_mul_f32 v%d, v%d, v%d' % (r['ai'], r['ai'], DT))
        g('v_mul_f32 v%d, v%d, v%d' % (r['B'], r['B'], DT))
        g('v_mul_f32 v%d, v%d, v%d' % (r['B'] + 1, r['B'] + 1, DT))
    for m in (0, 1):
        r = R[m]
        g('v_mul_f32 v%d, 0x%x, v%d' % (r['ar'], f2u(L_HI), r['ar']))
        g('v_mul_f32 v%d, 0x%x, v%d' % (r['ai'], f2u(0.15915494309189535), r['ai']))
        cmul(g, r['c'], r['C'], r['B'])
    for m in (0, 1):
        cmul2(g, R[m]['c'], R[m]['C'], R[m]['B'])
    def direct(name, k):
        for m in (0, 1):
            r = R[m]
            g('v_mul_f32 v%d, 0x%x, v%d' % (r['t0'], f2u(float(k)), r['ar']))
            g('v_mul_f32 v%d, 0x%x, v%d' % (r['t1'], f2u(float(k)), r['ai']))
        for m in (0, 1):
            r = R[m]
            g('v_exp_f32 v%d, v%d' % (r['t0'], r['t0']))
            g('v_fract_f32 v%d, v%d' % (r['t1'], r['t1']))
        for m in (0, 1):
            r = R[m]
            g('v_cos_f32 v%d, v%d' % (r['t2'], r['t1']))
            g('v_sin_f32 v%d, v%d' % (r['t3'], r['t1']))
        for m in (0, 1):
            r = R[m]
            g('v_pk_mul_f32 %s, %s, %s op_sel_hi:[1,0]' % (vr(r[name], 2), vr(r['t2'], 2), vr(r['t0'], 2)))
    direct('E8', 8); direct('E1', 1); direct('E128', 128)
    g('s_mul_i32 s62, s14, %d' % STG)
    g('v_lshlrev_b32 v12, 3, v1')
    g('v_add_u32 v12, s62, v12')
    g('v_mul_u32_u24 v13, %d, v3' % ROWS)
    g('v_and_b32 v14, 1, v2')
    g('v_lshl_add_u32 v13, v14, 8, v13')
    g('v_lshrrev_b32 v14, 1, v2')
    g('v_lshl_add_u32 v13, v14, 7, v13')
    g('v_add_u32 v13, s62, v13')
    def row(idx, regs, conj):
        t = pk[pkc[0] % 4]; pkc[0] += 1
        for m in (0, 1):
            rr = regs[m]
            if rr == 'one':
                g('v_mov_b32 v%d, 0x3f80' % (t + m))
            else:
                g('v_cvt_pk_bf16_f32 v%d, v%d, %sv%d' % (t + m, rr, '-' if conj else '', rr + 1))
        g('ds_write_b64 v12, %s offset:%d' % (vr(t, 2), idx * ROWS))
    tc = [0]
    def prow(idx, an, bn, conj=True):
        k = tc[0] % 4; tc[0] += 1
        for m in (0, 1): cmul(g, tmp[m][k], R[m][an], R[m][bn])
        for m in (0, 1): cmul2(g, tmp[m][k], R[m][an], R[m][bn])
        row(idx, {0: tmp[0][k], 1: tmp[1][k]}, conj)
    def nrow(idx, an, conj=True):
        row(idx, {0: R[0][an], 1: R[1][an]}, conj)
    nrow(0, 'c', False)
    cur = {0: R[0]['c'], 1: R[1]['c']}
    lt = {0: [R[0]['L0'], R[0]['B']], 1: [R[1]['L0'], R[1]['B']]}
    extra = [('E2', 'E1', 'E1'), ('E256', 'E128', 'E128'), ('E3', 'E2', 'E1'), ('E4', 'E2', 'E2'), ('E384', 'E256', 'E128'), ('E512', 'E256', 'E256'),
             ('E5', 'E4', 'E1'), ('E6', 'E4', 'E2'), ('E7', 'E4', 'E3'), ('E640', 'E512', 'E128'), ('E768', 'E512', 'E256'), ('E896', 'E512', 'E384'),
             ('E1024', 'E512', 'E512'), ('E2048', 'E1024', 'E1024')]
    for w in range(1, 16):
        nx = {m: lt[m][w % 2] for m in (0, 1)}
        for m in (0, 1): cmul(g, nx[m], cur[m], R[m]['E8'])
        if w - 1 < len(extra):
            dn, an, bn = extra[w - 1]
            for m in (0, 1): cmul(g, R[m][dn], R[m][an], R[m][bn])
        for m in (0, 1): cmul2(g, nx[m], cur[m], R[m]['E8'])
        if w - 1 < len(extra):
            for m in (0, 1): cmul2(g, R[m][dn], R[m][an], R[m][bn])
        row(w, nx, False)
        cur = nx
    def reads(dst):
        for t in range(8):
            g('ds_read_b128 %s, v13 offset:%d' % (vr(dst + 4 * t, 4), 16 * t))
    def mfmas(ti, waitn):
        g('s_waitcnt lgkmcnt(%d)' % waitn)
        for t in range(8):
            g('v_mfma_f32_16x16x32_bf16 %s, %s, %s, %s' % (vr(D[ti], 4), vr(AF + 4 * t, 4), vr(BL + 4 * t, 4), '0' if t == 0 else vr(D[ti], 4)))
    reads(BL)
    t0rows = [lambda: row(0, {0: 'one', 1: 'one'}, True)] + [(lambda r_=r_: nrow(r_, 'E%d' % r_)) for r_ in range(1, 8)] + \
             [lambda: nrow(8, 'E128')] + [(lambda r_=r_: prow(8 + r_, 'E128', 'E%d' % r_)) for r_ in range(1, 8)]
    t1rows = [lambda: nrow(0, 'E256')] + [(lambda i=i: prow(i, 'E256', 'E%d' % (2 * i))) for i in range(1, 4)] + \
             [lambda: nrow(4, 'E384')] + [(lambda i=i: prow(4 + i, 'E384', 'E%d' % (2 * i))) for i in range(1, 4)]
    for i, k in enumerate((512, 640, 768, 896)):
        t1rows.append(lambda i=i, k=k: nrow(8 + 2 * i, 'E%d' % k))
        t1rows.append(lambda i=i, k=k: prow(9 + 2 * i, 'E%d' % k, 'E4'))
    t2rows = [lambda: nrow(0, 'E1024')] + [(lambda i=i: prow(i, 'E1024', 'E%d' % (128 * i))) for i in range(1, 8)] + [lambda: nrow(8, 'E2048')]
    for f in t0rows: f()
    reads(AF)
    for f in t1rows[:12]: f()
    mfmas(0, 12)
    for f in t1rows[12:]: f()
    reads(AF)
    for f in t2rows: f()
    mfmas(1, 9)
    reads(AF)
    g('v_lshrrev_b32 v14, 1, v2')
    g('v_and_b32 v15, 1, v2')
    g('v_lshlrev_b32 v4, 9, v14')
    g('v_lshl_add_u32 v4, v3, 5, v4')
    g('v_lshl_add_u32 v4, v15, 4, v4')
    g('v_add_u32 v4, s62, v4')
    g('v_lshlrev_b32 v5, 8, v2')
    g('v_add_u32 v5, 1024, v5')
    g('v_add_u32 v5, s62, v5')
    g('v_lshl_add_u32 v6, v3, 4, v5')
    g('v_lshl_add_u32 v7, v3, 3, v5')
    g('v_cmp_gt_u32 vcc, 2, v2')
    g('v_cndmask_b32 v5, v7, v6, vcc')
    g('v_add_u32 v6, 8, v5')
    g('v_add_u32 v7, 128, v5')
    g('v_cndmask_b32 v6, v7, v6, vcc')
    g('v_lshlrev_b32 v7, 8, v2')
    g('v_lshl_add_u32 v7, v3, 2, v7')
    g('v_add_u32 v7, 2048, v7')
    g('v_add_u32 v7, s62, v7')
    mfmas(2, 0)
    g('ds_write_b128 v4, %s' % vr(D[0], 4))
    g('ds_write_b64 v5, %s' % vr(D[1], 2))
    g('ds_write_b64 v6, %s' % vr(D[1] + 2, 2))
    for r_ in range(4):
        g('ds_write_b32 v7, v%d offset:%d' % (D[2] + r_, 64 * r_))
    g.c('poll XT')
    g('s_lshr_b32 s58, s2, 5')
    g('s_bfe_u32 s59, s2, 0x20003')
    g('s_lshl_b32 s58, s58, 2')
    g('s_add_u32 s58, s58, s59')
    g('s_lshl_b32 s58, s58, 8')
    g('s_add_u32 s58, s58, %d' % WS_FX)
    g('v_and_b32 v8, 31, v1')
    g('v_lshlrev_b32 v8, 3, v8')
    g('v_add_u32 v8, s58, v8')
    poll_flags(g, 8, None, 16, 58)
    g('s_mul_i32 s58, s2, %d' % (2 * XT_ROW))
    g('s_add_u32 s58, s58, %d' % (WS_XT + 8))
    g('v_lshlrev_b32 v8, 4, v0')
    g('v_add_u32 v8, s58, v8')
    XR = 40
    for c2 in range(2):
        for k, off in enumerate((8, 4, 0)):
            g('buffer_load_dwordx4 %s, v8, %s, 0 offen offset:%d sc1' % (vr(XR + 12 * c2 + 4 * k, 4), sr(S_WS, 4), off + c2 * XT_ROW if False else off) if c2 == 0 else
              'buffer_load_dwordx4 %s, v9, %s, 0 offen offset:%d sc1' % (vr(XR + 12 * c2 + 4 * k, 4), sr(S_WS, 4), off))
        if c2 == 0:
            g('v_add_u32 v9, %d, v8' % XT_ROW)
    g('s_waitcnt lgkmcnt(0)')
    g('s_barrier')
    g.c('expansion')
    KR = 64
    for ch in range(2):
        for hf in range(2):
            for i in range(8):
                g('ds_read_b32 v%d, v%d offset:%d' % (KR + 16 * ch + 8 * hf + i, EA + i, (2 * ch + hf) * STG))
    g('v_lshlrev_b32 v10, 4, v0')
    g('v_sub_u32 v10, %d, v10' % (RB + 4080))
    for i in range(4):
        g('v_mov_b32 v%d, 0' % (96 + i))
    g('s_mov_b32 s58, 0x%x' % ((1 << 32) // 18 + 1))
    g('v_mul_hi_u32 v11, v0, s58')
    g('v_mul_u32_u24 v12, 18, v11')
    g('v_sub_u32 v12, v0, v12')
    g('v_mul_u32_u24 v11, %d, v11' % CS)
    g('v_lshl_add_u32 v11, v12, 4, v11')
    g('v_lshrrev_b32 v12, 4, v12')
    g('v_lshl_add_u32 v11, v12, 5, v11')
    g('v_add_u32 v11, %d, v11' % XC)
    g('v_subrev_u32 v12, 144, v0')
    g('v_and_b32 v13, 15, v12')
    g('v_lshrrev_b32 v12, 4, v12')
    g('v_mul_u32_u24 v12, %d, v12' % (2 * STG))
    g('v_lshl_add_u32 v12, v13, 4, v12')
    g('v_add_u32 v12, %d, v12' % (RB + 4096))
    g('v_cmp_gt_u32 vcc, 144, v0')
    g('v_cndmask_b32 v11, v12, v11, vcc')
    g('v_cmp_gt_u32 vcc, 176, v0')
    g('s_and_saveexec_b64 s[58:59], vcc')
    Lq = g.newlabel('L_zq')
    g('s_cbranch_execz %s' % Lq)
    g('ds_write_b128 v11, v[96:99]')
    g.label(Lq)
    g('s_mov_b64 exec, s[58:59]')
    g('v_lshlrev_b32 v11, 3, v0')
    g('v_add_u32 v11, 144, v11')
    g('v_lshrrev_b32 v12, 7, v11')
    g('v_lshlrev_b32 v11, 1, v11')
    g('v_lshl_add_u32 v11, v12, 5, v11')
    g('v_add_u32 v11, %d, v11' % XC)
    g('s_waitcnt lgkmcnt(0)')
    for ch in range(2):
        for i in range(8):
            g('v_add_f32 v%d, v%d, v%d' % (KR + 16 * ch + i, KR + 16 * ch + i, KR + 16 * ch + 8 + i))
        for i in range(0, 8, 2):
            g('v_cvt_pk_bf16_f32 v%d, v%d, v%d' % (100 + 4 * ch + i // 2, KR + 16 * ch + i, KR + 16 * ch + i + 1))
        g('ds_write_b128 v10, %s offset:%d' % (vr(100 + 4 * ch, 4), ch * 2 * STG))
    g('s_waitcnt vmcnt(0)')
    for ch in range(2):
        A = XR + 12 * ch; B = A + 4; C = A + 8
        c1 = 108 + 8 * ch; c3 = c1 + 4
        for k in range(4):
            g('v_alignbit_b32 v%d, v%d, v%d, 16' % (c1 + k, A + k, B + k))
            g('v_alignbit_b32 v%d, v%d, v%d, 16' % (c3 + k, B + k, C + k))
        g('ds_write_b128 v11, %s offset:%d' % (vr(A, 4), (4 * ch + 0) * CS))
        g('ds_write_b128 v11, %s offset:%d' % (vr(c1, 4), (4 * ch + 1) * CS))
        g('ds_write_b128 v11, %s offset:%d' % (vr(B, 4), (4 * ch + 2) * CS))
        g('ds_write_b128 v11, %s offset:%d' % (vr(c3, 4), (4 * ch + 3) * CS))
    g.c('conv')
    g('s_lshr_b32 s58, s14, 1')
    g('s_and_b32 s59, s14, 1')
    g('s_mul_i32 s60, s58, %d' % (2 * STG))
    g('s_lshl_b32 s61, s59, 8')
    g('s_sub_u32 s60, s60, s61')
    g('s_add_u32 s60, s60, %d' % (RB + 4272 - 3584))
    g('v_sub_u32 v4, v2, v3')
    g('v_lshlrev_b32 v4, 4, v4')
    g('v_add_u32 v4, s60, v4')
    g('v_lshrrev_b32 v5, 3, v3')
    g('v_lshlrev_b32 v5, 7, v5')
    g('v_lshl_add_u32 v5, v2, 3, v5')
    g('v_and_b32 v6, 4, v3')
    g('v_add_u32 v5, v5, v6')
    g('s_lshl_b32 s61, s59, 7')
    g('s_sub_u32 s61, 236, s61')
    g('v_add_u32 v5, s61, v5')
    g('v_and_b32 v6, 3, v3')
    g('v_sub_u32 v6, 3, v6')
    g('v_mul_u32_u24 v6, %d, v6' % CS)
    g('s_mul_i32 s61, s58, %d' % (4 * CS))
    g('s_add_u32 s61, s61, %d' % XC)
    g('v_add_u32 v6, s61, v6')
    g('s_waitcnt lgkmcnt(0)')
    g('s_barrier')
    ACC = 16; F = 48; GG = 80
    g('s_mov_b32 s58, 0')
    Lc = g.newlabel('L_conv')
    for i in range(32):
        g('v_mov_b32 v%d, 0' % (ACC + i))
    g.label(Lc)
    g('v_lshrrev_b32 v7, 7, v5')
    g('v_lshlrev_b32 v8, 1, v5')
    g('v_lshl_add_u32 v7, v7, 5, v8')
    g('v_add_u32 v7, v6, v7')
    g('v_add_u32 v8, 4, v5')
    g('v_lshrrev_b32 v9, 7, v8')
    g('v_lshlrev_b32 v8, 1, v8')
    g('v_lshl_add_u32 v8, v9, 5, v8')
    g('v_add_u32 v8, v6, v8')
    g('ds_read_b128 %s, v4 offset:%d' % (vr(F, 4), 512 * 7))
    for w in range(8):
        g('ds_read_b64 %s, v7 offset:%d' % (vr(GG + 4 * w, 2), 576 * w))
        g('ds_read_b64 %s, v8 offset:%d' % (vr(GG + 4 * w + 2, 2), 576 * w))
    for v in range(1, 8):
        g('ds_read_b128 %s, v4 offset:%d' % (vr(F + 4 * v, 4), 512 * (7 - v)))
    g('v_subrev_u32 v4, 64, v4')
    g('v_subrev_u32 v5, 32, v5')
    for v in range(8):
        for w in range(8 - v):
            if v == 0:
                done = 1 + 2 * (w + 1)
                g('s_waitcnt lgkmcnt(%d)' % min(15, 24 - done))
            elif w == 0:
                g('s_waitcnt lgkmcnt(%d)' % (7 - v))
            g('v_mfma_f32_16x16x32_bf16 %s, %s, %s, %s' % (vr(ACC + 4 * (v + w), 4), vr(GG + 4 * w, 4), vr(F + 4 * v, 4), vr(ACC + 4 * (v + w), 4)))
    g('s_add_u32 s58, s58, 1')
    g('s_cmp_lt_u32 s58, 4')
    g('s_cbranch_scc1 %s' % Lc)
    g('s_barrier')
    g('v_lshrrev_b32 v14, 1, v2')
    g('v_and_b32 v15, 1, v2')
    g('v_lshlrev_b32 v4, 9, v14')
    g('v_lshl_add_u32 v4, v3, 5, v4')
    g('v_lshl_add_u32 v4, v15, 4, v4')
    g('s_lshl_b32 s58, s14, 13')
    g('s_add_u32 s58, s58, %d' % XC)
    g('v_add_u32 v4, s58, v4')
    for ct in range(8):
        g('ds_write_b128 v4, %s offset:%d' % (vr(ACC + 4 * ct, 4), 1024 * ct))
    g('s_waitcnt lgkmcnt(0)')
    g('s_barrier')
    g('v_lshlrev_b32 v4, 5, v0')
    g('v_add_u32 v4, %d, v4' % XC)
    for a_ in range(4):
        g('ds_read_b128 %s, v4 offset:%d' % (vr(48 + 8 * a_, 4), 8192 * a_))
        g('ds_read_b128 %s, v4 offset:%d' % (vr(52 + 8 * a_, 4), 8192 * a_ + 16))
    g('s_lshl_b32 s58, s2, 13')
    g('s_add_u32 s58, s58, %d' % WS_Y2)
    g('v_lshlrev_b32 v5, 5, v0')
    g('v_add_u32 v5, s58, v5')
    g('s_waitcnt lgkmcnt(0)')
    for i in range(8):
        g('v_add_f32 v%d, v%d, v%d' % (48 + i, 48 + i, 56 + i))
        g('v_add_f32 v%d, v%d, v%d' % (64 + i, 64 + i, 72 + i))
    for i in range(8):
        g('v_cvt_pk_bf16_f32 v%d, v%d, v%d' % (80 + i, 48 + i, 64 + i))
    g('buffer_store_dwordx4 v[80:83], v5, %s, 0 offen sc1' % sr(S_WS, 4))
    g('buffer_store_dwordx4 v[84:87], v5, %s, 0 offen offset:16 sc1' % sr(S_WS, 4))
    g('s_mov_b32 s58, 0x%x' % ((1 << 32) // 28 + 1))
    g('s_mul_hi_u32 s59, s2, s58')
    g('s_mul_i32 s60, s59, 28')
    g('s_sub_u32 s60, s2, s60')
    g('s_lshl_b32 s59, s59, 2')
    g('s_add_u32 s59, s59, s14')
    g('s_lshl_b32 s59, s59, 5')
    g('s_add_u32 s59, s59, s60')
    g('s_lshl_b32 s59, s59, 3')
    g('s_add_u32 s59, s59, %d' % WS_FY)
    g('v_mov_b32 v6, s59')
    g('s_waitcnt vmcnt(0)')
    set_flag(g, 6, 8)
    g('s_endpgm')
```

```python
import sys
sys.path.insert(0, 'g')
from common import *
import gen_s
def build(with_a=True):
    g = G()
    g('s_load_dwordx16 s[16:31], s[0:1], 0')
    g('s_load_dwordx16 s[32:47], s[0:1], 64')
    g('s_load_dwordx2 s[48:49], s[0:1], 128')
    g('v_lshrrev_b32 v1, 6, v0')
    g('s_cmp_ge_u32 s2, %d' % (NS + NA))
    g('s_cbranch_scc1 L_exit')
    g('v_readfirstlane_b32 s14, v1')
    g('v_and_b32 v1, 63, v0')
    g('s_waitcnt lgkmcnt(0)')
    g('s_mov_b32 s4, s48')
    g('s_mov_b32 s5, s49')
    g('s_mov_b32 s6, 0x2000000')
    g('s_mov_b32 s7, 0x00020000')
    g('s_cmp_ge_u32 s2, %d' % NS)
    g('s_cbranch_scc1 L_A')
    gen_s.gen_S(g)
    g.label('L_A')
    if with_a:
        import gen_a
        gen_a.gen_A(g)
    g.label('L_exit')
    g('s_endpgm')
    body = '\n'.join(fix_hazards(g.lines))
    lds = 81920
    hdr = open('gated_mix__linear_kernel_hedgehog__ssm_conv_s4__prompt.s.ref').read().split('\n')
    com = [l for l in hdr if l.startswith(';') and '@launch' not in l]
    out = '\n'.join(com) + '\n; @launch grid=(%d,1,1) block=(256,1,1) lds=%d\n' % (NS + NA, lds)
    out += '''.amdgcn_target "amdgcn-amd-amdhsa--gfx950"
.text
.globl %s
.p2align 8
.type %s,@function
%s:
%s
.section .rodata,"a"
.p2align 6
.amdhsa_kernel %s
  .amdhsa_next_free_vgpr 256
  .amdhsa_next_free_sgpr 102
  .amdhsa_accum_offset 256
  .amdhsa_group_segment_fixed_size 0
  .amdhsa_kernarg_size 136
  .amdhsa_user_sgpr_count 2
  .amdhsa_user_sgpr_kernarg_segment_ptr 1
  .amdhsa_system_sgpr_workgroup_id_x 1
.end_amdhsa_kernel
''' % (KNAME, KNAME, KNAME, body, KNAME)
    return out
if __name__ == '__main__':
    with_a = '--noa' not in sys.argv
    out = build(with_a)
    fn = [a for a in sys.argv[1:] if not a.startswith('--')][0]
    open(fn, 'w').write(out)
    print('lines', out.count('\n'))
```

```python
import re

REG_RE = re.compile(r'(?<![\w.])([vsa])\[(\d+):(\d+)\]|(?<![\w.\[:])([vsa])(\d+)(?![\w\]:])|\b(vcc_lo|vcc_hi|vcc|exec_hi|exec_lo|exec|m0|scc)\b')

def regs_in(op):
    out = []
    for m in REG_RE.finditer(op):
        if m.group(1):
            f = m.group(1)
            out += [(f, i) for i in range(int(m.group(2)), int(m.group(3)) + 1)]
        elif m.group(4):
            out.append((m.group(4), int(m.group(5))))
        else:
            n = m.group(6)
            if n == 'vcc_lo':
                out.append(('s', 106))
            elif n == 'vcc_hi':
                out.append(('s', 107))
            elif n == 'vcc':
                out += [('s', 106), ('s', 107)]
            elif n == 'exec_hi':
                out.append(('s', 127))
            elif n == 'exec_lo':
                out.append(('s', 126))
            elif n == 'exec':
                out += [('s', 126), ('s', 127)]
            elif n == 'm0':
                out.append(('s', 124))
    return out

def split_ops(s):
    ops = []; depth = 0; cur = ''
    for ch in s:
        if ch in '[(':
            depth += 1
        if ch in '])':
            depth -= 1
        if ch == ',' and depth == 0:
            ops.append(cur.strip()); cur = ''
        else:
            cur += ch
    if cur.strip():
        ops.append(cur.strip())
    return ops

TRANS = ('v_exp_f32', 'v_log_f32', 'v_rcp_f32', 'v_rsq_f32', 'v_sqrt_f32', 'v_sin_f32', 'v_cos_f32')

class Ins:
    def __init__(self, text):
        self.text = text
        t = text.split(';')[0].strip()
        self.is_label = t.endswith(':')
        self.empty = (t == '' or t.startswith('.'))
        self.mn = ''
        self.reads = set(); self.writes = set()
        self.kind = 'none'
        self.states = 0
        if self.is_label or self.empty:
            return
        parts = t.split(None, 1)
        mn = parts[0]; self.mn = mn
        rest = parts[1] if len(parts) > 1 else ''
        ops = split_ops(rest)
        oregs = []
        for i, o in enumerate(ops):
            oo = o.split()[0] if o.split() else o
            oregs.append(regs_in(oo))
        self.ops = ops
        self.states = 1
        if mn == 's_nop':
            self.states = int(ops[0], 0) + 1; self.kind = 'nop'; return
        allr = [r for o in oregs for r in o]
        if mn.startswith('v_mfma'):
            self.kind = 'mfma'
            self.passes = 8 if '32x32x16' in mn or '32x32x8' in mn else 4
            self.writes = set(oregs[0]); self.srcA = set(oregs[1]); self.srcB = set(oregs[2])
            self.srcC = set(oregs[3]) if len(oregs) > 3 else set()
            self.reads = self.srcA | self.srcB | self.srcC
        elif mn.startswith('v_'):
            self.kind = 'valu'
            self.trans = mn.replace('_e32', '').replace('_e64', '') in TRANS
            if mn.startswith('v_cmp'):
                self.writes = set(oregs[0]); self.reads = set(r for o in oregs[1:] for r in o)
            elif mn.startswith(('v_add_co', 'v_sub_co', 'v_addc_co', 'v_subb_co', 'v_subrev_co')):
                self.writes = set(oregs[0]) | set(oregs[1]); self.reads = set(r for o in oregs[2:] for r in o)
            elif mn.startswith('v_permlane32_swap') or mn.startswith('v_permlane16_swap'):
                self.writes = set(oregs[0]) | set(oregs[1]); self.reads = set(self.writes); self.perm = True
            elif mn.startswith(('v_fmac', 'v_dot2c', 'v_pk_fmac')):
                self.writes = set(oregs[0]); self.reads = set(allr)
            else:
                self.writes = set(oregs[0]); self.reads = set(r for o in oregs[1:] for r in o)
            self.dpp = 'dpp' in mn or 'row_' in t or 'quad_perm' in t
        elif mn.startswith('ds_'):
            self.kind = 'mem'
            if mn.startswith('ds_read') or mn.startswith(('ds_bpermute', 'ds_permute', 'ds_swizzle')):
                self.writes = set(oregs[0]); self.reads = set(r for o in oregs[1:] for r in o)
                if 'd16' in mn: self.reads |= self.writes
            else:
                self.reads = set(allr)
        elif mn.startswith(('buffer_', 'global_')):
            self.kind = 'mem'
            islds = ' lds' in t or '_lds_' in mn
            if ('load' in mn) and not islds:
                self.writes = set(oregs[0]); self.reads = set(r for o in oregs[1:] for r in o)
                if 'd16' in mn: self.reads |= self.writes
            else:
                self.reads = set(allr)
            self.islds = islds
            self.widestore = ('store_dwordx4' in mn or 'store_dwordx3' in mn)
            if self.widestore:
                self.stdata = set(oregs[0]) if mn.startswith('buffer_') else set(oregs[1])
        elif mn.startswith('s_'):
            self.kind = 'salu'
            nod = ('s_cmp', 's_cbranch', 's_waitcnt', 's_barrier', 's_sleep', 's_setprio', 's_endpgm', 's_branch', 's_bitcmp', 's_setreg')
            if mn.startswith(nod):
                self.reads = set(allr)
            else:
                self.writes = set(oregs[0]) if oregs else set(); self.reads = set(r for o in oregs[1:] for r in o)
        else:
            raise ValueError('unknown instr: ' + text)

def isv(r): return r[0] in 'va'

def need(prev, cur):
    n = 0
    pw = prev.writes
    if prev.kind == 'valu':
        pv = set(r for r in pw if isv(r)); ps = set(r for r in pw if r[0] == 's')
        if cur.kind == 'mfma' and (pv & cur.reads): n = max(n, 2)
        if cur.kind == 'valu':
            if prev.trans and not cur.trans and (pv & (cur.reads | cur.writes)): n = max(n, 1)
            if getattr(cur, 'perm', False) and (pv & cur.reads): n = max(n, 2)
            if cur.mn.startswith(('v_readlane', 'v_readfirstlane')) and (pv & cur.reads): n = max(n, 1)
            if cur.dpp and (pv & cur.reads): n = max(n, 2)
            if ps & cur.reads:
                n = max(n, 4 if cur.mn.startswith(('v_readlane', 'v_writelane')) else 2)
        if cur.kind == 'mem' and (ps & cur.reads): n = max(n, 5)
        if cur.kind == 'salu' and (ps & cur.reads): n = max(n, 2)
        if cur.kind == 'mfma' and (('s', 126) in ps): n = max(n, 4)
    if prev.kind == 'mfma':
        N = {4: 8, 8: 12}[prev.passes]
        Nc = {4: 6, 8: 10}[prev.passes]
        Nw = {4: 3, 8: 7}[prev.passes]
        if cur.kind in ('valu', 'mem') and (pw & (cur.reads | cur.writes)): n = max(n, N)
        if cur.kind == 'mfma':
            if pw & (cur.srcA | cur.srcB): n = max(n, N)
            if pw & cur.srcC:
                if not (pw == cur.srcC and prev.passes == cur.passes): n = max(n, Nc)
            elif pw & cur.writes:
                n = max(n, Nc)
        if cur.kind == 'valu' and (prev.srcC & cur.writes): n = max(n, Nw)
    if prev.kind == 'mem' and getattr(prev, 'widestore', False):
        if cur.kind == 'valu' and (prev.stdata & cur.writes): n = max(n, 2)
        elif cur.kind in ('mem', 'mfma') and (prev.stdata & cur.writes): n = max(n, 1)
    if prev.kind == 'salu' and (('s', 124) in pw):
        if cur.kind == 'mem' and getattr(cur, 'islds', False): n = max(n, 1)
    return n

def missing(hist, cur):
    dist = 0; worst = 0
    for p in reversed(hist):
        if p.states == 0: continue
        r = need(p, cur)
        if r > dist: worst = max(worst, r - dist)
        dist += p.states
        if dist > 24: break
    return worst

def nops(n):
    out = []
    while n > 0:
        k = min(n, 16); out.append(Ins('    s_nop %d' % (k - 1))); n -= k
    return out

def fix_hazards(lines):
    ins = [Ins(l) for l in lines]
    out = []
    for i in ins:
        if i.states:
            m = missing(out, i)
            if m: out += nops(m)
        out.append(i)
    changed = True
    it = 0
    while changed:
        changed = False; it += 1
        assert it < 50
        labels = {i.text.split(':')[0].strip(): k for k, i in enumerate(out) if i.is_label}
        for k, i in enumerate(out):
            if i.mn.startswith(('s_cbranch', 's_branch')):
                tgt = i.ops[0].split()[0]
                if tgt not in labels: continue
                t = labels[tgt]
                hist = out[max(0, k - 30):k + 1]
                h = list(hist); worst = 0
                dist = 0
                for c in out[t:t + 30]:
                    if c.states:
                        m = missing(h, c)
                        worst = max(worst, m)
                        h.append(c); dist += c.states
                        if dist > 24: break
                        if c.mn.startswith(('s_branch', 's_endpgm')): break
                if worst:
                    out[t + 1:t + 1] = nops(worst)
                    changed = True
                    break
    return [i.text for i in out]

class G:
    def __init__(self):
        self.lines = []
        self.uid = 0
    def __call__(self, s):
        for l in s.strip('\n').split('\n'):
            l = l.strip()
            if l:
                self.lines.append(('    ' + l) if not l.endswith(':') else l)
    def label(self, n): self.lines.append(n + ':')
    def newlabel(self, p='L'):
        self.uid += 1; return '%s_%d' % (p, self.uid)
    def c(self, s): self.lines.append('    ; ' + s)

def vr(b, n=1):
    return 'v%d' % b if n == 1 else 'v[%d:%d]' % (b, b + n - 1)
def sr(b, n=1):
    return 's%d' % b if n == 1 else 's[%d:%d]' % (b, b + n - 1)
```

```python
from asmlib import *

KNAME = 'gated_mix__linear_kernel_hedgehog__ssm_conv_s4__prompt_kernel'
WS_XT = 0x000000; XT_ROW = 4128
WS_Y2 = 0x200000
WS_O = 0x400000
WS_KVP = 0x800000
WS_G = 0xA00000
WS_FX = 0xB00000
WS_FY = 0xB02000
WS_FK = 0xB04000
WS_FO = 0xB06000
WS_WO2 = 0x600000
WS_FW = 0xB08000
WS_DBG = 0x1000000
NS = 224; NA = 256
S_WS = 4
S_T = 8
S_NONCE = 12
S_WAVE = 14
P_X, P_WQKV, P_WPHI, P_WO, P_U, P_ARE, P_AIM, P_BRE, P_BIM, P_CRE, P_CIM, P_LDT, P_DSK, P_GW, P_OUT, P_DBG, P_WS = [16 + 2 * i for i in range(17)]

def poll_flags(g, voff, n_lanes_mask_note, vtmp, stmp, limit=200000):
    L = g.newlabel('L_poll'); D = g.newlabel('L_polld')
    g('s_mov_b32 s%d, 0' % stmp)
    g.label(L)
    g('buffer_load_dwordx2 %s, v%d, %s, 0 offen sc0 sc1' % (vr(vtmp, 2), voff, sr(S_WS, 4)))
    g('s_waitcnt vmcnt(0)')
    g('v_cmp_eq_u64 vcc, %s, %s' % (sr(S_NONCE, 2), vr(vtmp, 2)))
    g('s_cmp_eq_u64 vcc, exec')
    g('s_cbranch_scc1 %s' % D)
    g('s_add_u32 s%d, s%d, 1' % (stmp, stmp))
    g('s_cmp_ge_u32 s%d, %d' % (stmp, limit))
    g('s_cbranch_scc1 %s' % D)
    g('s_sleep 1')
    g('s_branch %s' % L)
    g.label(D)

def get_nonce(g, vtmp, vzero, stmp, limit=200000, pre=False, cnt=0):
    L = g.newlabel('L_non'); D = g.newlabel('L_nond'); C = g.newlabel('L_nonc')
    g('s_mov_b32 s%d, 0' % stmp)
    if pre: g('s_branch %s' % C)
    g.label(L)
    g('global_load_dwordx2 %s, v%d, %s sc0 sc1' % (vr(vtmp, 2), vzero, sr(P_DBG, 2)))
    g('s_waitcnt vmcnt(0)')
    g.label(C)
    g('s_waitcnt vmcnt(%d)' % cnt)
    g('v_readfirstlane_b32 s%d, v%d' % (S_NONCE, vtmp))
    g('v_readfirstlane_b32 s%d, v%d' % (S_NONCE + 1, vtmp + 1))
    g('s_cmp_lg_u32 s%d, 0' % S_NONCE)
    g('s_cbranch_scc1 %s' % D)
    g('s_add_u32 s%d, s%d, 1' % (stmp, stmp))
    g('s_cmp_ge_u32 s%d, %d' % (stmp, limit))
    g('s_cbranch_scc1 %s' % D)
    g('s_sleep 1')
    g('s_branch %s' % L)
    g.label(D)

def set_flag(g, voff, vtmp):
    g('v_mov_b32 v%d, s%d' % (vtmp, S_NONCE))
    g('v_mov_b32 v%d, s%d' % (vtmp + 1, S_NONCE + 1))
    g('s_mov_b64 exec, 1')
    g('buffer_store_dwordx2 %s, v%d, %s, 0 offen sc0 sc1' % (vr(vtmp, 2), voff, sr(S_WS, 4)))
    g('s_mov_b64 exec, -1')

def cmul(g, d, a, b):
    g('v_pk_mul_f32 %s, %s, %s op_sel:[0,0] op_sel_hi:[0,1]' % (vr(d, 2), vr(a, 2), vr(b, 2)))
def cmul2(g, d, a, b):
    g('v_pk_fma_f32 %s, %s, %s, %s op_sel:[1,1,0] op_sel_hi:[1,0,1] neg_lo:[1,0,0]' % (vr(d, 2), vr(a, 2), vr(b, 2), vr(d, 2)))

STAMPS = [False]
STSET = ['main']
def stamp(g, i, st='main'):
    if not STAMPS[0] or STSET[0] != st: return
    g('s_memrealtime s[90:91]')
    g('s_waitcnt lgkmcnt(0)')
    g('s_mov_b32 s%d, s90' % (92 + i))
def stamp_flush(g, n=10):
    if not STAMPS[0]: return
    g('s_lshl_b32 s90, s2, 2')
    g('s_add_u32 s90, s90, s14')
    g('s_lshl_b32 s90, s90, 6')
    g('s_add_u32 s90, s90, %d' % WS_DBG)
    g('v_mov_b32 v20, s90')
    g('s_mov_b64 exec, 1')
    for i in range(n):
        g('v_mov_b32 v21, s%d' % (92 + i))
        g('buffer_store_dword v21, v20, %s, 0 offen offset:%d' % (sr(S_WS, 4), 4 * i))
    g('s_mov_b64 exec, -1')
```

```python
from common import *
import os
import struct
def f2u(x): return struct.unpack('<I', struct.pack('<f', x))[0]
L2E = f2u(1.4426950408889634); LN2 = f2u(0.6931471805599453)
WK = 0; WV = 28672; WQ = 57344; WQ6 = 36864; RED = 0; KVX = 32768
XF = 144
S_W = 64
S_P = 68
S_UP = 72
S_L28 = 74
S_F28 = 76
S_TT = 78; S_H = 79; S_L2E = 80; S_LN2 = 81; S_TT64 = 82; S_CG = 83

def srd(g, s, ptr, nbytes):
    g('s_mov_b32 s%d, s%d' % (s, ptr)); g('s_mov_b32 s%d, s%d' % (s + 1, ptr + 1))
    g('s_mov_b32 s%d, %d' % (s + 2, nbytes)); g('s_mov_b32 s%d, 0x00020000' % (s + 3))

def softmax_stats(g, DP, T, want_c):
    MX, MN, SP, SM, A, B, TM, TN = T, T + 1, T + 2, T + 3, T + 4, T + 5, T + 6, T + 7
    EP = T + 8; EM = T + 24
    for i in range(12, 16):
        g('v_cndmask_b32 v%d, v%d, v%d, %s' % (DP + i, DP + i, DP + 11, sr(S_UP, 2)))
    g('v_max3_f32 v%d, v%d, v%d, v%d' % (MX, DP, DP + 1, DP + 2))
    g('v_min3_f32 v%d, v%d, v%d, v%d' % (MN, DP, DP + 1, DP + 2))
    for i in range(3, 15, 2):
        g('v_max3_f32 v%d, v%d, v%d, v%d' % (MX, MX, DP + i, DP + i + 1))
        g('v_min3_f32 v%d, v%d, v%d, v%d' % (MN, MN, DP + i, DP + i + 1))
    g('v_max_f32 v%d, v%d, v%d' % (MX, MX, DP + 15))
    g('v_min_f32 v%d, v%d, v%d' % (MN, MN, DP + 15))
    g('v_mov_b32 v%d, v%d' % (A, MX)); g('v_mov_b32 v%d, v%d' % (B, MX))
    g('v_mov_b32 v%d, v%d' % (TM, MN)); g('v_mov_b32 v%d, v%d' % (TN, MN))
    g('v_permlane32_swap_b32 v%d, v%d' % (A, B))
    g('v_permlane32_swap_b32 v%d, v%d' % (TM, TN))
    g('v_max_f32 v%d, v%d, v%d' % (MX, A, B))
    g('v_min_f32 v%d, v%d, v%d' % (MN, TM, TN))
    g('v_mul_f32 v%d, s%d, v%d' % (TM, S_L2E, MX))
    g('v_mul_f32 v%d, s%d, v%d' % (TN, S_L2E, MN))
    for i in range(16):
        g('v_fma_f32 v%d, v%d, s%d, -v%d' % (EP + i, DP + i, S_L2E, TM))
        g('v_fma_f32 v%d, -v%d, s%d, v%d' % (EM + i, DP + i, S_L2E, TN))
    for i in range(16):
        g('v_exp_f32 v%d, v%d' % (EP + i, EP + i))
        g('v_exp_f32 v%d, v%d' % (EM + i, EM + i))
    for i in range(12, 16):
        g('v_cndmask_b32 v%d, v%d, 0, %s' % (EP + i, EP + i, sr(S_UP, 2)))
        g('v_cndmask_b32 v%d, v%d, 0, %s' % (EM + i, EM + i, sr(S_UP, 2)))
    g('v_add_f32 v%d, v%d, v%d' % (SP, EP, EP + 1)); g('v_add_f32 v%d, v%d, v%d' % (SM, EM, EM + 1))
    g('v_add_f32 v%d, v%d, v%d' % (A, EP + 2, EP + 3)); g('v_add_f32 v%d, v%d, v%d' % (B, EM + 2, EM + 3))
    for i in range(4, 16, 2):
        g('v_add_f32 v%d, v%d, v%d' % (SP, SP, EP + i)); g('v_add_f32 v%d, v%d, v%d' % (SM, SM, EM + i))
        g('v_add_f32 v%d, v%d, v%d' % (A, A, EP + i + 1)); g('v_add_f32 v%d, v%d, v%d' % (B, B, EM + i + 1))
    g('v_add_f32 v%d, v%d, v%d' % (SP, SP, A)); g('v_add_f32 v%d, v%d, v%d' % (SM, SM, B))
    g('v_mov_b32 v%d, v%d' % (A, SP)); g('v_mov_b32 v%d, v%d' % (B, SP))
    g('v_mov_b32 v%d, v%d' % (TM, SM)); g('v_mov_b32 v%d, v%d' % (TN, SM))
    g('v_permlane32_swap_b32 v%d, v%d' % (A, B))
    g('v_permlane32_swap_b32 v%d, v%d' % (TM, TN))
    g('v_add_f32 v%d, v%d, v%d' % (SP, A, B))
    g('v_add_f32 v%d, v%d, v%d' % (SM, TM, TN))
    return MX, MN, SP, SM, EP, EM

def gen_A(g, stage=99):
    g.c('---- A type')
    g('s_setprio 1')
    g('s_sub_u32 s50, s2, %d' % NS)
    g('s_and_b32 s51, s50, 7')
    g('s_lshr_b32 s52, s50, 3')
    g('s_and_b32 s53, s51, 3')
    g('s_lshl_b32 s53, s53, 2')
    g('s_and_b32 s54, s52, 3')
    g('s_add_u32 s%d, s53, s54' % S_TT)
    g('s_lshr_b32 s53, s51, 2')
    g('s_lshl_b32 s53, s53, 3')
    g('s_lshr_b32 s54, s52, 2')
    g('s_add_u32 s%d, s53, s54' % S_H)
    g('s_and_b32 s%d, s52, 7' % S_CG)
    g('s_lshl_b32 s53, s51, 2')
    g('s_lshr_b32 s54, s52, 3')
    g('s_add_u32 s%d, s53, s54' % S_TT64)
    srd(g, S_W, P_WQKV, 448 * 2688)
    g('v_and_b32 v2, 31, v1')
    g('v_lshrrev_b32 v3, 5, v1')
    g('s_lshl_b32 s53, s%d, 7' % S_TT)
    g('s_lshl_b32 s54, s14, 5')
    g('s_add_u32 s53, s53, s54')
    g('v_and_b32 v4, 3, v1')
    g('v_bfe_u32 v5, v1, 2, 3')
    g('v_lshl_add_u32 v9, v4, 3, v5')
    g('v_add_u32 v5, s53, v5')
    g('v_mul_u32_u24 v5, 896, v5')
    g('v_lshl_add_u32 v5, v3, 6, v5')
    g('v_lshl_add_u32 v5, v4, 4, v5')
    g('v_add_u32 v4, s53, v9')
    g('v_add_u32 v140, %d, v5' % (8 * 896))
    g('v_add_u32 v141, %d, v5' % (16 * 896))
    g('v_add_u32 v142, %d, v5' % (24 * 896))
    g('v_lshrrev_b32 v6, 2, v1')
    g('v_and_b32 v7, 3, v1')
    g('v_mul_u32_u24 v8, 2688, v6')
    g('v_lshl_add_u32 v8, v7, 4, v8')
    g('s_mul_i32 s53, s%d, 56' % S_H)
    g('v_add_u32 v8, s53, v8')
    g('s_mul_i32 s55, s14, %d' % (16 * 2688))
    g('s_lshl_b32 s56, s14, 10')
    W0 = 64; W1 = 68
    XO = (5, 140, 141, 142)
    def issue_w(c):
        g('s_add_u32 s57, s55, %d' % (c * 64 * 2688 + 896))
        g('s_add_u32 m0, s56, %d' % (WK + c * 4096))
        g('s_add_u32 s58, s55, %d' % (c * 64 * 2688 + 1792))
        g('buffer_load_dwordx4 v8, %s, s57 offen lds' % sr(S_W, 4))
        g('s_add_u32 m0, s56, %d' % (WV + c * 4096))
        g('s_nop 0')
        g('buffer_load_dwordx4 v8, %s, s58 offen lds' % sr(S_W, 4))
    def issue_chunk(c):
        for i in range(4):
            g('global_load_dwordx4 %s, v%d, %s offset:%d' % (vr(XF + 16 * c + 4 * i, 4), XO[i], sr(P_X, 2), 128 * c))
    def issue_wq(c):
        g('s_add_u32 s57, s55, %d' % (c * 64 * 2688))
        g('s_add_u32 m0, s56, %d' % ((WQ + c * 4096) if c < 6 else WQ6))
        g('s_nop 0')
        g('buffer_load_dwordx4 v8, %s, s57 offen lds' % sr(S_W, 4))
    PD = int(os.environ.get('PD', '3'))
    for c in range(PD):
        issue_chunk(c); issue_w(c)
    def small_loads():
        srd(g, S_P, P_WPHI, 16 * 784 * 2)
        g('s_mul_i32 s53, s%d, 784' % S_H)
        g('v_mul_u32_u24 v9, 112, v3')
        g('v_add_u32 v9, v9, v2')
        g('v_add_u32 v9, s53, v9')
        g('v_lshlrev_b32 v9, 1, v9')
        g('v_cmp_lt_u32 vcc, 27, v2')
        g('s_mov_b64 %s, vcc' % sr(S_F28, 2))
        g('v_mov_b32 v10, 0x7ffff000')
        g('v_cndmask_b32 v9, v9, v10, vcc')
        W0 = 64; W1 = 68
        for tp in range(2):
            for j in range(8):
                d = 16 * tp + 8 * (j >> 2) + (j & 3)
                g('buffer_load_ushort v%d, v9, %s, 0 offen offset:%d' % (48 + 8 * tp + j, sr(S_P, 4), d * 56))
        srd(g, S_P + 16, P_GW, 896)
        g('v_lshrrev_b32 v10, 4, v1')
        g('v_lshlrev_b32 v10, 6, v10')
        g('v_and_b32 v14, 15, v1')
        g('v_add_u32 v10, v10, v14')
        g('s_lshl_b32 s53, s14, 4')
        g('v_add_u32 v10, s53, v10')
        g('v_lshlrev_b32 v143, 1, v10')
        g('buffer_load_ushort v12, v143, %s, 0 offen' % sr(S_P + 16, 4))
        g('buffer_load_ushort v13, v143, %s, 0 offen offset:512' % sr(S_P + 16, 4))
    NPRE = 42 + 16 + 2
    stamp(g, 1, 'p1')
    g('s_mov_b32 s%d, 0' % S_UP); g('s_mov_b32 s%d, -1' % (S_UP + 1))
    g('s_mov_b32 s%d, 0x10000000' % S_L28); g('s_mov_b32 s%d, 0x10000000' % (S_L28 + 1))
    g('s_mov_b32 s%d, 0x%x' % (S_L2E, L2E)); g('s_mov_b32 s%d, 0x%x' % (S_LN2, LN2))
    g('v_lshrrev_b32 v10, 4, v1')
    g('v_bfe_u32 v11, v1, 2, 2')
    g('v_lshl_add_u32 v11, v3, 5, v11')
    g('v_lshlrev_b32 v11, 6, v11')
    g('v_and_b32 v14, 1, v10')
    g('v_lshl_add_u32 v11, v14, 5, v11')
    g('v_lshl_add_u32 v11, v7, 3, v11')
    DK = 16; DV = 32; WF = 96
    def mf(c):
        for tq in range(4):
            t = 4 * c + tq
            g('v_mfma_f32_32x32x16_bf16 %s, %s, %s, %s' % (vr(DK, 16), vr(WF + 8 * tq, 4), vr(XF + 4 * t, 4), '0' if t == 0 else vr(DK, 16)))
            g('v_mfma_f32_32x32x16_bf16 %s, %s, %s, %s' % (vr(DV, 16), vr(XF + 4 * t, 4), vr(WF + 8 * tq + 4, 4), '0' if t == 0 else vr(DV, 16)))
    seq = []
    for c in range(PD): seq += [c] * 6
    WFB = (64, 96)
    TT = 128
    def waitx(c):
        last = max(i for i, x in enumerate(seq) if x == c)
        g('s_waitcnt vmcnt(%d)' % (len(seq) - 1 - last))
    def stA(c):
        R = [XF + 16 * c + 4 * i for i in range(4)]
        o = []
        d1 = 'quad_perm:[1,0,3,2] row_mask:0xf bank_mask:0xf'; d2 = 'quad_perm:[2,3,0,1] row_mask:0xf bank_mask:0xf'
        def setv(m): o.append('s_mov_b32 vcc_lo, 0x%x' % m); o.append('s_mov_b32 vcc_hi, 0x%x' % m)
        setv(0x55555555)
        for d in range(4): o.append('v_cndmask_b32_dpp v%d, v%d, v%d, vcc %s' % (TT + d, R[1] + d, R[0] + d, d1))
        for d in range(4): o.append('v_cndmask_b32_dpp v%d, v%d, v%d, vcc %s' % (TT + 4 + d, R[3] + d, R[2] + d, d1))
        setv(0xaaaaaaaa)
        for d in range(4): o.append('v_cndmask_b32_dpp v%d, v%d, v%d, vcc %s' % (R[1] + d, R[0] + d, R[1] + d, d1))
        for d in range(4): o.append('v_cndmask_b32_dpp v%d, v%d, v%d, vcc %s' % (R[3] + d, R[2] + d, R[3] + d, d1))
        setv(0x33333333)
        for d in range(4): o.append('v_cndmask_b32_dpp v%d, v%d, v%d, vcc %s' % (R[0] + d, TT + 4 + d, TT + d, d2))
        setv(0xcccccccc)
        for d in range(4): o.append('v_cndmask_b32_dpp v%d, v%d, v%d, vcc %s' % (R[2] + d, TT + d, TT + 4 + d, d2))
        for d in range(4): o.append('v_cndmask_b32_dpp v%d, v%d, v%d, vcc %s' % (TT + d, R[1] + d, R[3] + d, d2))
        setv(0x33333333)
        for d in range(4): o.append('v_cndmask_b32_dpp v%d, v%d, v%d, vcc %s' % (R[1] + d, R[3] + d, R[1] + d, d2))
        for d in range(4): o.append('v_mov_b32 v%d, v%d' % (R[3] + d, TT + d))
        return o
    def stB(c):
        out = []
        for tq in range(4):
            t = 4 * c + tq
            for sg, segb in ((0, WK), (1, WV)):
                for a_ in range(2):
                    out.append('ds_read_b64_tr_b16 %s, v11 offset:%d' % (vr(WFB[c & 1] + 8 * tq + 4 * sg + 2 * a_, 2), segb + 4096 * c + 512 * tq + 256 * a_))
        return out
    def stC(c):
        out = []
        W_ = WFB[c & 1]
        for tq in range(4):
            t = 4 * c + tq
            out.append('v_mfma_f32_32x32x16_bf16 %s, %s, %s, %s' % (vr(DK, 16), vr(W_ + 8 * tq, 4), vr(XF + 4 * t, 4), '0' if t == 0 else vr(DK, 16)))
            out.append('v_mfma_f32_32x32x16_bf16 %s, %s, %s, %s' % (vr(DV, 16), vr(XF + 4 * t, 4), vr(W_ + 8 * tq + 4, 4), '0' if t == 0 else vr(DV, 16)))
        return out
    def more(c):
        if c < 7:
            issue_chunk(c); issue_w(c); seq.extend([c] * 6)
        if c == 6:
            small_loads(); seq.extend([99] * 18)
    waitx(0)
    g('s_barrier')
    for l in stB(0): g(l)
    for l in stA(0): g(l)
    if PD == 7:
        small_loads(); seq.extend([99] * 18)
    for c in range(7):
        stamp(g, 2 + c, 'p1')
        ra = []; rb = []
        if c + 1 < 7:
            waitx(c + 1)
            g('s_barrier')
            ra = stA(c + 1); rb = stB(c + 1)
        g('s_waitcnt lgkmcnt(0)')
        na = (len(ra) + 7) // 8
        for i, l in enumerate(stC(c)):
            g(l)
            for r_ in rb[2 * i:2 * i + 2]: g(r_)
            for r_ in ra[na * i:na * i + na]: g(r_)
        if c + PD < 7: more(c + PD)
        if c >= 4:
            issue_wq(2 * (c - 4)); issue_wq(2 * (c - 4) + 1); seq.extend([98] * 2)
    stamp(g, 1)
    stamp(g, 9, 'p1')
    g('s_waitcnt vmcnt(6)')
    g('s_setprio 2')
    g('v_mov_b32 v94, 0')
    g('global_load_dwordx2 v[92:93], v94, %s sc1' % sr(P_DBG, 2))
    W1Z = 72; W1P = 76; W0N = 80; W1N = 84
    g('v_mov_b32 v14, 0x3f803f80')
    g('v_mov_b32 v15, 0x80008000')
    for i in range(8):
        g('v_lshl_or_b32 v%d, v%d, 16, v%d' % (W0 + i, 48 + 2 * i + 1, 48 + 2 * i))
    for i in range(8):
        g('v_cndmask_b32 v%d, v%d, 0, %s' % (W0 + i, W0 + i, sr(S_F28, 2)))
    for i in range(4):
        g('v_xor_b32 v%d, v15, v%d' % (W0N + i, W0 + i))
        g('v_xor_b32 v%d, v15, v%d' % (W1N + i, W1 + i))
    for i in range(2):
        for dst in (W1Z, W1P):
            g('v_mov_b32 v%d, v%d' % (dst + i, W1 + i))
    g('v_cndmask_b32 v%d, v%d, 0, %s' % (W1Z + 2, W1 + 2, sr(S_UP, 2)))
    g('v_cndmask_b32 v%d, v%d, 0, %s' % (W1Z + 3, W1 + 3, sr(S_UP, 2)))
    g('v_cndmask_b32 v%d, v%d, v14, %s' % (W1P + 2, W1 + 2, sr(S_UP, 2)))
    g('v_cndmask_b32 v%d, v%d, 0, %s' % (W1P + 3, W1 + 3, sr(S_UP, 2)))
    g('v_cndmask_b32 v%d, v%d, 0, %s' % (W1N + 2, W1N + 2, sr(S_UP, 2)))
    g('v_cndmask_b32 v%d, v%d, v14, %s' % (W1N + 3, W1N + 3, sr(S_UP, 2)))
    KB = 48; VB = 56; DP = 16; T = 96
    for i in range(8):
        g('v_cvt_pk_bf16_f32 v%d, v%d, v%d' % (KB + i, DK + 2 * i, DK + 2 * i + 1))
    for i in range(8):
        g('v_cvt_pk_bf16_f32 v%d, v%d, v%d' % (VB + i, DV + 2 * i, DV + 2 * i + 1))
    g('v_mfma_f32_32x32x16_bf16 %s, %s, %s, 0' % (vr(DP, 16), vr(W0, 4), vr(KB, 4)))
    g('v_mfma_f32_32x32x16_bf16 %s, %s, %s, %s' % (vr(DP, 16), vr(W1Z, 4), vr(KB + 4, 4), vr(DP, 16)))
    for i in range(8):
        g('v_cndmask_b32 v%d, v%d, v14, %s' % (VB + i, VB + i, sr(S_L28, 2)))
    MX, MN, SP, SM, EP, EM = softmax_stats(g, DP, T, True)
    A_, B_ = T + 4, T + 5
    g('v_log_f32 v%d, v%d' % (SP, SP)); g('v_log_f32 v%d, v%d' % (SM, SM))
    g('v_fma_f32 v%d, -v%d, s%d, -v%d' % (SP, SP, S_LN2, MX))
    g('v_fma_f32 v%d, -v%d, s%d, v%d' % (SM, SM, S_LN2, MN))
    for r_, tmp in ((SP, A_), (SM, B_)):
        g('v_cvt_pk_bf16_f32 v%d, v%d, v%d' % (tmp, r_, r_))
        g('v_lshlrev_b32 v%d, 16, v%d' % (tmp, tmp))
        g('v_sub_f32 v%d, v%d, v%d' % (tmp, r_, tmp))
        g('v_cvt_pk_bf16_f32 v%d, v%d, v%d' % (tmp, r_, tmp))
    g('v_cndmask_b32 v%d, v%d, v%d, %s' % (KB + 6, KB + 6, A_, sr(S_UP, 2)))
    g('v_cndmask_b32 v%d, v%d, v%d, %s' % (KB + 7, KB + 7, B_, sr(S_UP, 2)))
    DPP = 16; DPM = 32
    g('v_mfma_f32_32x32x16_bf16 %s, %s, %s, 0' % (vr(DPP, 16), vr(KB, 4), vr(W0, 4)))
    g('v_mfma_f32_32x32x16_bf16 %s, %s, %s, 0' % (vr(DPM, 16), vr(KB, 4), vr(W0N, 4)))
    g('v_mfma_f32_32x32x16_bf16 %s, %s, %s, %s' % (vr(DPP, 16), vr(KB + 4, 4), vr(W1P, 4), vr(DPP, 16)))
    g('v_mfma_f32_32x32x16_bf16 %s, %s, %s, %s' % (vr(DPM, 16), vr(KB + 4, 4), vr(W1N, 4), vr(DPM, 16)))
    for i in range(16):
        g('v_mul_f32 v%d, s%d, v%d' % (DPP + i, S_L2E, DPP + i))
    for i in range(16):
        g('v_exp_f32 v%d, v%d' % (DPP + i, DPP + i))
        g('v_mul_f32 v%d, s%d, v%d' % (DPM + i, S_L2E, DPM + i))
    for i in range(16):
        g('v_exp_f32 v%d, v%d' % (DPM + i, DPM + i))
    PH = 96
    for i in range(8):
        g('v_cvt_pk_bf16_f32 v%d, v%d, v%d' % (PH + i, DPP + 2 * i, DPP + 2 * i + 1))
    for i in range(8):
        g('v_cvt_pk_bf16_f32 v%d, v%d, v%d' % (PH + 8 + i, DPM + 2 * i, DPM + 2 * i + 1))
    KVP_ = 16; KVM = 32
    g('v_mfma_f32_32x32x16_bf16 %s, %s, %s, 0' % (vr(KVP_, 16), vr(PH, 4), vr(VB, 4)))
    g('v_mfma_f32_32x32x16_bf16 %s, %s, %s, 0' % (vr(KVM, 16), vr(PH + 8, 4), vr(VB, 4)))
    g('v_mfma_f32_32x32x16_bf16 %s, %s, %s, %s' % (vr(KVP_, 16), vr(PH + 4, 4), vr(VB + 4, 4), vr(KVP_, 16)))
    g('v_mfma_f32_32x32x16_bf16 %s, %s, %s, %s' % (vr(KVM, 16), vr(PH + 12, 4), vr(VB + 4, 4), vr(KVM, 16)))
    g('s_barrier')
    g('s_lshl_b32 s57, s14, 13')
    g('s_add_u32 s57, s57, %d' % RED)
    g('v_lshlrev_b32 v14, 4, v1')
    g('v_add_u32 v15, s57, v14')
    for gq in range(8):
        g('ds_write_b128 v15, %s offset:%d' % (vr(16 + 4 * gq, 4), 1024 * gq))
    g('s_waitcnt lgkmcnt(0)')
    g('s_barrier')
    g('s_lshl_b32 s57, s14, 11')
    g('s_add_u32 s57, s57, %d' % RED)
    g('v_add_u32 v15, s57, v14')
    for wv in range(4):
        for k in range(2):
            g('ds_read_b128 %s, v15 offset:%d' % (vr(96 + 8 * wv + 4 * k, 4), 8192 * wv + 1024 * k))
    g('s_lshl_b32 s57, s%d, 4' % S_H)
    g('s_add_u32 s57, s57, s%d' % S_TT)
    g('s_lshl_b32 s57, s57, 2')
    g('s_add_u32 s57, s57, s14')
    g('s_lshl_b32 s57, s57, 10')
    g('s_add_u32 s57, s57, %d' % WS_KVP)
    g('v_add_u32 v15, s57, v14')
    g('s_waitcnt lgkmcnt(0)')
    for i in range(8):
        g('v_add_f32 v%d, v%d, v%d' % (96 + i, 96 + i, 104 + i))
        g('v_add_f32 v%d, v%d, v%d' % (112 + i, 112 + i, 120 + i))
    for i in range(8):
        g('v_add_f32 v%d, v%d, v%d' % (96 + i, 96 + i, 112 + i))
    for i in range(4):
        g('v_cvt_pk_bf16_f32 v%d, v%d, v%d' % (104 + i, 96 + 2 * i, 97 + 2 * i))
    g('buffer_store_dwordx4 v[104:107], v15, %s, 0 offen sc1' % sr(S_WS, 4))
    issue_wq(6)
    get_nonce(g, 92, 94, 57, pre=True, cnt=1)
    g('s_lshl_b32 s57, s%d, 2' % S_H)
    g('s_add_u32 s57, s57, s14')
    g('s_lshl_b32 s57, s57, 4')
    g('s_add_u32 s58, s57, s%d' % S_TT)
    g('s_lshl_b32 s58, s58, 3')
    g('s_add_u32 s58, s58, %d' % WS_FK)
    g('v_mov_b32 v15, s58')
    set_flag(g, 15, 96)
    stamp(g, 2)
    g('s_waitcnt vmcnt(1)')
    g('s_lshl_b32 s%d, s57, 3' % 88)
    g('v_lshlrev_b32 v14, 5, v143')
    g('ds_write_b16 v14, v12 offset:%d' % (WQ + 56))
    g('v_add_u32 v15, %d, v14' % (256 * 64 + WQ + 56))
    g('v_add_u32 v10, %d, v14' % (256 * 64 - 384 * 64 + WQ6 + 56))
    g('v_cmp_gt_u32 vcc, 32, v1')
    g('v_cndmask_b32 v15, v10, v15, vcc')
    g('v_cmp_gt_u32 vcc, 48, v1')
    g('s_and_saveexec_b64 s[58:59], vcc')
    g('ds_write_b16 v15, v13')
    g('s_mov_b64 exec, s[58:59]')
    g('s_waitcnt lgkmcnt(0)')
    g('s_barrier')
    DQ = 16; WF = 88
    g('v_add_u32 v10, %d, v11' % WQ)
    for grp in range(4):
        for tq in range(7):
            t = 7 * grp + tq
            for a in range(2):
                g('ds_read_b64_tr_b16 %s, v%d offset:%d' % (vr(WF + (28 * (grp & 1)) + 4 * tq + 2 * a, 2), 10 if t < 24 else 11, (4096 * (t >> 2) if t < 24 else WQ6) + 512 * (t & 3) + 256 * a))
        if grp > 0:
            pg = grp - 1
            for tq in range(7):
                t = 7 * pg + tq
                if tq == 0: g('s_waitcnt lgkmcnt(14)')
                g('v_mfma_f32_32x32x16_bf16 %s, %s, %s, %s' % (vr(DQ, 16), vr(WF + 28 * (pg & 1) + 4 * tq, 4), vr(XF + 4 * t, 4), '0' if t == 0 else vr(DQ, 16)))
    g('s_waitcnt lgkmcnt(0)')
    for tq in range(7):
        t = 21 + tq
        g('v_mfma_f32_32x32x16_bf16 %s, %s, %s, %s' % (vr(DQ, 16), vr(WF + 28 + 4 * tq, 4), vr(XF + 4 * t, 4), vr(DQ, 16)))
    g('s_barrier')
    QB = 48
    g('v_mov_b32 v14, v%d' % (DQ + 12))
    for i in range(8):
        g('v_cvt_pk_bf16_f32 v%d, v%d, v%d' % (QB + i, DQ + 2 * i, DQ + 2 * i + 1))
    g('v_mfma_f32_32x32x16_bf16 %s, %s, %s, 0' % (vr(DP, 16), vr(W0, 4), vr(QB, 4)))
    g('v_mfma_f32_32x32x16_bf16 %s, %s, %s, %s' % (vr(DP, 16), vr(W1Z, 4), vr(QB + 4, 4), vr(DP, 16)))
    g('v_mul_f32 v14, s%d, v14' % S_L2E)
    g('v_exp_f32 v14, -v14')
    g('v_add_f32 v14, 1.0, v14')
    g('v_rcp_f32 v14, v14')
    Lg = g.newlabel('L_ng')
    g('s_cmp_lg_u32 s%d, 0' % S_H)
    g('s_cbranch_scc1 %s' % Lg)
    g('v_lshlrev_b32 v15, 2, v4')
    g('v_add_u32 v15, %d, v15' % WS_G)
    g('s_mov_b64 exec, %s' % sr(S_UP, 2))
    g('buffer_store_dword v14, v15, %s, 0 offen sc1' % sr(S_WS, 4))
    g('s_mov_b64 exec, -1')
    g.label(Lg)
    MX, MN, SP, SM, EP, EM = softmax_stats(g, DP, T, False)
    g('v_rcp_f32 v%d, v%d' % (SP, SP)); g('v_rcp_f32 v%d, v%d' % (SM, SM))
    for i in range(16):
        g('v_mul_f32 v%d, v%d, v%d' % (EP + i, EP + i, SP))
        g('v_mul_f32 v%d, v%d, v%d' % (EM + i, EM + i, SM))
    PQ = 48
    for i in range(8):
        g('v_cvt_pk_bf16_f32 v%d, v%d, v%d' % (PQ + i, EP + 2 * i, EP + 2 * i + 1))
        g('v_cvt_pk_bf16_f32 v%d, v%d, v%d' % (PQ + 8 + i, EM + 2 * i, EM + 2 * i + 1))
    SEL = 64
    g('v_lshrrev_b32 v8, 3, v2')
    g('v_bfe_u32 v9, v2, 2, 1')
    g('v_and_b32 v10, 3, v2')
    g('v_lshrrev_b32 v12, 1, v10')
    g('v_lshl_add_u32 v12, v8, 1, v12')
    g('v_and_b32 v13, 1, v10')
    g('v_mov_b32 v14, 0x3f80')
    g('v_mov_b32 v15, 0x3f800000')
    g('v_cmp_eq_u32 vcc, 1, v13')
    g('v_cndmask_b32 v13, v14, v15, vcc')
    g('v_cmp_eq_u32 vcc, v9, v3')
    g('v_cndmask_b32 v13, 0, v13, vcc')
    for i in range(4):
        g('v_cmp_eq_u32 vcc, %d, v12' % i)
        g('v_cndmask_b32 v%d, 0, v13, vcc' % (SEL + i))
    stamp(g, 3)
    g('v_and_b32 v8, 15, v1')
    g('v_lshlrev_b32 v8, 3, v8')
    g('s_add_u32 s57, s88, %d' % WS_FK)
    g('v_add_u32 v8, s57, v8')
    poll_flags(g, 8, None, 96, 57)
    stamp(g, 4)
    g('s_lshl_b32 s57, s%d, 6' % S_H)
    g('s_add_u32 s57, s57, s14')
    g('s_lshl_b32 s57, s57, 10')
    g('s_add_u32 s57, s57, %d' % WS_KVP)
    g('v_lshlrev_b32 v9, 4, v1')
    g('v_add_u32 v8, s57, v9')
    PL = 144
    PSC = os.environ.get('PSC', 'sc1')
    for j in range(16):
        g('s_mov_b32 s57, %d' % (j * 4096))
        g('buffer_load_dwordx4 %s, v8, %s, s57 offen %s' % (vr(PL + 4 * j, 4), sr(S_WS, 4), PSC))
    DS_ = 16
    for j in range(16):
        g('s_waitcnt vmcnt(%d)' % (15 - j))
        g('v_mfma_f32_32x32x16_bf16 %s, %s, %s, %s' % (vr(DS_, 16), vr(SEL, 4), vr(PL + 4 * j, 4), '0' if j == 0 else vr(DS_, 16)))
    for i in range(4):
        g('v_cvt_pk_bf16_f32 v%d, v%d, v%d' % (96 + i, DS_ + 2 * i, DS_ + 2 * i + 1))
    g('s_lshl_b32 s57, s14, 10')
    g('s_add_u32 s57, s57, %d' % KVX)
    g('v_add_u32 v8, s57, v9')
    g('ds_write_b128 v8, v[96:99]')
    g('s_waitcnt lgkmcnt(0)')
    g('s_barrier')
    g('v_add_u32 v8, %d, v9' % KVX)
    KF = 100
    for t in range(4):
        g('ds_read_b128 %s, v8 offset:%d' % (vr(KF + 4 * t, 4), 1024 * t))
    DO = 16
    for t in range(4):
        g('s_waitcnt lgkmcnt(%d)' % (3 - t))
        g('v_mfma_f32_32x32x16_bf16 %s, %s, %s, %s' % (vr(DO, 16), vr(KF + 4 * t, 4), vr(PQ + 4 * t, 4), '0' if t == 0 else vr(DO, 16)))
    g('v_mov_b32 v8, v%d' % (DO + 12)); g('v_mov_b32 v9, v%d' % (DO + 12))
    g('v_permlane32_swap_b32 v8, v9')
    g('v_add_f32 v9, 0x%x, v9' % f2u(1e-6))
    g('v_rcp_f32 v9, v9')
    for i in range(16):
        g('v_mul_f32 v%d, v%d, v9' % (DO + i, DO + i))
    for i in range(8):
        g('v_cvt_pk_bf16_f32 v%d, v%d, v%d' % (96 + i, DO + 2 * i, DO + 2 * i + 1))
    g('v_lshrrev_b32 v8, 4, v4')
    g('v_mul_u32_u24 v8, 14336, v8')
    g('v_and_b32 v10, 15, v4')
    g('v_lshl_add_u32 v8, v10, 4, v8')
    g('s_mul_i32 s57, s%d, 7' % S_H)
    g('v_add_u32 v10, s57, v3')
    g('v_lshrrev_b32 v12, 1, v10')
    g('v_lshl_add_u32 v8, v12, 8, v8')
    g('v_and_b32 v10, 1, v10')
    g('v_lshl_add_u32 v8, v10, 3, v8')
    g('v_add_u32 v8, %d, v8' % WS_O)
    for gq in range(3):
        g('buffer_store_dwordx2 %s, v8, %s, 0 offen offset:%d sc1' % (vr(96 + 2 * gq, 2), sr(S_WS, 4), 256 * gq))
    g('s_mov_b32 exec_hi, 0')
    g('buffer_store_dwordx2 %s, v8, %s, 0 offen offset:768 sc1' % (vr(102, 2), sr(S_WS, 4)))
    g('s_mov_b64 exec, -1')
    g('s_lshl_b32 s57, s%d, 2' % S_TT)
    g('s_add_u32 s57, s57, s14')
    g('s_lshl_b32 s57, s57, 4')
    g('s_add_u32 s57, s57, s%d' % S_H)
    g('s_lshl_b32 s57, s57, 3')
    g('s_add_u32 s57, s57, %d' % WS_FO)
    g('v_mov_b32 v15, s57')
    g('s_waitcnt vmcnt(0)')
    set_flag(g, 15, 96)
    stamp(g, 5)
    srd(g, S_P, P_WO, 448 * 896)
    g('v_mul_u32_u24 v9, 896, v6')
    g('v_lshl_add_u32 v9, v7, 4, v9')
    g('s_mul_i32 s53, s%d, 112' % S_CG)
    g('v_add_u32 v9, s53, v9')
    g('s_mul_i32 s55, s14, %d' % (16 * 896))
    for c in range(7):
        for sg in range(2):
            g('s_add_u32 s57, s55, %d' % (c * 64 * 896 + 56 * sg))
            g('s_add_u32 m0, s56, %d' % (28672 * sg + c * 4096))
            g('s_nop 0')
            g('buffer_load_dwordx4 v9, %s, s57 offen lds' % sr(S_P, 4))
    g('v_and_b32 v2, 15, v1')
    g('v_lshrrev_b32 v3, 4, v1')
    g('s_lshl_b32 s57, s%d, 6' % S_TT64)
    g('s_lshl_b32 s58, s14, 4')
    g('s_add_u32 s57, s57, s58')
    g('v_add_u32 v4, s57, v2')
    srd(g, S_P, P_X, 2048 * 896)
    srd(g, S_W, P_DSK, 896)
    g('s_mul_i32 s58, s%d, 112' % S_CG)
    g('v_lshlrev_b32 v5, 3, v3')
    g('v_add_u32 v5, s58, v5')
    g('v_mul_u32_u24 v6, 896, v4')
    g('v_add_u32 v6, v6, v5')
    XE = 96; DE = 104
    for m in range(4):
        mo = 56 * (m >> 1) + 32 * (m & 1)
        g('buffer_load_dwordx2 %s, v6, %s, 0 offen offset:%d' % (vr(XE + 2 * m, 2), sr(S_P, 4), mo))
        g('buffer_load_dwordx2 %s, v5, %s, 0 offen offset:%d' % (vr(DE + 2 * m, 2), sr(S_W, 4), mo))
    g('v_bfe_u32 v7, v1, 2, 2')
    g('v_lshl_add_u32 v7, v3, 3, v7')
    g('v_lshlrev_b32 v7, 6, v7')
    g('v_and_b32 v8, 3, v1')
    g('v_lshl_add_u32 v7, v8, 3, v7')
    g('s_lshr_b32 s57, s%d, 1' % S_TT64)
    g('s_lshl_b32 s57, s57, 2')
    g('s_and_b32 s58, s%d, 1' % S_TT64)
    g('s_lshl_b32 s58, s58, 1')
    g('s_add_u32 s57, s57, s58')
    g('s_lshr_b32 s58, s14, 1')
    g('s_add_u32 s57, s57, s58')
    g('s_lshl_b32 s57, s57, 7')
    g('s_add_u32 s57, s57, %d' % WS_FO)
    g('v_lshlrev_b32 v8, 3, v2')
    g('v_add_u32 v8, s57, v8')
    poll_flags(g, 8, None, 112, 57)
    g('s_barrier')
    stamp(g, 6)
    g('s_lshl_b32 s57, s%d, 2' % S_TT64)
    g('s_add_u32 s57, s57, s14')
    g('s_mul_i32 s57, s57, 14336')
    g('s_add_u32 s57, s57, %d' % WS_O)
    g('v_lshlrev_b32 v8, 4, v1')
    g('v_add_u32 v8, s57, v8')
    OF = 144
    for t in range(14):
        g('buffer_load_dwordx4 %s, v8, %s, s%d offen offset:%d sc1' % (vr(OF + 4 * t, 4), sr(S_WS, 4), 0, 0)) if False else (g('s_movk_i32 s57, %d' % (1024 * t)), g('buffer_load_dwordx4 %s, v8, %s, s57 offen %s' % (vr(OF + 4 * t, 4), sr(S_WS, 4), os.environ.get('PSC', 'sc1'))))
    g('v_lshlrev_b32 v9, 2, v4')
    g('v_add_u32 v9, %d, v9' % WS_G)
    g('buffer_load_dword v14, v9, %s, 0 offen sc1' % sr(S_WS, 4))
    DA = 16
    WFR = 32
    def wreads(t):
        for m in range(4):
            for a in range(2):
                g('ds_read_b64_tr_b16 %s, v7 offset:%d' % (vr(WFR + 16 * (t & 1) + 4 * m + 2 * a, 2), 28672 * (m >> 1) + 2048 * t + 32 * (m & 1) + 256 * a))
    wreads(0)
    for t in range(14):
        if t < 13:
            wreads(t + 1)
            g('s_waitcnt lgkmcnt(8)')
        else:
            g('s_waitcnt lgkmcnt(0)')
        g('s_waitcnt vmcnt(%d)' % (14 - t))
        for m in range(4):
            g('v_mfma_f32_16x16x32_bf16 %s, %s, %s, %s' % (vr(DA + 4 * m, 4), vr(WFR + 16 * (t & 1) + 4 * m, 4), vr(OF + 4 * t, 4), '0' if t == 0 else vr(DA + 4 * m, 4)))
    stamp(g, 7)
    g('s_lshl_b32 s57, s%d, 2' % S_CG)
    g('s_lshr_b32 s58, s%d, 3' % S_TT64)
    g('s_add_u32 s57, s57, s58')
    g('s_lshl_b32 s57, s57, 8')
    g('s_add_u32 s57, s57, %d' % WS_FY)
    g('v_and_b32 v8, 31, v1')
    g('v_min_u32 v8, 27, v8')
    g('v_lshlrev_b32 v8, 3, v8')
    g('v_add_u32 v8, s57, v8')
    poll_flags(g, 8, None, 112, 57)
    stamp(g, 8)
    g('s_mul_i32 s57, s%d, %d' % (S_CG, 28 * 8192))
    g('s_add_u32 s57, s57, %d' % WS_Y2)
    g('v_lshlrev_b32 v8, 14, v3')
    g('v_lshl_add_u32 v8, v4, 2, v8')
    g('v_add_u32 v8, s57, v8')
    YE = 112
    for m in range(4):
        for k in range(2):
            pr = 14 * (m >> 1) + 8 * (m & 1) + k
            g('s_mov_b32 s57, %d' % (pr * 8192))
            g('buffer_load_dword v%d, v8, %s, s57 offen sc1' % (YE + 2 * m + k, sr(S_WS, 4)))
    srd(g, S_P, P_OUT, 2048 * 896)
    g('v_cmp_eq_u32 vcc, 3, v3')
    g('v_mov_b32 v9, 0x7ffff000')
    g('v_cndmask_b32 v9, v6, v9, vcc')
    g('v_sub_f32 v15, 1.0, v14') if False else None
    g('s_waitcnt vmcnt(0)')
    g('v_sub_f32 v15, 1.0, v14')
    for m in range(4):
        U = 64 + 16 * 0
        for k in range(2):
            g('v_lshlrev_b32 v%d, 16, v%d' % (U + 2 * k, XE + 2 * m + k))
            g('v_and_b32 v%d, 0xffff0000, v%d' % (U + 2 * k + 1, XE + 2 * m + k))
            g('v_lshlrev_b32 v%d, 16, v%d' % (U + 4 + 2 * k, DE + 2 * m + k))
            g('v_and_b32 v%d, 0xffff0000, v%d' % (U + 4 + 2 * k + 1, DE + 2 * m + k))
            g('v_lshlrev_b32 v%d, 16, v%d' % (U + 8 + 2 * k, YE + 2 * m + k))
            g('v_and_b32 v%d, 0xffff0000, v%d' % (U + 8 + 2 * k + 1, YE + 2 * m + k))
        for i in range(4):
            g('v_fma_f32 v%d, v%d, v%d, v%d' % (U + 8 + i, U + i, U + 4 + i, U + 8 + i))
            g('v_mul_f32 v%d, v15, v%d' % (U + 8 + i, U + 8 + i))
            g('v_fma_f32 v%d, v14, v%d, v%d' % (U + 8 + i, DA + 4 * m + i, U + 8 + i))
        g('v_cvt_pk_bf16_f32 v%d, v%d, v%d' % (80 + 2 * m, U + 8, U + 9))
        g('v_cvt_pk_bf16_f32 v%d, v%d, v%d' % (80 + 2 * m + 1, U + 10, U + 11))
        mo = 56 * (m >> 1) + 32 * (m & 1)
        g('buffer_store_dwordx2 %s, v%d, %s, 0 offen offset:%d' % (vr(80 + 2 * m, 2), 9 if (m & 1) else 6, sr(S_P, 4), mo))
    stamp(g, 9)
    if STSET[0] == 'hw':
        stamp(g, 9, 'hw')
        g('s_memtime s[90:91]')
        g('s_waitcnt lgkmcnt(0)')
        g('s_mov_b32 s96, s90')
    stamp_flush(g)
    g('s_endpgm')
```

```python
from common import *
import os
import struct
def f2u(x): return struct.unpack('<I', struct.pack('<f', x))[0]
LOG2E = 1.4426950408889634
L_HI = struct.unpack('<f', struct.pack('<f', LOG2E))[0]
L_LO = LOG2E - L_HI
STG = 8448
ROWS = 528
XC = 33792
CS = 5056
RB = 2688
S_LDS = XC + 8 * CS

def gen_S(g, dbg=False):
    g.label('L_S')
    g.c('---- S type: v0 tid, v1 lane, s14 wave')
    g('s_setprio %s' % os.environ.get('SPRIO', '3'))
    g('s_mul_hi_u32 s50, s2, 0x24924925')
    g('s_mul_i32 s51, s50, 7')
    g('s_sub_u32 s51, s2, s51')
    g('s_mul_i32 s52, s50, 57344')
    g('s_lshl_b32 s53, s51, 7')
    g('s_add_u32 s52, s52, s53')
    g('s_add_u32 s54, s%d, s52' % P_X)
    g('s_addc_u32 s55, s%d, 0' % (P_X + 1))
    g('v_lshrrev_b32 v2, 2, v0')
    g('v_and_b32 v3, 3, v0')
    g('v_mul_u32_u24 v4, 896, v2')
    g('v_lshl_add_u32 v4, v3, 5, v4')
    g('global_load_dwordx4 v[16:19], v4, s[54:55]')
    g('global_load_dwordx4 v[20:23], v4, s[54:55] offset:16')
    g('s_lshl_b32 s57, s2, 10')
    g('v_lshlrev_b32 v5, 2, v0')
    g('v_add_u32 v5, s57, v5')
    for i, p in enumerate((P_ARE, P_AIM, P_BRE, P_BIM, P_CRE, P_CIM)):
        g('global_load_dword v%d, v5, %s' % (32 + i, sr(p, 2)))
    g('s_lshl_b32 s57, s2, 2')
    g('s_load_dword s56, %s, s57' % sr(P_LDT, 2))
    g('v_mov_b32 v254, 0')
    g('global_load_dwordx2 v[252:253], v254, %s sc1' % sr(P_DBG, 2))
    g('v_mul_u32_u24 v6, 144, v2')
    g('v_lshl_add_u32 v6, v3, 5, v6')
    g('v_add_u32 v6, %d, v6' % XC)
    g('v_lshrrev_b32 v2, 4, v1')
    g('v_and_b32 v3, 15, v1')
    g('v_lshrrev_b32 v7, 2, v3')
    g('v_lshl_add_u32 v7, v2, 3, v7')
    g('v_mul_u32_u24 v7, 144, v7')
    g('v_and_b32 v8, 3, v1')
    g('v_lshl_add_u32 v7, v8, 3, v7')
    g('s_lshl_b32 s58, s14, 5')
    g('s_add_u32 s58, s58, %d' % XC)
    g('v_add_u32 v7, s58, v7')
    g('s_lshl_b32 s58, s51, 6')
    g('s_lshl_b32 s59, s14, 4')
    g('s_add_u32 s58, s58, s59')
    g('v_add_u32 v8, s58, v3')
    g('s_movk_i32 s59, %d' % XT_ROW)
    g('v_mul_lo_u32 v8, v8, s59')
    g('s_lshl_b32 s58, s50, 7')
    g('s_add_u32 s58, s58, %d' % (WS_XT + 16))
    g('v_lshl_add_u32 v9, v2, 4, v8')
    g('v_add_u32 v9, s58, v9')
    EA = 244
    g('v_lshlrev_b32 v10, 3, v0')
    for i in range(8):
        g('v_add_u32 v%d, %d, v10' % (110 + i, 7 - i))
    for i in range(8):
        g('v_cvt_f32_u32 v%d, v%d' % (EA + i, 110 + i))
    for i in range(0, 8, 2):
        g('v_cvt_pk_bf16_f32 v%d, v%d, v%d' % (120 + i // 2, EA + i, EA + i + 1))
    g('v_cmp_gt_u32 vcc, 32, v0')
    for i in range(8):
        src = 120 + i // 2
        if i % 2 == 0:
            g('v_and_b32 v%d, 0xffff, v%d' % (EA + i, src))
        else:
            g('v_lshrrev_b32 v%d, 16, v%d' % (EA + i, src))
        g('v_subrev_u32 v%d, 17024, v%d' % (EA + i, EA + i))
        g('v_cndmask_b32 v%d, v%d, v%d, vcc' % (EA + i, EA + i, 110 + i))
        g('v_lshlrev_b32 v%d, 2, v%d' % (EA + i, EA + i))
    g('s_waitcnt vmcnt(7)')
    g('ds_write_b128 v6, v[16:19]')
    g('ds_write_b128 v6, v[20:23] offset:16')
    g('s_waitcnt lgkmcnt(0)')
    g('s_barrier')
    for m in range(2):
        for a in range(2):
            g('ds_read_b64_tr_b16 %s, v7 offset:%d' % (vr(24 + 4 * m + 2 * a, 2), (32 * m + 4 * a) * 144))
    g('s_waitcnt vmcnt(1) lgkmcnt(0)')
    g('buffer_store_dwordx4 v[24:27], v9, %s, 0 offen sc1' % sr(S_WS, 4))
    g('buffer_store_dwordx4 v[28:31], v9, %s, 0 offen offset:64 sc1' % sr(S_WS, 4))
    Lz = g.newlabel('L_nz')
    g('s_cmp_lg_u32 s50, 0')
    g('s_cbranch_scc1 %s' % Lz)
    for i in range(4):
        g('v_mov_b32 v%d, 0' % (12 + i))
    g('s_mov_b64 exec, 0xffff')
    g('buffer_store_dwordx4 v[12:15], v8, %s, 0 offen sc1' % sr(S_WS, 4))
    g('s_mov_b64 exec, -1')
    g.label(Lz)
    stamp(g, 1)
    if os.environ.get('SCUT') == '1':
        g('s_endpgm'); return
    def xt_flag():
        if os.environ.get('SCUT') == '3': return
        get_nonce(g, 252, 254, 58, pre=True)
        g('s_lshl_b32 s58, s51, 2')
        g('s_add_u32 s58, s58, s14')
        g('s_lshl_b32 s58, s58, 5')
        g('s_add_u32 s58, s58, s50')
        g('s_lshl_b32 s58, s58, 3')
        g('s_add_u32 s58, s58, %d' % WS_FX)
        g('v_mov_b32 v11, s58')
        set_flag(g, 11, 252)
        g('s_setprio 0')
        stamp(g, 2)
    g.c('K-gen')
    g('s_waitcnt lgkmcnt(0)')
    g('s_lshl_b32 s58, s56, 16')
    g('s_and_b32 s59, s56, 0xffff0000')
    g('s_cmp_ge_u32 s14, 2')
    g('s_cselect_b32 s58, s59, s58')
    DT = 38
    g('v_mov_b32 v40, s58')
    g('v_mul_f32 v41, 0x%x, v40' % f2u(L_HI))
    g('s_mov_b32 s59, 0x%x' % f2u(L_HI))
    g('v_fma_f32 v42, v40, s59, -v41')
    g('v_mul_f32 v43, 0x%x, v40' % f2u(L_LO))
    g('v_add_f32 v42, v42, v43')
    g('v_exp_f32 v41, v41')
    g('v_mul_f32 v42, 0x%x, v42' % f2u(0.6931471805599453))
    g('v_fma_f32 v41, v41, v42, v41')
    g('v_cvt_pk_bf16_f32 v41, v41, v41')
    g('v_lshlrev_b32 v%d, 16, v41' % DT)
    base = {0: 40, 1: 70}
    R = {}
    for m in (0, 1):
        b = base[m]
        R[m] = dict(ar=b, ai=b + 1, B=b + 2, C=b + 4, c=b + 6, t0=b + 8, t1=b + 9, t2=b + 10, t3=b + 11,
                    E1=b + 12, E2=b + 14, E3=b + 16, E4=b + 18, E5=b + 20, E6=b + 22, E7=b + 24, E8=b + 26, L0=b + 28)
    pb = {0: 100, 1: 118}
    for m in (0, 1):
        b = pb[m]
        for i, k in enumerate((128, 256, 384, 512, 640, 768, 896, 1024, 2048)):
            R[m]['E%d' % k] = b + 2 * i
    tmp = {0: [136, 138, 140, 142], 1: [144, 146, 148, 150]}
    pk = [152, 154, 156, 158]; pkc = [0]
    BL = 160; AF = 192; D = [232, 236, 240]
    def unpack(dst, src, m):
        if m == 0: g('v_lshlrev_b32 v%d, 16, v%d' % (dst, src))
        else: g('v_and_b32 v%d, 0xffff0000, v%d' % (dst, src))
    for m in (0, 1):
        r = R[m]
        unpack(r['ar'], 32, m); unpack(r['ai'], 33, m)
        unpack(r['B'], 34, m); unpack(r['B'] + 1, 35, m)
        unpack(r['C'], 36, m); unpack(r['C'] + 1, 37, m)
    for m in (0, 1):
        r = R[m]
        g('v_mul_f32 v%d, v%d, v%d' % (r['ar'], r['ar'], DT))
        g('v_mul_f32 v%d, v%d, v%d' % (r['ai'], r['ai'], DT))
        g('v_mul_f32 v%d, v%d, v%d' % (r['B'], r['B'], DT))
        g('v_mul_f32 v%d, v%d, v%d' % (r['B'] + 1, r['B'] + 1, DT))
    for m in (0, 1):
        r = R[m]
        g('v_mul_f32 v%d, 0x%x, v%d' % (r['ar'], f2u(L_HI), r['ar']))
        g('v_mul_f32 v%d, 0x%x, v%d' % (r['ai'], f2u(0.15915494309189535), r['ai']))
        cmul(g, r['c'], r['C'], r['B'])
    for m in (0, 1):
        cmul2(g, R[m]['c'], R[m]['C'], R[m]['B'])
    def direct(name, k):
        for m in (0, 1):
            r = R[m]
            g('v_mul_f32 v%d, 0x%x, v%d' % (r['t0'], f2u(float(k)), r['ar']))
            g('v_mul_f32 v%d, 0x%x, v%d' % (r['t1'], f2u(float(k)), r['ai']))
        for m in (0, 1):
            r = R[m]
            g('v_exp_f32 v%d, v%d' % (r['t0'], r['t0']))
            g('v_fract_f32 v%d, v%d' % (r['t1'], r['t1']))
        for m in (0, 1):
            r = R[m]
            g('v_cos_f32 v%d, v%d' % (r['t2'], r['t1']))
            g('v_sin_f32 v%d, v%d' % (r['t3'], r['t1']))
        for m in (0, 1):
            r = R[m]
            g('v_pk_mul_f32 %s, %s, %s op_sel_hi:[1,0]' % (vr(r[name], 2), vr(r['t2'], 2), vr(r['t0'], 2)))
    direct('E8', 8); direct('E1', 1); direct('E128', 128)
    g('s_mul_i32 s62, s14, %d' % STG)
    g('v_lshlrev_b32 v12, 3, v1')
    g('v_add_u32 v12, s62, v12')
    g('v_mul_u32_u24 v13, %d, v3' % ROWS)
    g('v_and_b32 v14, 1, v2')
    g('v_lshl_add_u32 v13, v14, 8, v13')
    g('v_lshrrev_b32 v14, 1, v2')
    g('v_lshl_add_u32 v13, v14, 7, v13')
    g('v_add_u32 v13, s62, v13')
    def row(idx, regs, conj):
        t = pk[pkc[0] % 4]; pkc[0] += 1
        for m in (0, 1):
            rr = regs[m]
            if rr == 'one':
                g('v_mov_b32 v%d, 0x3f80' % (t + m))
            else:
                g('v_cvt_pk_bf16_f32 v%d, v%d, %sv%d' % (t + m, rr, '-' if conj else '', rr + 1))
        g('ds_write_b64 v12, %s offset:%d' % (vr(t, 2), idx * ROWS))
    tc = [0]
    def prow(idx, an, bn, conj=True):
        k = tc[0] % 4; tc[0] += 1
        for m in (0, 1): cmul(g, tmp[m][k], R[m][an], R[m][bn])
        for m in (0, 1): cmul2(g, tmp[m][k], R[m][an], R[m][bn])
        row(idx, {0: tmp[0][k], 1: tmp[1][k]}, conj)
    def nrow(idx, an, conj=True):
        row(idx, {0: R[0][an], 1: R[1][an]}, conj)
    nrow(0, 'c', False)
    cur = {0: R[0]['c'], 1: R[1]['c']}
    lt = {0: [R[0]['L0'], R[0]['B']], 1: [R[1]['L0'], R[1]['B']]}
    extra = [('E2', 'E1', 'E1'), ('E256', 'E128', 'E128'), ('E3', 'E2', 'E1'), ('E4', 'E2', 'E2'), ('E384', 'E256', 'E128'), ('E512', 'E256', 'E256'),
             ('E5', 'E4', 'E1'), ('E6', 'E4', 'E2'), ('E7', 'E4', 'E3'), ('E640', 'E512', 'E128'), ('E768', 'E512', 'E256'), ('E896', 'E512', 'E384'),
             ('E1024', 'E512', 'E512'), ('E2048', 'E1024', 'E1024')]
    for w in range(1, 16):
        nx = {m: lt[m][w % 2] for m in (0, 1)}
        for m in (0, 1): cmul(g, nx[m], cur[m], R[m]['E8'])
        if w - 1 < len(extra):
            dn, an, bn = extra[w - 1]
            for m in (0, 1): cmul(g, R[m][dn], R[m][an], R[m][bn])
        for m in (0, 1): cmul2(g, nx[m], cur[m], R[m]['E8'])
        if w - 1 < len(extra):
            for m in (0, 1): cmul2(g, R[m][dn], R[m][an], R[m][bn])
        row(w, nx, False)
        cur = nx
    def reads(dst):
        for t in range(8):
            g('ds_read_b128 %s, v13 offset:%d' % (vr(dst + 4 * t, 4), 16 * t))
    def mfmas(ti, waitn):
        g('s_waitcnt lgkmcnt(%d)' % waitn)
        for t in range(8):
            g('v_mfma_f32_16x16x32_bf16 %s, %s, %s, %s' % (vr(D[ti], 4), vr(AF + 4 * t, 4), vr(BL + 4 * t, 4), '0' if t == 0 else vr(D[ti], 4)))
    reads(BL)
    xt_flag()
    t0rows = [lambda: row(0, {0: 'one', 1: 'one'}, True)] + [(lambda r_=r_: nrow(r_, 'E%d' % r_)) for r_ in range(1, 8)] + \
             [lambda: nrow(8, 'E128')] + [(lambda r_=r_: prow(8 + r_, 'E128', 'E%d' % r_)) for r_ in range(1, 8)]
    t1rows = [lambda: nrow(0, 'E256')] + [(lambda i=i: prow(i, 'E256', 'E%d' % (2 * i))) for i in range(1, 4)] + \
             [lambda: nrow(4, 'E384')] + [(lambda i=i: prow(4 + i, 'E384', 'E%d' % (2 * i))) for i in range(1, 4)]
    for i, k in enumerate((512, 640, 768, 896)):
        t1rows.append(lambda i=i, k=k: nrow(8 + 2 * i, 'E%d' % k))
        t1rows.append(lambda i=i, k=k: prow(9 + 2 * i, 'E%d' % k, 'E4'))
    t2rows = [lambda: nrow(0, 'E1024')] + [(lambda i=i: prow(i, 'E1024', 'E%d' % (128 * i))) for i in range(1, 8)] + [lambda: nrow(8, 'E2048')]
    for f in t0rows: f()
    reads(AF)
    for f in t1rows[:12]: f()
    mfmas(0, 12)
    for f in t1rows[12:]: f()
    reads(AF)
    for f in t2rows: f()
    mfmas(1, 9)
    reads(AF)
    stamp(g, 3)
    if os.environ.get('SCUT') == '3':
        g('s_endpgm'); return
    g.c('poll XT')
    g('s_lshr_b32 s58, s2, 5')
    g('s_bfe_u32 s59, s2, 0x20003')
    g('s_lshl_b32 s58, s58, 2')
    g('s_add_u32 s58, s58, s59')
    g('s_lshl_b32 s58, s58, 8')
    g('s_add_u32 s58, s58, %d' % WS_FX)
    g('v_and_b32 v8, 31, v1')
    g('v_lshlrev_b32 v8, 3, v8')
    g('v_add_u32 v8, s58, v8')
    poll_flags(g, 8, None, 16, 58)
    stamp(g, 4)
    g('s_mul_i32 s58, s2, %d' % (2 * XT_ROW))
    g('s_add_u32 s58, s58, %d' % (WS_XT + 8))
    g('v_lshlrev_b32 v8, 4, v0')
    g('v_add_u32 v8, s58, v8')
    XR = 40
    for c2 in range(2):
        for k, off in enumerate((8, 4, 0)):
            g('buffer_load_dwordx4 %s, v8, %s, 0 offen offset:%d sc1' % (vr(XR + 12 * c2 + 4 * k, 4), sr(S_WS, 4), off + c2 * XT_ROW if False else off) if c2 == 0 else
              'buffer_load_dwordx4 %s, v9, %s, 0 offen offset:%d sc1' % (vr(XR + 12 * c2 + 4 * k, 4), sr(S_WS, 4), off))
        if c2 == 0:
            g('v_add_u32 v9, %d, v8' % XT_ROW)
    g('v_lshrrev_b32 v14, 1, v2')
    g('v_and_b32 v15, 1, v2')
    g('v_lshlrev_b32 v4, 9, v14')
    g('v_lshl_add_u32 v4, v3, 5, v4')
    g('v_lshl_add_u32 v4, v15, 4, v4')
    g('v_add_u32 v4, s62, v4')
    g('v_lshlrev_b32 v5, 8, v2')
    g('v_add_u32 v5, 1024, v5')
    g('v_add_u32 v5, s62, v5')
    g('v_lshl_add_u32 v6, v3, 4, v5')
    g('v_lshl_add_u32 v7, v3, 3, v5')
    g('v_cmp_gt_u32 vcc, 2, v2')
    g('v_cndmask_b32 v5, v7, v6, vcc')
    g('v_add_u32 v6, 8, v5')
    g('v_add_u32 v7, 128, v5')
    g('v_cndmask_b32 v6, v7, v6, vcc')
    g('v_lshlrev_b32 v7, 8, v2')
    g('v_lshl_add_u32 v7, v3, 2, v7')
    g('v_add_u32 v7, 2048, v7')
    g('v_add_u32 v7, s62, v7')
    mfmas(2, 0)
    g('ds_write_b128 v4, %s' % vr(D[0], 4))
    g('ds_write_b64 v5, %s' % vr(D[1], 2))
    g('ds_write_b64 v6, %s' % vr(D[1] + 2, 2))
    for r_ in range(4):
        g('ds_write_b32 v7, v%d offset:%d' % (D[2] + r_, 64 * r_))
    g('s_waitcnt lgkmcnt(0)')
    g('s_barrier')
    g.c('expansion')
    KR = 64
    for ch in range(2):
        for hf in range(2):
            for i in range(8):
                g('ds_read_b32 v%d, v%d offset:%d' % (KR + 16 * ch + 8 * hf + i, EA + i, (2 * ch + hf) * STG))
    g('v_lshlrev_b32 v10, 4, v0')
    g('v_sub_u32 v10, %d, v10' % (RB + 4080))
    for i in range(4):
        g('v_mov_b32 v%d, 0' % (96 + i))
    g('s_mov_b32 s58, 0x%x' % ((1 << 32) // 18 + 1))
    g('v_mul_hi_u32 v11, v0, s58')
    g('v_mul_u32_u24 v12, 18, v11')
    g('v_sub_u32 v12, v0, v12')
    g('v_mul_u32_u24 v11, %d, v11' % CS)
    g('v_lshl_add_u32 v11, v12, 4, v11')
    g('v_lshrrev_b32 v12, 4, v12')
    g('v_lshl_add_u32 v11, v12, 5, v11')
    g('v_add_u32 v11, %d, v11' % XC)
    g('v_subrev_u32 v12, 144, v0')
    g('v_and_b32 v13, 15, v12')
    g('v_lshrrev_b32 v12, 4, v12')
    g('v_mul_u32_u24 v12, %d, v12' % (2 * STG))
    g('v_lshl_add_u32 v12, v13, 4, v12')
    g('v_add_u32 v12, %d, v12' % (RB + 4096))
    g('v_cmp_gt_u32 vcc, 144, v0')
    g('v_cndmask_b32 v11, v12, v11, vcc')
    g('v_cmp_gt_u32 vcc, 176, v0')
    g('s_and_saveexec_b64 s[58:59], vcc')
    Lq = g.newlabel('L_zq')
    g('s_cbranch_execz %s' % Lq)
    g('ds_write_b128 v11, v[96:99]')
    g.label(Lq)
    g('s_mov_b64 exec, s[58:59]')
    g('v_lshlrev_b32 v11, 3, v0')
    g('v_add_u32 v11, 144, v11')
    g('v_lshrrev_b32 v12, 7, v11')
    g('v_lshlrev_b32 v11, 1, v11')
    g('v_lshl_add_u32 v11, v12, 5, v11')
    g('v_add_u32 v11, %d, v11' % XC)
    g('s_waitcnt lgkmcnt(0)')
    for ch in range(2):
        for i in range(8):
            g('v_add_f32 v%d, v%d, v%d' % (KR + 16 * ch + i, KR + 16 * ch + i, KR + 16 * ch + 8 + i))
        for i in range(0, 8, 2):
            g('v_cvt_pk_bf16_f32 v%d, v%d, v%d' % (100 + 4 * ch + i // 2, KR + 16 * ch + i, KR + 16 * ch + i + 1))
        g('ds_write_b128 v10, %s offset:%d' % (vr(100 + 4 * ch, 4), ch * 2 * STG))
    g('s_waitcnt vmcnt(0)')
    for ch in range(2):
        A = XR + 12 * ch; B = A + 4; C = A + 8
        c1 = 108 + 8 * ch; c3 = c1 + 4
        for k in range(4):
            g('v_alignbit_b32 v%d, v%d, v%d, 16' % (c1 + k, A + k, B + k))
            g('v_alignbit_b32 v%d, v%d, v%d, 16' % (c3 + k, B + k, C + k))
        g('ds_write_b128 v11, %s offset:%d' % (vr(A, 4), (4 * ch + 0) * CS))
        g('ds_write_b128 v11, %s offset:%d' % (vr(c1, 4), (4 * ch + 1) * CS))
        g('ds_write_b128 v11, %s offset:%d' % (vr(B, 4), (4 * ch + 2) * CS))
        g('ds_write_b128 v11, %s offset:%d' % (vr(c3, 4), (4 * ch + 3) * CS))
    g.c('conv')
    g('s_lshr_b32 s58, s14, 1')
    g('s_and_b32 s59, s14, 1')
    g('s_mul_i32 s60, s58, %d' % (2 * STG))
    g('s_lshl_b32 s61, s59, 8')
    g('s_sub_u32 s60, s60, s61')
    g('s_add_u32 s60, s60, %d' % (RB + 4272 - 3584))
    g('v_sub_u32 v4, v2, v3')
    g('v_lshlrev_b32 v4, 4, v4')
    g('v_add_u32 v4, s60, v4')
    g('v_lshrrev_b32 v5, 3, v3')
    g('v_lshlrev_b32 v5, 7, v5')
    g('v_lshl_add_u32 v5, v2, 3, v5')
    g('v_and_b32 v6, 4, v3')
    g('v_add_u32 v5, v5, v6')
    g('s_lshl_b32 s61, s59, 7')
    g('s_sub_u32 s61, 236, s61')
    g('v_add_u32 v5, s61, v5')
    g('v_and_b32 v6, 3, v3')
    g('v_sub_u32 v6, 3, v6')
    g('v_mul_u32_u24 v6, %d, v6' % CS)
    g('s_mul_i32 s61, s58, %d' % (4 * CS))
    g('s_add_u32 s61, s61, %d' % XC)
    g('v_add_u32 v6, s61, v6')
    g('s_waitcnt lgkmcnt(0)')
    g('s_barrier')
    stamp(g, 5)
    ACC = 16; F = 48; GG = 80
    for i in range(32):
        g('v_mov_b32 v%d, 0' % (ACC + i))
    SETS = [(48, 80), (112, 144)]
    def rd_list(st):
        F_, G_ = SETS[st]
        out = []
        out.append('v_lshrrev_b32 v7, 7, v5'); out.append('v_lshlrev_b32 v8, 1, v5'); out.append('v_lshl_add_u32 v7, v7, 5, v8'); out.append('v_add_u32 v7, v6, v7')
        out.append('v_add_u32 v8, 4, v5'); out.append('v_lshrrev_b32 v9, 7, v8'); out.append('v_lshlrev_b32 v8, 1, v8'); out.append('v_lshl_add_u32 v8, v9, 5, v8'); out.append('v_add_u32 v8, v6, v8')
        out.append('ds_read_b128 %s, v4 offset:%d' % (vr(F_, 4), 512 * 7))
        for w in range(8):
            out.append('ds_read_b64 %s, v7 offset:%d' % (vr(G_ + 4 * w, 2), 576 * w))
            out.append('ds_read_b64 %s, v8 offset:%d' % (vr(G_ + 4 * w + 2, 2), 576 * w))
        for v in range(1, 8):
            out.append('ds_read_b128 %s, v4 offset:%d' % (vr(F_ + 4 * v, 4), 512 * (7 - v)))
        out.append('v_subrev_u32 v4, 64, v4'); out.append('v_subrev_u32 v5, 32, v5')
        return out
    def mf_list(st):
        F_, G_ = SETS[st]
        return ['v_mfma_f32_16x16x32_bf16 %s, %s, %s, %s' % (vr(ACC + 4 * (v + w), 4), vr(G_ + 4 * w, 4), vr(F_ + 4 * v, 4), vr(ACC + 4 * (v + w), 4))
                for v in range(8) for w in range(8 - v)]
    for l in rd_list(0): g(l)
    for rr in range(4):
        g('s_waitcnt lgkmcnt(0)')
        m_ = mf_list(rr & 1)
        r_ = rd_list((rr + 1) & 1) if rr < 3 else []
        k = 0
        for i, l in enumerate(m_):
            g(l)
            while k < len(r_) and k < (i + 1) * 2:
                g(r_[k]); k += 1
    stamp(g, 6)
    g('s_barrier')
    g('v_lshrrev_b32 v14, 1, v2')
    g('v_and_b32 v15, 1, v2')
    g('v_lshlrev_b32 v4, 9, v14')
    g('v_lshl_add_u32 v4, v3, 5, v4')
    g('v_lshl_add_u32 v4, v15, 4, v4')
    g('s_lshl_b32 s58, s14, 13')
    g('s_add_u32 s58, s58, %d' % XC)
    g('v_add_u32 v4, s58, v4')
    for ct in range(8):
        g('ds_write_b128 v4, %s offset:%d' % (vr(ACC + 4 * ct, 4), 1024 * ct))
    g('s_waitcnt lgkmcnt(0)')
    g('s_barrier')
    g('v_lshlrev_b32 v4, 5, v0')
    g('v_add_u32 v4, %d, v4' % XC)
    for a_ in range(4):
        g('ds_read_b128 %s, v4 offset:%d' % (vr(48 + 8 * a_, 4), 8192 * a_))
        g('ds_read_b128 %s, v4 offset:%d' % (vr(52 + 8 * a_, 4), 8192 * a_ + 16))
    g('s_lshl_b32 s58, s2, 13')
    g('s_add_u32 s58, s58, %d' % WS_Y2)
    g('v_lshlrev_b32 v5, 5, v0')
    g('v_add_u32 v5, s58, v5')
    g('s_waitcnt lgkmcnt(0)')
    for i in range(8):
        g('v_add_f32 v%d, v%d, v%d' % (48 + i, 48 + i, 56 + i))
        g('v_add_f32 v%d, v%d, v%d' % (64 + i, 64 + i, 72 + i))
    for i in range(8):
        g('v_cvt_pk_bf16_f32 v%d, v%d, v%d' % (80 + i, 48 + i, 64 + i))
    g('buffer_store_dwordx4 v[80:83], v5, %s, 0 offen sc1' % sr(S_WS, 4))
    g('buffer_store_dwordx4 v[84:87], v5, %s, 0 offen offset:16 sc1' % sr(S_WS, 4))
    g('s_mov_b32 s58, 0x%x' % ((1 << 32) // 28 + 1))
    g('s_mul_hi_u32 s59, s2, s58')
    g('s_mul_i32 s60, s59, 28')
    g('s_sub_u32 s60, s2, s60')
    g('s_lshl_b32 s59, s59, 2')
    g('s_add_u32 s59, s59, s14')
    g('s_lshl_b32 s59, s59, 5')
    g('s_add_u32 s59, s59, s60')
    g('s_lshl_b32 s59, s59, 3')
    g('s_add_u32 s59, s59, %d' % WS_FY)
    g('v_mov_b32 v6, s59')
    g('s_waitcnt vmcnt(0)')
    stamp(g, 7)
    set_flag(g, 6, 8)
    stamp(g, 8)
    stamp(g, 9)
    stamp_flush(g)
    g('s_endpgm')
```

```python
import sys
sys.path.insert(0, 'g')
from common import *
import gen_s
def build(with_a=True):
    g = G()
    g('s_load_dwordx16 s[16:31], s[0:1], 0')
    g('s_load_dwordx16 s[32:47], s[0:1], 64')
    g('s_load_dwordx2 s[48:49], s[0:1], 128')
    g('v_lshrrev_b32 v1, 6, v0')
    g('s_cmp_ge_u32 s2, %d' % (NS + NA))
    g('s_cbranch_scc1 L_exit')
    g('v_readfirstlane_b32 s14, v1')
    g('v_and_b32 v1, 63, v0')
    g('s_waitcnt lgkmcnt(0)')
    stamp(g, 0, STSET[0])
    if STSET[0] == 'hw':
        g('s_getreg_b32 s93, hwreg(HW_REG_HW_ID)')
        g('s_getreg_b32 s94, hwreg(HW_REG_XCC_ID)')
        g('s_memtime s[90:91]')
        g('s_waitcnt lgkmcnt(0)')
        g('s_mov_b32 s95, s90')
    g('s_mov_b32 s4, s48')
    g('s_mov_b32 s5, s49')
    g('s_mov_b32 s6, 0x2000000')
    g('s_mov_b32 s7, 0x00020000')
    g('s_or_b32 s58, s2, s14')
    g('s_cmp_lg_u32 s58, 0')
    g('s_cbranch_scc1 L_nn')
    g('s_memrealtime s[60:61]')
    g('s_waitcnt lgkmcnt(0)')
    g('s_or_b32 s60, s60, 1')
    g('v_mov_b32 v6, s60')
    g('v_mov_b32 v7, s61')
    g('v_mov_b32 v8, 0')
    g('global_store_dwordx2 v8, v[6:7], %s sc1' % sr(P_DBG, 2))
    g.label('L_nn')
    g('s_cmp_ge_u32 s2, %d' % NA)
    g('s_cbranch_scc1 L_S0')
    g('s_add_u32 s2, s2, %d' % NS)
    g('s_branch L_A')
    g.label('L_S0')
    g('s_sub_u32 s2, s2, %d' % NA)
    if '--nos' in sys.argv:
        g('s_endpgm')
    else:
        gen_s.gen_S(g)
    g.label('L_A')
    if with_a:
        import gen_a
        gen_a.gen_A(g)
    g.label('L_exit')
    g('s_endpgm')
    body = '\n'.join(fix_hazards(g.lines))
    lds = 81920
    hdr = open('gated_mix__linear_kernel_hedgehog__ssm_conv_s4__prompt.s.ref').read().split('\n')
    com = [l for l in hdr if l.startswith(';') and '@launch' not in l]
    out = '\n'.join(com) + '\n; @launch grid=(%d,1,1) block=(256,1,1) lds=%d\n' % (NS + NA, lds)
    out += '''.amdgcn_target "amdgcn-amd-amdhsa--gfx950"
.text
.globl %s
.p2align 8
.type %s,@function
%s:
%s
.section .rodata,"a"
.p2align 6
.amdhsa_kernel %s
  .amdhsa_next_free_vgpr 256
  .amdhsa_next_free_sgpr 102
  .amdhsa_accum_offset 256
  .amdhsa_group_segment_fixed_size 0
  .amdhsa_kernarg_size 136
  .amdhsa_user_sgpr_count 2
  .amdhsa_user_sgpr_kernarg_segment_ptr 1
  .amdhsa_system_sgpr_workgroup_id_x 1
.end_amdhsa_kernel
''' % (KNAME, KNAME, KNAME, body, KNAME)
    return out
if __name__ == '__main__':
    with_a = '--noa' not in sys.argv
    STAMPS[0] = '--stamps' in sys.argv
    for a_ in sys.argv:
        if a_.startswith('--stset='): STSET[0] = a_.split('=')[1]
    out = build(with_a)
    fn = [a for a in sys.argv[1:] if not a.startswith('--')][0]
    open(fn, 'w').write(out)
    print('lines', out.count('\n'))
```

```python
from common import *
import os
import struct
def f2u(x): return struct.unpack('<I', struct.pack('<f', x))[0]
L2E = f2u(1.4426950408889634); LN2 = f2u(0.6931471805599453)
WK = 0; WV = 28672; WQ = 57344; WQ6 = 36864; RED = 0; KVX = 32768
XF = 144
S_W = 64
S_P = 68
S_UP = 72
S_L28 = 74
S_F28 = 76
S_TT = 78; S_H = 79; S_L2E = 80; S_LN2 = 81; S_TT64 = 82; S_CG = 83

def srd(g, s, ptr, nbytes):
    g('s_mov_b32 s%d, s%d' % (s, ptr)); g('s_mov_b32 s%d, s%d' % (s + 1, ptr + 1))
    g('s_mov_b32 s%d, %d' % (s + 2, nbytes)); g('s_mov_b32 s%d, 0x00020000' % (s + 3))

def softmax_stats(g, DP, T, want_c):
    MX, MN, SP, SM, A, B, TM, TN = T, T + 1, T + 2, T + 3, T + 4, T + 5, T + 6, T + 7
    EP = T + 8; EM = T + 24
    for i in range(12, 16):
        g('v_cndmask_b32 v%d, v%d, v%d, %s' % (DP + i, DP + i, DP + 11, sr(S_UP, 2)))
    g('v_max3_f32 v%d, v%d, v%d, v%d' % (MX, DP, DP + 1, DP + 2))
    g('v_min3_f32 v%d, v%d, v%d, v%d' % (MN, DP, DP + 1, DP + 2))
    for i in range(3, 15, 2):
        g('v_max3_f32 v%d, v%d, v%d, v%d' % (MX, MX, DP + i, DP + i + 1))
        g('v_min3_f32 v%d, v%d, v%d, v%d' % (MN, MN, DP + i, DP + i + 1))
    g('v_max_f32 v%d, v%d, v%d' % (MX, MX, DP + 15))
    g('v_min_f32 v%d, v%d, v%d' % (MN, MN, DP + 15))
    g('v_mov_b32 v%d, v%d' % (A, MX)); g('v_mov_b32 v%d, v%d' % (B, MX))
    g('v_mov_b32 v%d, v%d' % (TM, MN)); g('v_mov_b32 v%d, v%d' % (TN, MN))
    g('v_permlane32_swap_b32 v%d, v%d' % (A, B))
    g('v_permlane32_swap_b32 v%d, v%d' % (TM, TN))
    g('v_max_f32 v%d, v%d, v%d' % (MX, A, B))
    g('v_min_f32 v%d, v%d, v%d' % (MN, TM, TN))
    g('v_mul_f32 v%d, s%d, v%d' % (TM, S_L2E, MX))
    g('v_mul_f32 v%d, s%d, v%d' % (TN, S_L2E, MN))
    for i in range(16):
        g('v_fma_f32 v%d, v%d, s%d, -v%d' % (EP + i, DP + i, S_L2E, TM))
        g('v_fma_f32 v%d, -v%d, s%d, v%d' % (EM + i, DP + i, S_L2E, TN))
    for i in range(16):
        g('v_exp_f32 v%d, v%d' % (EP + i, EP + i))
        g('v_exp_f32 v%d, v%d' % (EM + i, EM + i))
    for i in range(12, 16):
        g('v_cndmask_b32 v%d, v%d, 0, %s' % (EP + i, EP + i, sr(S_UP, 2)))
        g('v_cndmask_b32 v%d, v%d, 0, %s' % (EM + i, EM + i, sr(S_UP, 2)))
    g('v_add_f32 v%d, v%d, v%d' % (SP, EP, EP + 1)); g('v_add_f32 v%d, v%d, v%d' % (SM, EM, EM + 1))
    g('v_add_f32 v%d, v%d, v%d' % (A, EP + 2, EP + 3)); g('v_add_f32 v%d, v%d, v%d' % (B, EM + 2, EM + 3))
    for i in range(4, 16, 2):
        g('v_add_f32 v%d, v%d, v%d' % (SP, SP, EP + i)); g('v_add_f32 v%d, v%d, v%d' % (SM, SM, EM + i))
        g('v_add_f32 v%d, v%d, v%d' % (A, A, EP + i + 1)); g('v_add_f32 v%d, v%d, v%d' % (B, B, EM + i + 1))
    g('v_add_f32 v%d, v%d, v%d' % (SP, SP, A)); g('v_add_f32 v%d, v%d, v%d' % (SM, SM, B))
    g('v_mov_b32 v%d, v%d' % (A, SP)); g('v_mov_b32 v%d, v%d' % (B, SP))
    g('v_mov_b32 v%d, v%d' % (TM, SM)); g('v_mov_b32 v%d, v%d' % (TN, SM))
    g('v_permlane32_swap_b32 v%d, v%d' % (A, B))
    g('v_permlane32_swap_b32 v%d, v%d' % (TM, TN))
    g('v_add_f32 v%d, v%d, v%d' % (SP, A, B))
    g('v_add_f32 v%d, v%d, v%d' % (SM, TM, TN))
    return MX, MN, SP, SM, EP, EM

def gen_A(g, stage=99):
    g.c('---- A type')
    g('s_setprio 1')
    g('s_sub_u32 s50, s2, %d' % NS)
    g('s_and_b32 s51, s50, 7')
    g('s_lshr_b32 s52, s50, 3')
    g('s_and_b32 s53, s51, 3')
    g('s_lshl_b32 s53, s53, 2')
    g('s_and_b32 s54, s52, 3')
    g('s_add_u32 s%d, s53, s54' % S_TT)
    g('s_lshr_b32 s53, s51, 2')
    g('s_lshl_b32 s53, s53, 3')
    g('s_lshr_b32 s54, s52, 2')
    g('s_add_u32 s%d, s53, s54' % S_H)
    g('s_and_b32 s%d, s52, 7' % S_CG)
    g('s_lshl_b32 s53, s51, 2')
    g('s_lshr_b32 s54, s52, 3')
    g('s_add_u32 s%d, s53, s54' % S_TT64)
    srd(g, S_W, P_WQKV, 448 * 2688)
    g('v_and_b32 v2, 31, v1')
    g('v_lshrrev_b32 v3, 5, v1')
    g('s_lshl_b32 s53, s%d, 7' % S_TT)
    g('s_lshl_b32 s54, s14, 5')
    g('s_add_u32 s53, s53, s54')
    g('v_and_b32 v4, 3, v1')
    g('v_bfe_u32 v5, v1, 2, 3')
    g('v_lshl_add_u32 v9, v4, 3, v5')
    g('v_add_u32 v5, s53, v5')
    g('v_mul_u32_u24 v5, 896, v5')
    g('v_lshl_add_u32 v5, v3, 6, v5')
    g('v_lshl_add_u32 v5, v4, 4, v5')
    g('v_add_u32 v4, s53, v9')
    g('v_add_u32 v140, %d, v5' % (8 * 896))
    g('v_add_u32 v141, %d, v5' % (16 * 896))
    g('v_add_u32 v142, %d, v5' % (24 * 896))
    g('v_lshrrev_b32 v6, 2, v1')
    g('v_and_b32 v7, 3, v1')
    g('v_mul_u32_u24 v8, 2688, v6')
    g('v_lshl_add_u32 v8, v7, 4, v8')
    g('s_mul_i32 s53, s%d, 56' % S_H)
    g('v_add_u32 v8, s53, v8')
    g('s_mul_i32 s55, s14, %d' % (16 * 2688))
    g('s_lshl_b32 s56, s14, 10')
    W0 = 64; W1 = 68
    XO = (5, 140, 141, 142)
    ROT = os.environ.get('ROT', '1') == '1'
    g('s_mul_i32 s63, s52, 37')
    g('s_lshr_b32 s63, s63, 8')
    g('s_mul_i32 s63, s63, 7')
    g('s_sub_u32 s63, s52, s63')
    if not ROT: g('s_mov_b32 s63, 0')
    g('s_mov_b32 s62, s63')
    srd(g, S_P, P_X, 2048 * 896)
    def adv():
        g('s_add_u32 s62, s62, 1')
        g('s_cmp_eq_u32 s62, 7')
        g('s_cselect_b32 s62, 0, s62')
    def issue_w(c):
        g('s_mul_i32 s58, s62, %d' % (64 * 2688))
        g('s_add_u32 s58, s58, s55')
        g('s_add_u32 s57, s58, 896')
        g('s_add_u32 m0, s56, %d' % (WK + c * 4096))
        g('s_add_u32 s58, s58, 1792')
        g('buffer_load_dwordx4 v8, %s, s57 offen lds' % sr(S_W, 4))
        g('s_add_u32 m0, s56, %d' % (WV + c * 4096))
        adv()
        g('buffer_load_dwordx4 v8, %s, s58 offen lds' % sr(S_W, 4))
    def issue_chunk(c):
        g('s_lshl_b32 s57, s62, 7')
        for i in range(4):
            g('buffer_load_dwordx4 %s, v%d, %s, s57 offen' % (vr(XF + 16 * c + 4 * i, 4), XO[i], sr(S_P, 4)))
    def issue_wq(c):
        if c == 0: g('s_mov_b32 s62, s63')
        g('s_mul_i32 s57, s62, %d' % (64 * 2688))
        g('s_add_u32 s57, s57, s55')
        g('s_add_u32 m0, s56, %d' % ((WQ + c * 4096) if c < 6 else WQ6))
        adv()
        g('buffer_load_dwordx4 v8, %s, s57 offen lds' % sr(S_W, 4))
    PD = int(os.environ.get('PD', '3'))
    for c in range(PD):
        issue_chunk(c); issue_w(c)
    def small_loads():
        srd(g, S_P, P_WPHI, 16 * 784 * 2)
        g('s_mul_i32 s53, s%d, 784' % S_H)
        g('v_mul_u32_u24 v9, 112, v3')
        g('v_add_u32 v9, v9, v2')
        g('v_add_u32 v9, s53, v9')
        g('v_lshlrev_b32 v9, 1, v9')
        g('v_cmp_lt_u32 vcc, 27, v2')
        g('s_mov_b64 %s, vcc' % sr(S_F28, 2))
        g('v_mov_b32 v10, 0x7ffff000')
        g('v_cndmask_b32 v9, v9, v10, vcc')
        W0 = 64; W1 = 68
        for tp in range(2):
            for j in range(8):
                d = 16 * tp + 8 * (j >> 2) + (j & 3)
                g('buffer_load_ushort v%d, v9, %s, 0 offen offset:%d' % (48 + 8 * tp + j, sr(S_P, 4), d * 56))
        srd(g, S_P + 16, P_GW, 896)
        g('v_lshrrev_b32 v10, 4, v1')
        g('v_and_b32 v14, 15, v1')
        g('s_lshl_b32 s53, s14, 4')
        g('v_add_u32 v14, s53, v14')
        g('v_lshl_add_u32 v143, v10, 6, v14')
        g('v_lshlrev_b32 v143, 1, v143')
        for i in range(2):
            g('v_add_u32 v15, s63, v10')
            if i: g('v_add_u32 v15, 4, v15')
            g('v_subrev_u32 v9, 7, v15')
            g('v_cmp_gt_u32 vcc, 7, v15')
            g('v_cndmask_b32 v15, v9, v15, vcc')
            g('v_lshl_add_u32 v15, v15, 6, v14')
            g('v_lshlrev_b32 v15, 1, v15')
            g('buffer_load_ushort v%d, v15, %s, 0 offen' % (12 + i, sr(S_P + 16, 4)))
        if os.environ.get('TLBW', '1') == '1':
            g('v_min_u32 v14, 5, v1')
            g('v_lshlrev_b32 v14, 21, v14')
            g('v_add_u32 v14, 0x1f0000, v14')
            g('buffer_load_dword v15, v14, %s, 0 offen' % sr(S_WS, 4))
            g('v_mov_b32 v14, 0')
            g('global_load_dword v15, v14, %s' % sr(P_OUT, 2))
            g('global_load_dword v15, v14, %s' % sr(P_WO, 2))
    NPRE = 42 + 16 + 2
    stamp(g, 1, 'p1')
    g('s_mov_b32 s%d, 0' % S_UP); g('s_mov_b32 s%d, -1' % (S_UP + 1))
    g('s_mov_b32 s%d, 0x10000000' % S_L28); g('s_mov_b32 s%d, 0x10000000' % (S_L28 + 1))
    g('s_mov_b32 s%d, 0x%x' % (S_L2E, L2E)); g('s_mov_b32 s%d, 0x%x' % (S_LN2, LN2))
    g('v_lshrrev_b32 v10, 4, v1')
    g('v_bfe_u32 v11, v1, 2, 2')
    g('v_lshl_add_u32 v11, v3, 5, v11')
    g('v_lshlrev_b32 v11, 6, v11')
    g('v_and_b32 v14, 1, v10')
    g('v_lshl_add_u32 v11, v14, 5, v11')
    g('v_lshl_add_u32 v11, v7, 3, v11')
    DK = 16; DV = 32; WF = 96
    def mf(c):
        for tq in range(4):
            t = 4 * c + tq
            g('v_mfma_f32_32x32x16_bf16 %s, %s, %s, %s' % (vr(DK, 16), vr(WF + 8 * tq, 4), vr(XF + 4 * t, 4), '0' if t == 0 else vr(DK, 16)))
            g('v_mfma_f32_32x32x16_bf16 %s, %s, %s, %s' % (vr(DV, 16), vr(XF + 4 * t, 4), vr(WF + 8 * tq + 4, 4), '0' if t == 0 else vr(DV, 16)))
    seq = []
    for c in range(PD): seq += [c] * 6
    WFB = (64, 96)
    TT = 128
    def waitx(c):
        last = max(i for i, x in enumerate(seq) if x == c)
        g('s_waitcnt vmcnt(%d)' % (len(seq) - 1 - last))
    def stA(c):
        R = [XF + 16 * c + 4 * i for i in range(4)]
        o = []
        d1 = 'quad_perm:[1,0,3,2] row_mask:0xf bank_mask:0xf'; d2 = 'quad_perm:[2,3,0,1] row_mask:0xf bank_mask:0xf'
        def setv(m): o.append('s_mov_b32 vcc_lo, 0x%x' % m); o.append('s_mov_b32 vcc_hi, 0x%x' % m)
        setv(0x55555555)
        for d in range(4): o.append('v_cndmask_b32_dpp v%d, v%d, v%d, vcc %s' % (TT + d, R[1] + d, R[0] + d, d1))
        for d in range(4): o.append('v_cndmask_b32_dpp v%d, v%d, v%d, vcc %s' % (TT + 4 + d, R[3] + d, R[2] + d, d1))
        setv(0xaaaaaaaa)
        for d in range(4): o.append('v_cndmask_b32_dpp v%d, v%d, v%d, vcc %s' % (R[1] + d, R[0] + d, R[1] + d, d1))
        for d in range(4): o.append('v_cndmask_b32_dpp v%d, v%d, v%d, vcc %s' % (R[3] + d, R[2] + d, R[3] + d, d1))
        setv(0x33333333)
        for d in range(4): o.append('v_cndmask_b32_dpp v%d, v%d, v%d, vcc %s' % (R[0] + d, TT + 4 + d, TT + d, d2))
        setv(0xcccccccc)
        for d in range(4): o.append('v_cndmask_b32_dpp v%d, v%d, v%d, vcc %s' % (R[2] + d, TT + d, TT + 4 + d, d2))
        for d in range(4): o.append('v_cndmask_b32_dpp v%d, v%d, v%d, vcc %s' % (TT + d, R[1] + d, R[3] + d, d2))
        setv(0x33333333)
        for d in range(4): o.append('v_cndmask_b32_dpp v%d, v%d, v%d, vcc %s' % (R[1] + d, R[3] + d, R[1] + d, d2))
        for d in range(4): o.append('v_mov_b32 v%d, v%d' % (R[3] + d, TT + d))
        return o
    def stB(c):
        out = []
        for tq in range(4):
            t = 4 * c + tq
            for sg, segb in ((0, WK), (1, WV)):
                for a_ in range(2):
                    out.append('ds_read_b64_tr_b16 %s, v11 offset:%d' % (vr(WFB[c & 1] + 8 * tq + 4 * sg + 2 * a_, 2), segb + 4096 * c + 512 * tq + 256 * a_))
        return out
    def stC(c):
        out = []
        W_ = WFB[c & 1]
        for tq in range(4):
            t = 4 * c + tq
            out.append('v_mfma_f32_32x32x16_bf16 %s, %s, %s, %s' % (vr(DK, 16), vr(W_ + 8 * tq, 4), vr(XF + 4 * t, 4), '0' if t == 0 else vr(DK, 16)))
            out.append('v_mfma_f32_32x32x16_bf16 %s, %s, %s, %s' % (vr(DV, 16), vr(XF + 4 * t, 4), vr(W_ + 8 * tq + 4, 4), '0' if t == 0 else vr(DV, 16)))
        return out
    def more(c):
        if c < 7:
            issue_chunk(c); issue_w(c); seq.extend([c] * 6)
        if c == 6:
            small_loads(); seq.extend([99] * (21 if os.environ.get('TLBW', '1') == '1' else 18))
    waitx(0)
    g('s_barrier')
    for l in stB(0): g(l)
    for l in stA(0): g(l)
    if PD == 7:
        small_loads(); seq.extend([99] * (21 if os.environ.get('TLBW', '1') == '1' else 18))
    for c in range(7):
        stamp(g, 2 + c, 'p1')
        ra = []; rb = []
        if c + 1 < 7:
            waitx(c + 1)
            g('s_barrier')
            ra = stA(c + 1); rb = stB(c + 1)
        g('s_waitcnt lgkmcnt(0)')
        na = (len(ra) + 7) // 8
        for i, l in enumerate(stC(c)):
            g(l)
            for r_ in rb[2 * i:2 * i + 2]: g(r_)
            for r_ in ra[na * i:na * i + na]: g(r_)
        if c + PD < 7: more(c + PD)
        if c >= 4:
            issue_wq(2 * (c - 4)); issue_wq(2 * (c - 4) + 1); seq.extend([98] * 2)
    stamp(g, 1)
    stamp(g, 9, 'p1')
    g('s_waitcnt vmcnt(6)')
    g('s_setprio 2')
    g('v_mov_b32 v94, 0')
    g('global_load_dwordx2 v[92:93], v94, %s sc1' % sr(P_DBG, 2))
    W1Z = 72; W1P = 76; W0N = 80; W1N = 84
    g('v_mov_b32 v14, 0x3f803f80')
    g('v_mov_b32 v15, 0x80008000')
    for i in range(8):
        g('v_lshl_or_b32 v%d, v%d, 16, v%d' % (W0 + i, 48 + 2 * i + 1, 48 + 2 * i))
    for i in range(8):
        g('v_cndmask_b32 v%d, v%d, 0, %s' % (W0 + i, W0 + i, sr(S_F28, 2)))
    for i in range(4):
        g('v_xor_b32 v%d, v15, v%d' % (W0N + i, W0 + i))
        g('v_xor_b32 v%d, v15, v%d' % (W1N + i, W1 + i))
    for i in range(2):
        for dst in (W1Z, W1P):
            g('v_mov_b32 v%d, v%d' % (dst + i, W1 + i))
    g('v_cndmask_b32 v%d, v%d, 0, %s' % (W1Z + 2, W1 + 2, sr(S_UP, 2)))
    g('v_cndmask_b32 v%d, v%d, 0, %s' % (W1Z + 3, W1 + 3, sr(S_UP, 2)))
    g('v_cndmask_b32 v%d, v%d, v14, %s' % (W1P + 2, W1 + 2, sr(S_UP, 2)))
    g('v_cndmask_b32 v%d, v%d, 0, %s' % (W1P + 3, W1 + 3, sr(S_UP, 2)))
    g('v_cndmask_b32 v%d, v%d, 0, %s' % (W1N + 2, W1N + 2, sr(S_UP, 2)))
    g('v_cndmask_b32 v%d, v%d, v14, %s' % (W1N + 3, W1N + 3, sr(S_UP, 2)))
    KB = 48; VB = 56; DP = 16; T = 96
    for i in range(8):
        g('v_cvt_pk_bf16_f32 v%d, v%d, v%d' % (KB + i, DK + 2 * i, DK + 2 * i + 1))
    for i in range(8):
        g('v_cvt_pk_bf16_f32 v%d, v%d, v%d' % (VB + i, DV + 2 * i, DV + 2 * i + 1))
    g('v_mfma_f32_32x32x16_bf16 %s, %s, %s, 0' % (vr(DP, 16), vr(W0, 4), vr(KB, 4)))
    g('v_mfma_f32_32x32x16_bf16 %s, %s, %s, %s' % (vr(DP, 16), vr(W1Z, 4), vr(KB + 4, 4), vr(DP, 16)))
    for i in range(8):
        g('v_cndmask_b32 v%d, v%d, v14, %s' % (VB + i, VB + i, sr(S_L28, 2)))
    MX, MN, SP, SM, EP, EM = softmax_stats(g, DP, T, True)
    A_, B_ = T + 4, T + 5
    g('v_log_f32 v%d, v%d' % (SP, SP)); g('v_log_f32 v%d, v%d' % (SM, SM))
    g('v_fma_f32 v%d, -v%d, s%d, -v%d' % (SP, SP, S_LN2, MX))
    g('v_fma_f32 v%d, -v%d, s%d, v%d' % (SM, SM, S_LN2, MN))
    for r_, tmp in ((SP, A_), (SM, B_)):
        g('v_cvt_pk_bf16_f32 v%d, v%d, v%d' % (tmp, r_, r_))
        g('v_lshlrev_b32 v%d, 16, v%d' % (tmp, tmp))
        g('v_sub_f32 v%d, v%d, v%d' % (tmp, r_, tmp))
        g('v_cvt_pk_bf16_f32 v%d, v%d, v%d' % (tmp, r_, tmp))
    g('v_cndmask_b32 v%d, v%d, v%d, %s' % (KB + 6, KB + 6, A_, sr(S_UP, 2)))
    g('v_cndmask_b32 v%d, v%d, v%d, %s' % (KB + 7, KB + 7, B_, sr(S_UP, 2)))
    DPP = 16; DPM = 32
    g('v_mfma_f32_32x32x16_bf16 %s, %s, %s, 0' % (vr(DPP, 16), vr(KB, 4), vr(W0, 4)))
    g('v_mfma_f32_32x32x16_bf16 %s, %s, %s, 0' % (vr(DPM, 16), vr(KB, 4), vr(W0N, 4)))
    g('v_mfma_f32_32x32x16_bf16 %s, %s, %s, %s' % (vr(DPP, 16), vr(KB + 4, 4), vr(W1P, 4), vr(DPP, 16)))
    g('v_mfma_f32_32x32x16_bf16 %s, %s, %s, %s' % (vr(DPM, 16), vr(KB + 4, 4), vr(W1N, 4), vr(DPM, 16)))
    for i in range(16):
        g('v_mul_f32 v%d, s%d, v%d' % (DPP + i, S_L2E, DPP + i))
    for i in range(16):
        g('v_exp_f32 v%d, v%d' % (DPP + i, DPP + i))
        g('v_mul_f32 v%d, s%d, v%d' % (DPM + i, S_L2E, DPM + i))
    for i in range(16):
        g('v_exp_f32 v%d, v%d' % (DPM + i, DPM + i))
    PH = 96
    for i in range(8):
        g('v_cvt_pk_bf16_f32 v%d, v%d, v%d' % (PH + i, DPP + 2 * i, DPP + 2 * i + 1))
    for i in range(8):
        g('v_cvt_pk_bf16_f32 v%d, v%d, v%d' % (PH + 8 + i, DPM + 2 * i, DPM + 2 * i + 1))
    KVP_ = 16; KVM = 32
    g('v_mfma_f32_32x32x16_bf16 %s, %s, %s, 0' % (vr(KVP_, 16), vr(PH, 4), vr(VB, 4)))
    g('v_mfma_f32_32x32x16_bf16 %s, %s, %s, 0' % (vr(KVM, 16), vr(PH + 8, 4), vr(VB, 4)))
    g('v_mfma_f32_32x32x16_bf16 %s, %s, %s, %s' % (vr(KVP_, 16), vr(PH + 4, 4), vr(VB + 4, 4), vr(KVP_, 16)))
    g('v_mfma_f32_32x32x16_bf16 %s, %s, %s, %s' % (vr(KVM, 16), vr(PH + 12, 4), vr(VB + 4, 4), vr(KVM, 16)))
    g('s_barrier')
    g('s_lshl_b32 s57, s14, 13')
    g('s_add_u32 s57, s57, %d' % RED)
    g('v_lshlrev_b32 v14, 4, v1')
    g('v_add_u32 v15, s57, v14')
    for gq in range(8):
        g('ds_write_b128 v15, %s offset:%d' % (vr(16 + 4 * gq, 4), 1024 * gq))
    g('s_waitcnt lgkmcnt(0)')
    g('s_barrier')
    g('s_lshl_b32 s57, s14, 11')
    g('s_add_u32 s57, s57, %d' % RED)
    g('v_add_u32 v15, s57, v14')
    for wv in range(4):
        for k in range(2):
            g('ds_read_b128 %s, v15 offset:%d' % (vr(96 + 8 * wv + 4 * k, 4), 8192 * wv + 1024 * k))
    g('s_lshl_b32 s57, s%d, 4' % S_H)
    g('s_add_u32 s57, s57, s%d' % S_TT)
    g('s_lshl_b32 s57, s57, 2')
    g('s_add_u32 s57, s57, s14')
    g('s_lshl_b32 s57, s57, 10')
    g('s_add_u32 s57, s57, %d' % WS_KVP)
    g('v_add_u32 v15, s57, v14')
    g('s_waitcnt lgkmcnt(0)')
    for i in range(8):
        g('v_add_f32 v%d, v%d, v%d' % (96 + i, 96 + i, 104 + i))
        g('v_add_f32 v%d, v%d, v%d' % (112 + i, 112 + i, 120 + i))
    for i in range(8):
        g('v_add_f32 v%d, v%d, v%d' % (96 + i, 96 + i, 112 + i))
    for i in range(4):
        g('v_cvt_pk_bf16_f32 v%d, v%d, v%d' % (104 + i, 96 + 2 * i, 97 + 2 * i))
    g('buffer_store_dwordx4 v[104:107], v15, %s, 0 offen sc1' % sr(S_WS, 4))
    issue_wq(6)
    get_nonce(g, 92, 94, 57, pre=True, cnt=1)
    g('s_lshl_b32 s57, s%d, 2' % S_H)
    g('s_add_u32 s57, s57, s14')
    g('s_lshl_b32 s57, s57, 4')
    g('s_add_u32 s58, s57, s%d' % S_TT)
    g('s_lshl_b32 s58, s58, 3')
    g('s_add_u32 s58, s58, %d' % WS_FK)
    g('v_mov_b32 v15, s58')
    set_flag(g, 15, 96)
    stamp(g, 2)
    g('s_waitcnt vmcnt(1)')
    g('s_lshl_b32 s%d, s57, 3' % 88)
    g('v_lshlrev_b32 v14, 5, v143')
    g('ds_write_b16 v14, v12 offset:%d' % (WQ + 56))
    g('v_add_u32 v15, %d, v14' % (256 * 64 + WQ + 56))
    g('v_add_u32 v10, %d, v14' % (256 * 64 - 384 * 64 + WQ6 + 56))
    g('v_cmp_gt_u32 vcc, 32, v1')
    g('v_cndmask_b32 v15, v10, v15, vcc')
    g('v_cmp_gt_u32 vcc, 48, v1')
    g('s_and_saveexec_b64 s[58:59], vcc')
    g('ds_write_b16 v15, v13')
    g('s_mov_b64 exec, s[58:59]')
    g('s_waitcnt lgkmcnt(0)')
    g('s_barrier')
    DQ = 16; WF = 88
    g('v_add_u32 v10, %d, v11' % WQ)
    for grp in range(4):
        for tq in range(7):
            t = 7 * grp + tq
            for a in range(2):
                g('ds_read_b64_tr_b16 %s, v%d offset:%d' % (vr(WF + (28 * (grp & 1)) + 4 * tq + 2 * a, 2), 10 if t < 24 else 11, (4096 * (t >> 2) if t < 24 else WQ6) + 512 * (t & 3) + 256 * a))
        if grp > 0:
            pg = grp - 1
            for tq in range(7):
                t = 7 * pg + tq
                if tq == 0: g('s_waitcnt lgkmcnt(14)')
                g('v_mfma_f32_32x32x16_bf16 %s, %s, %s, %s' % (vr(DQ, 16), vr(WF + 28 * (pg & 1) + 4 * tq, 4), vr(XF + 4 * t, 4), '0' if t == 0 else vr(DQ, 16)))
    g('s_waitcnt lgkmcnt(0)')
    for tq in range(7):
        t = 21 + tq
        g('v_mfma_f32_32x32x16_bf16 %s, %s, %s, %s' % (vr(DQ, 16), vr(WF + 28 + 4 * tq, 4), vr(XF + 4 * t, 4), vr(DQ, 16)))
    g('s_barrier')
    QB = 48
    g('v_mov_b32 v14, v%d' % (DQ + 12))
    for i in range(8):
        g('v_cvt_pk_bf16_f32 v%d, v%d, v%d' % (QB + i, DQ + 2 * i, DQ + 2 * i + 1))
    g('v_mfma_f32_32x32x16_bf16 %s, %s, %s, 0' % (vr(DP, 16), vr(W0, 4), vr(QB, 4)))
    g('v_mfma_f32_32x32x16_bf16 %s, %s, %s, %s' % (vr(DP, 16), vr(W1Z, 4), vr(QB + 4, 4), vr(DP, 16)))
    g('v_mul_f32 v14, s%d, v14' % S_L2E)
    g('v_exp_f32 v14, -v14')
    g('v_add_f32 v14, 1.0, v14')
    g('v_rcp_f32 v14, v14')
    Lg = g.newlabel('L_ng')
    g('s_cmp_lg_u32 s%d, 0' % S_H)
    g('s_cbranch_scc1 %s' % Lg)
    g('v_lshlrev_b32 v15, 2, v4')
    g('v_add_u32 v15, %d, v15' % WS_G)
    g('s_mov_b64 exec, %s' % sr(S_UP, 2))
    g('buffer_store_dword v14, v15, %s, 0 offen sc1' % sr(S_WS, 4))
    g('s_mov_b64 exec, -1')
    g.label(Lg)
    MX, MN, SP, SM, EP, EM = softmax_stats(g, DP, T, False)
    g('v_rcp_f32 v%d, v%d' % (SP, SP)); g('v_rcp_f32 v%d, v%d' % (SM, SM))
    for i in range(16):
        g('v_mul_f32 v%d, v%d, v%d' % (EP + i, EP + i, SP))
        g('v_mul_f32 v%d, v%d, v%d' % (EM + i, EM + i, SM))
    PQ = 48
    for i in range(8):
        g('v_cvt_pk_bf16_f32 v%d, v%d, v%d' % (PQ + i, EP + 2 * i, EP + 2 * i + 1))
        g('v_cvt_pk_bf16_f32 v%d, v%d, v%d' % (PQ + 8 + i, EM + 2 * i, EM + 2 * i + 1))
    SEL = 64
    g('v_lshrrev_b32 v8, 3, v2')
    g('v_bfe_u32 v9, v2, 2, 1')
    g('v_and_b32 v10, 3, v2')
    g('v_lshrrev_b32 v12, 1, v10')
    g('v_lshl_add_u32 v12, v8, 1, v12')
    g('v_and_b32 v13, 1, v10')
    g('v_mov_b32 v14, 0x3f80')
    g('v_mov_b32 v15, 0x3f800000')
    g('v_cmp_eq_u32 vcc, 1, v13')
    g('v_cndmask_b32 v13, v14, v15, vcc')
    g('v_cmp_eq_u32 vcc, v9, v3')
    g('v_cndmask_b32 v13, 0, v13, vcc')
    for i in range(4):
        g('v_cmp_eq_u32 vcc, %d, v12' % i)
        g('v_cndmask_b32 v%d, 0, v13, vcc' % (SEL + i))
    stamp(g, 3)
    g('v_and_b32 v8, 15, v1')
    g('v_lshlrev_b32 v8, 3, v8')
    g('s_add_u32 s57, s88, %d' % WS_FK)
    g('v_add_u32 v8, s57, v8')
    poll_flags(g, 8, None, 96, 57)
    stamp(g, 4)
    stamp(g, 1, 'p3')
    g('s_lshl_b32 s57, s%d, 6' % S_H)
    g('s_add_u32 s57, s57, s14')
    g('s_lshl_b32 s57, s57, 10')
    g('s_add_u32 s57, s57, %d' % WS_KVP)
    g('v_lshlrev_b32 v9, 4, v1')
    g('v_add_u32 v8, s57, v9')
    PL = 144
    PSC = os.environ.get('PSC', 'sc1')
    for j in range(16):
        g('s_mov_b32 s57, %d' % (j * 4096))
        g('buffer_load_dwordx4 %s, v8, %s, s57 offen %s' % (vr(PL + 4 * j, 4), sr(S_WS, 4), PSC))
    DS_ = 16
    stamp(g, 2, 'p3')
    for j in range(16):
        g('s_waitcnt vmcnt(%d)' % (15 - j))
        g('v_mfma_f32_32x32x16_bf16 %s, %s, %s, %s' % (vr(DS_, 16), vr(SEL, 4), vr(PL + 4 * j, 4), '0' if j == 0 else vr(DS_, 16)))
    for i in range(4):
        g('v_cvt_pk_bf16_f32 v%d, v%d, v%d' % (96 + i, DS_ + 2 * i, DS_ + 2 * i + 1))
    g('s_lshl_b32 s57, s14, 10')
    g('s_add_u32 s57, s57, %d' % KVX)
    g('v_add_u32 v8, s57, v9')
    stamp(g, 3, 'p3')
    g('ds_write_b128 v8, v[96:99]')
    g('s_waitcnt lgkmcnt(0)')
    g('s_barrier')
    stamp(g, 4, 'p3')
    g('v_add_u32 v8, %d, v9' % KVX)
    KF = 100
    for t in range(4):
        g('ds_read_b128 %s, v8 offset:%d' % (vr(KF + 4 * t, 4), 1024 * t))
    DO = 16
    for t in range(4):
        g('s_waitcnt lgkmcnt(%d)' % (3 - t))
        g('v_mfma_f32_32x32x16_bf16 %s, %s, %s, %s' % (vr(DO, 16), vr(KF + 4 * t, 4), vr(PQ + 4 * t, 4), '0' if t == 0 else vr(DO, 16)))
    g('v_mov_b32 v8, v%d' % (DO + 12)); g('v_mov_b32 v9, v%d' % (DO + 12))
    g('v_permlane32_swap_b32 v8, v9')
    g('v_add_f32 v9, 0x%x, v9' % f2u(1e-6))
    g('v_rcp_f32 v9, v9')
    for i in range(16):
        g('v_mul_f32 v%d, v%d, v9' % (DO + i, DO + i))
    for i in range(8):
        g('v_cvt_pk_bf16_f32 v%d, v%d, v%d' % (96 + i, DO + 2 * i, DO + 2 * i + 1))
    g('v_lshrrev_b32 v8, 4, v4')
    g('v_mul_u32_u24 v8, 14336, v8')
    g('v_and_b32 v10, 15, v4')
    g('v_lshl_add_u32 v8, v10, 4, v8')
    g('s_mul_i32 s57, s%d, 7' % S_H)
    g('v_add_u32 v10, s57, v3')
    g('v_lshrrev_b32 v12, 1, v10')
    g('v_lshl_add_u32 v8, v12, 8, v8')
    g('v_and_b32 v10, 1, v10')
    g('v_lshl_add_u32 v8, v10, 3, v8')
    g('v_add_u32 v8, %d, v8' % WS_O)
    for gq in range(3):
        g('buffer_store_dwordx2 %s, v8, %s, 0 offen offset:%d sc1' % (vr(96 + 2 * gq, 2), sr(S_WS, 4), 256 * gq))
    g('s_mov_b32 exec_hi, 0')
    g('buffer_store_dwordx2 %s, v8, %s, 0 offen offset:768 sc1' % (vr(102, 2), sr(S_WS, 4)))
    g('s_mov_b64 exec, -1')
    stamp(g, 5, 'p3')
    g('s_lshl_b32 s57, s%d, 2' % S_TT)
    g('s_add_u32 s57, s57, s14')
    g('s_lshl_b32 s57, s57, 4')
    g('s_add_u32 s57, s57, s%d' % S_H)
    g('s_lshl_b32 s57, s57, 3')
    g('s_add_u32 s57, s57, %d' % WS_FO)
    g('v_mov_b32 v15, s57')
    g('s_waitcnt vmcnt(0)')
    set_flag(g, 15, 96)
    stamp(g, 5)
    stamp(g, 6, 'p3')
    srd(g, S_P, P_WO, 448 * 896)
    g('v_mul_u32_u24 v9, 896, v6')
    g('v_lshl_add_u32 v9, v7, 4, v9')
    g('s_mul_i32 s53, s%d, 112' % S_CG)
    g('v_add_u32 v9, s53, v9')
    g('s_mul_i32 s55, s14, %d' % (16 * 896))
    for c in range(7):
        for sg in range(2):
            g('s_add_u32 s57, s55, %d' % (c * 64 * 896 + 56 * sg))
            g('s_add_u32 m0, s56, %d' % (28672 * sg + c * 4096))
            g('s_nop 0')
            g('buffer_load_dwordx4 v9, %s, s57 offen lds' % sr(S_P, 4))
    g('v_and_b32 v2, 15, v1')
    g('v_lshrrev_b32 v3, 4, v1')
    g('s_lshl_b32 s57, s%d, 6' % S_TT64)
    g('s_lshl_b32 s58, s14, 4')
    g('s_add_u32 s57, s57, s58')
    g('v_add_u32 v4, s57, v2')
    srd(g, S_P, P_X, 2048 * 896)
    srd(g, S_W, P_DSK, 896)
    g('s_mul_i32 s58, s%d, 112' % S_CG)
    g('v_lshlrev_b32 v5, 3, v3')
    g('v_add_u32 v5, s58, v5')
    g('v_mul_u32_u24 v6, 896, v4')
    g('v_add_u32 v6, v6, v5')
    XE = 96; DE = 104
    for m in range(4):
        mo = 56 * (m >> 1) + 32 * (m & 1)
        g('buffer_load_dwordx2 %s, v6, %s, 0 offen offset:%d' % (vr(XE + 2 * m, 2), sr(S_P, 4), mo))
        g('buffer_load_dwordx2 %s, v5, %s, 0 offen offset:%d' % (vr(DE + 2 * m, 2), sr(S_W, 4), mo))
    g('v_bfe_u32 v7, v1, 2, 2')
    g('v_lshl_add_u32 v7, v3, 3, v7')
    g('v_lshlrev_b32 v7, 6, v7')
    g('v_and_b32 v8, 3, v1')
    g('v_lshl_add_u32 v7, v8, 3, v7')
    g('s_lshr_b32 s57, s%d, 1' % S_TT64)
    g('s_lshl_b32 s57, s57, 2')
    g('s_and_b32 s58, s%d, 1' % S_TT64)
    g('s_lshl_b32 s58, s58, 1')
    g('s_add_u32 s57, s57, s58')
    g('s_lshr_b32 s58, s14, 1')
    g('s_add_u32 s57, s57, s58')
    g('s_lshl_b32 s57, s57, 7')
    g('s_add_u32 s57, s57, %d' % WS_FO)
    g('v_lshlrev_b32 v8, 3, v2')
    g('v_add_u32 v8, s57, v8')
    poll_flags(g, 8, None, 112, 57)
    stamp(g, 7, 'p3')
    g('s_barrier')
    stamp(g, 6)
    stamp(g, 8, 'p3')
    g('s_lshl_b32 s57, s%d, 2' % S_TT64)
    g('s_add_u32 s57, s57, s14')
    g('s_mul_i32 s57, s57, 14336')
    g('s_add_u32 s57, s57, %d' % WS_O)
    g('v_lshlrev_b32 v8, 4, v1')
    g('v_add_u32 v8, s57, v8')
    OF = 144
    for t in range(14):
        g('buffer_load_dwordx4 %s, v8, %s, s%d offen offset:%d sc1' % (vr(OF + 4 * t, 4), sr(S_WS, 4), 0, 0)) if False else (g('s_movk_i32 s57, %d' % (1024 * t)), g('buffer_load_dwordx4 %s, v8, %s, s57 offen %s' % (vr(OF + 4 * t, 4), sr(S_WS, 4), os.environ.get('PSC', 'sc1'))))
    g('v_lshlrev_b32 v9, 2, v4')
    g('v_add_u32 v9, %d, v9' % WS_G)
    g('buffer_load_dword v14, v9, %s, 0 offen sc1' % sr(S_WS, 4))
    DA = 16
    WFR = 32
    def wreads(t):
        for m in range(4):
            for a in range(2):
                g('ds_read_b64_tr_b16 %s, v7 offset:%d' % (vr(WFR + 16 * (t & 1) + 4 * m + 2 * a, 2), 28672 * (m >> 1) + 2048 * t + 32 * (m & 1) + 256 * a))
    wreads(0)
    for t in range(14):
        if t < 13:
            wreads(t + 1)
            g('s_waitcnt lgkmcnt(8)')
        else:
            g('s_waitcnt lgkmcnt(0)')
        g('s_waitcnt vmcnt(%d)' % (14 - t))
        for m in range(4):
            g('v_mfma_f32_16x16x32_bf16 %s, %s, %s, %s' % (vr(DA + 4 * m, 4), vr(WFR + 16 * (t & 1) + 4 * m, 4), vr(OF + 4 * t, 4), '0' if t == 0 else vr(DA + 4 * m, 4)))
    stamp(g, 7)
    stamp(g, 9, 'p3')
    g('s_lshl_b32 s57, s%d, 2' % S_CG)
    g('s_lshr_b32 s58, s%d, 3' % S_TT64)
    g('s_add_u32 s57, s57, s58')
    g('s_lshl_b32 s57, s57, 8')
    g('s_add_u32 s57, s57, %d' % WS_FY)
    g('v_and_b32 v8, 31, v1')
    g('v_min_u32 v8, 27, v8')
    g('v_lshlrev_b32 v8, 3, v8')
    g('v_add_u32 v8, s57, v8')
    poll_flags(g, 8, None, 112, 57)
    stamp(g, 8)
    g('s_mul_i32 s57, s%d, %d' % (S_CG, 28 * 8192))
    g('s_add_u32 s57, s57, %d' % WS_Y2)
    g('v_lshlrev_b32 v8, 14, v3')
    g('v_lshl_add_u32 v8, v4, 2, v8')
    g('v_add_u32 v8, s57, v8')
    YE = 112
    for m in range(4):
        for k in range(2):
            pr = 14 * (m >> 1) + 8 * (m & 1) + k
            g('s_mov_b32 s57, %d' % (pr * 8192))
            g('buffer_load_dword v%d, v8, %s, s57 offen sc1' % (YE + 2 * m + k, sr(S_WS, 4)))
    srd(g, S_P, P_OUT, 2048 * 896)
    g('v_cmp_eq_u32 vcc, 3, v3')
    g('v_mov_b32 v9, 0x7ffff000')
    g('v_cndmask_b32 v9, v6, v9, vcc')
    g('v_sub_f32 v15, 1.0, v14') if False else None
    g('s_waitcnt vmcnt(0)')
    g('v_sub_f32 v15, 1.0, v14')
    for m in range(4):
        U = 64 + 16 * 0
        for k in range(2):
            g('v_lshlrev_b32 v%d, 16, v%d' % (U + 2 * k, XE + 2 * m + k))
            g('v_and_b32 v%d, 0xffff0000, v%d' % (U + 2 * k + 1, XE + 2 * m + k))
            g('v_lshlrev_b32 v%d, 16, v%d' % (U + 4 + 2 * k, DE + 2 * m + k))
            g('v_and_b32 v%d, 0xffff0000, v%d' % (U + 4 + 2 * k + 1, DE + 2 * m + k))
            g('v_lshlrev_b32 v%d, 16, v%d' % (U + 8 + 2 * k, YE + 2 * m + k))
            g('v_and_b32 v%d, 0xffff0000, v%d' % (U + 8 + 2 * k + 1, YE + 2 * m + k))
        for i in range(4):
            g('v_fma_f32 v%d, v%d, v%d, v%d' % (U + 8 + i, U + i, U + 4 + i, U + 8 + i))
            g('v_mul_f32 v%d, v15, v%d' % (U + 8 + i, U + 8 + i))
            g('v_fma_f32 v%d, v14, v%d, v%d' % (U + 8 + i, DA + 4 * m + i, U + 8 + i))
        g('v_cvt_pk_bf16_f32 v%d, v%d, v%d' % (80 + 2 * m, U + 8, U + 9))
        g('v_cvt_pk_bf16_f32 v%d, v%d, v%d' % (80 + 2 * m + 1, U + 10, U + 11))
        mo = 56 * (m >> 1) + 32 * (m & 1)
        g('buffer_store_dwordx2 %s, v%d, %s, 0 offen offset:%d' % (vr(80 + 2 * m, 2), 9 if (m & 1) else 6, sr(S_P, 4), mo))
    stamp(g, 9)
    if STSET[0] == 'hw':
        stamp(g, 9, 'hw')
        g('s_memtime s[90:91]')
        g('s_waitcnt lgkmcnt(0)')
        g('s_mov_b32 s96, s90')
    stamp_flush(g)
    g('s_endpgm')
```

```python
from common import *
import os
import struct
def f2u(x): return struct.unpack('<I', struct.pack('<f', x))[0]
LOG2E = 1.4426950408889634
L_HI = struct.unpack('<f', struct.pack('<f', LOG2E))[0]
L_LO = LOG2E - L_HI
STG = 8448
ROWS = 528
XC = 33792
CS = 5056
RB = 2688
S_LDS = XC + 8 * CS

def gen_S(g, dbg=False):
    g.label('L_S')
    g.c('---- S type: v0 tid, v1 lane, s14 wave')
    g('s_setprio %s' % os.environ.get('SPRIO', '3'))
    g('s_mul_hi_u32 s50, s2, 0x24924925')
    g('s_mul_i32 s51, s50, 7')
    g('s_sub_u32 s51, s2, s51')
    g('s_mul_i32 s52, s50, 57344')
    g('s_lshl_b32 s53, s51, 7')
    g('s_add_u32 s52, s52, s53')
    g('s_add_u32 s54, s%d, s52' % P_X)
    g('s_addc_u32 s55, s%d, 0' % (P_X + 1))
    g('v_lshrrev_b32 v2, 2, v0')
    g('v_and_b32 v3, 3, v0')
    g('v_mul_u32_u24 v4, 896, v2')
    g('v_lshl_add_u32 v4, v3, 5, v4')
    g('global_load_dwordx4 v[16:19], v4, s[54:55]')
    g('global_load_dwordx4 v[20:23], v4, s[54:55] offset:16')
    g('s_lshl_b32 s57, s2, 10')
    g('v_lshlrev_b32 v5, 2, v0')
    g('v_add_u32 v5, s57, v5')
    for i, p in enumerate((P_ARE, P_AIM, P_BRE, P_BIM, P_CRE, P_CIM)):
        g('global_load_dword v%d, v5, %s' % (32 + i, sr(p, 2)))
    g('s_lshl_b32 s57, s2, 2')
    g('s_load_dword s56, %s, s57' % sr(P_LDT, 2))
    g('v_mov_b32 v254, 0')
    g('global_load_dwordx2 v[252:253], v254, %s sc1' % sr(P_DBG, 2))
    if os.environ.get('CPF', '1') == '1':
        g('v_min_u32 v255, 5, v1')
        g('v_lshlrev_b32 v255, 21, v255')
        g('v_add_u32 v255, 0x1f0000, v255')
        g('buffer_load_dword v230, v255, %s, 0 offen' % sr(S_WS, 4))
    g('v_mul_u32_u24 v6, 144, v2')
    g('v_lshl_add_u32 v6, v3, 5, v6')
    g('v_add_u32 v6, %d, v6' % XC)
    g('v_lshrrev_b32 v2, 4, v1')
    g('v_and_b32 v3, 15, v1')
    g('v_lshrrev_b32 v7, 2, v3')
    g('v_lshl_add_u32 v7, v2, 3, v7')
    g('v_mul_u32_u24 v7, 144, v7')
    g('v_and_b32 v8, 3, v1')
    g('v_lshl_add_u32 v7, v8, 3, v7')
    g('s_lshl_b32 s58, s14, 5')
    g('s_add_u32 s58, s58, %d' % XC)
    g('v_add_u32 v7, s58, v7')
    g('s_lshl_b32 s58, s51, 6')
    g('s_lshl_b32 s59, s14, 4')
    g('s_add_u32 s58, s58, s59')
    g('v_add_u32 v8, s58, v3')
    g('s_movk_i32 s59, %d' % XT_ROW)
    g('v_mul_lo_u32 v8, v8, s59')
    g('s_lshl_b32 s58, s50, 7')
    g('s_add_u32 s58, s58, %d' % (WS_XT + 16))
    g('v_lshl_add_u32 v9, v2, 4, v8')
    g('v_add_u32 v9, s58, v9')
    EA = 244
    g('v_lshlrev_b32 v10, 3, v0')
    for i in range(8):
        g('v_add_u32 v%d, %d, v10' % (110 + i, 7 - i))
    for i in range(8):
        g('v_cvt_f32_u32 v%d, v%d' % (EA + i, 110 + i))
    for i in range(0, 8, 2):
        g('v_cvt_pk_bf16_f32 v%d, v%d, v%d' % (120 + i // 2, EA + i, EA + i + 1))
    g('v_cmp_gt_u32 vcc, 32, v0')
    for i in range(8):
        src = 120 + i // 2
        if i % 2 == 0:
            g('v_and_b32 v%d, 0xffff, v%d' % (EA + i, src))
        else:
            g('v_lshrrev_b32 v%d, 16, v%d' % (EA + i, src))
        g('v_subrev_u32 v%d, 17024, v%d' % (EA + i, EA + i))
        g('v_cndmask_b32 v%d, v%d, v%d, vcc' % (EA + i, EA + i, 110 + i))
        g('v_lshlrev_b32 v%d, 2, v%d' % (EA + i, EA + i))
    g('s_waitcnt vmcnt(%d)' % (8 if os.environ.get('CPF', '1') == '1' else 7))
    g('ds_write_b128 v6, v[16:19]')
    g('ds_write_b128 v6, v[20:23] offset:16')
    g('s_waitcnt lgkmcnt(0)')
    g('s_barrier')
    for m in range(2):
        for a in range(2):
            g('ds_read_b64_tr_b16 %s, v7 offset:%d' % (vr(24 + 4 * m + 2 * a, 2), (32 * m + 4 * a) * 144))
    g('s_waitcnt vmcnt(%d) lgkmcnt(0)' % (2 if os.environ.get('CPF', '1') == '1' else 1))
    g('buffer_store_dwordx4 v[24:27], v9, %s, 0 offen sc1' % sr(S_WS, 4))
    g('buffer_store_dwordx4 v[28:31], v9, %s, 0 offen offset:64 sc1' % sr(S_WS, 4))
    Lz = g.newlabel('L_nz')
    g('s_cmp_lg_u32 s50, 0')
    g('s_cbranch_scc1 %s' % Lz)
    for i in range(4):
        g('v_mov_b32 v%d, 0' % (12 + i))
    g('s_mov_b64 exec, 0xffff')
    g('buffer_store_dwordx4 v[12:15], v8, %s, 0 offen sc1' % sr(S_WS, 4))
    g('s_mov_b64 exec, -1')
    g.label(Lz)
    stamp(g, 1)
    if os.environ.get('SCUT') == '1':
        g('s_endpgm'); return
    def xt_flag():
        if os.environ.get('SCUT') == '3': return
        get_nonce(g, 252, 254, 58, pre=True)
        g('s_lshl_b32 s58, s51, 2')
        g('s_add_u32 s58, s58, s14')
        g('s_lshl_b32 s58, s58, 5')
        g('s_add_u32 s58, s58, s50')
        g('s_lshl_b32 s58, s58, 3')
        g('s_add_u32 s58, s58, %d' % WS_FX)
        g('v_mov_b32 v11, s58')
        set_flag(g, 11, 252)
        g('s_setprio 0')
        stamp(g, 2)
    g.c('K-gen')
    g('s_waitcnt lgkmcnt(0)')
    g('s_lshl_b32 s58, s56, 16')
    g('s_and_b32 s59, s56, 0xffff0000')
    g('s_cmp_ge_u32 s14, 2')
    g('s_cselect_b32 s58, s59, s58')
    DT = 38
    g('v_mov_b32 v40, s58')
    g('v_mul_f32 v41, 0x%x, v40' % f2u(L_HI))
    g('s_mov_b32 s59, 0x%x' % f2u(L_HI))
    g('v_fma_f32 v42, v40, s59, -v41')
    g('v_mul_f32 v43, 0x%x, v40' % f2u(L_LO))
    g('v_add_f32 v42, v42, v43')
    g('v_exp_f32 v41, v41')
    g('v_mul_f32 v42, 0x%x, v42' % f2u(0.6931471805599453))
    g('v_fma_f32 v41, v41, v42, v41')
    g('v_cvt_pk_bf16_f32 v41, v41, v41')
    g('v_lshlrev_b32 v%d, 16, v41' % DT)
    base = {0: 40, 1: 70}
    R = {}
    for m in (0, 1):
        b = base[m]
        R[m] = dict(ar=b, ai=b + 1, B=b + 2, C=b + 4, c=b + 6, t0=b + 8, t1=b + 9, t2=b + 10, t3=b + 11,
                    E1=b + 12, E2=b + 14, E3=b + 16, E4=b + 18, E5=b + 20, E6=b + 22, E7=b + 24, E8=b + 26, L0=b + 28)
    pb = {0: 100, 1: 118}
    for m in (0, 1):
        b = pb[m]
        for i, k in enumerate((128, 256, 384, 512, 640, 768, 896, 1024, 2048)):
            R[m]['E%d' % k] = b + 2 * i
    tmp = {0: [136, 138, 140, 142], 1: [144, 146, 148, 150]}
    pk = [152, 154, 156, 158]; pkc = [0]
    BL = 160; AF = 192; D = [232, 236, 240]
    def unpack(dst, src, m):
        if m == 0: g('v_lshlrev_b32 v%d, 16, v%d' % (dst, src))
        else: g('v_and_b32 v%d, 0xffff0000, v%d' % (dst, src))
    for m in (0, 1):
        r = R[m]
        unpack(r['ar'], 32, m); unpack(r['ai'], 33, m)
        unpack(r['B'], 34, m); unpack(r['B'] + 1, 35, m)
        unpack(r['C'], 36, m); unpack(r['C'] + 1, 37, m)
    for m in (0, 1):
        r = R[m]
        g('v_mul_f32 v%d, v%d, v%d' % (r['ar'], r['ar'], DT))
        g('v_mul_f32 v%d, v%d, v%d' % (r['ai'], r['ai'], DT))
        g('v_mul_f32 v%d, v%d, v%d' % (r['B'], r['B'], DT))
        g('v_mul_f32 v%d, v%d, v%d' % (r['B'] + 1, r['B'] + 1, DT))
    for m in (0, 1):
        r = R[m]
        g('v_mul_f32 v%d, 0x%x, v%d' % (r['ar'], f2u(L_HI), r['ar']))
        g('v_mul_f32 v%d, 0x%x, v%d' % (r['ai'], f2u(0.15915494309189535), r['ai']))
        cmul(g, r['c'], r['C'], r['B'])
    for m in (0, 1):
        cmul2(g, R[m]['c'], R[m]['C'], R[m]['B'])
    def direct(name, k):
        for m in (0, 1):
            r = R[m]
            g('v_mul_f32 v%d, 0x%x, v%d' % (r['t0'], f2u(float(k)), r['ar']))
            g('v_mul_f32 v%d, 0x%x, v%d' % (r['t1'], f2u(float(k)), r['ai']))
        for m in (0, 1):
            r = R[m]
            g('v_exp_f32 v%d, v%d' % (r['t0'], r['t0']))
            g('v_fract_f32 v%d, v%d' % (r['t1'], r['t1']))
        for m in (0, 1):
            r = R[m]
            g('v_cos_f32 v%d, v%d' % (r['t2'], r['t1']))
            g('v_sin_f32 v%d, v%d' % (r['t3'], r['t1']))
        for m in (0, 1):
            r = R[m]
            g('v_pk_mul_f32 %s, %s, %s op_sel_hi:[1,0]' % (vr(r[name], 2), vr(r['t2'], 2), vr(r['t0'], 2)))
    direct('E8', 8); direct('E1', 1); direct('E128', 128)
    g('s_mul_i32 s62, s14, %d' % STG)
    g('v_lshlrev_b32 v12, 3, v1')
    g('v_add_u32 v12, s62, v12')
    g('v_mul_u32_u24 v13, %d, v3' % ROWS)
    g('v_and_b32 v14, 1, v2')
    g('v_lshl_add_u32 v13, v14, 8, v13')
    g('v_lshrrev_b32 v14, 1, v2')
    g('v_lshl_add_u32 v13, v14, 7, v13')
    g('v_add_u32 v13, s62, v13')
    def row(idx, regs, conj):
        t = pk[pkc[0] % 4]; pkc[0] += 1
        for m in (0, 1):
            rr = regs[m]
            if rr == 'one':
                g('v_mov_b32 v%d, 0x3f80' % (t + m))
            else:
                g('v_cvt_pk_bf16_f32 v%d, v%d, %sv%d' % (t + m, rr, '-' if conj else '', rr + 1))
        g('ds_write_b64 v12, %s offset:%d' % (vr(t, 2), idx * ROWS))
    tc = [0]
    def prow(idx, an, bn, conj=True):
        k = tc[0] % 4; tc[0] += 1
        for m in (0, 1): cmul(g, tmp[m][k], R[m][an], R[m][bn])
        for m in (0, 1): cmul2(g, tmp[m][k], R[m][an], R[m][bn])
        row(idx, {0: tmp[0][k], 1: tmp[1][k]}, conj)
    def nrow(idx, an, conj=True):
        row(idx, {0: R[0][an], 1: R[1][an]}, conj)
    nrow(0, 'c', False)
    cur = {0: R[0]['c'], 1: R[1]['c']}
    lt = {0: [R[0]['L0'], R[0]['B']], 1: [R[1]['L0'], R[1]['B']]}
    extra = [('E2', 'E1', 'E1'), ('E256', 'E128', 'E128'), ('E3', 'E2', 'E1'), ('E4', 'E2', 'E2'), ('E384', 'E256', 'E128'), ('E512', 'E256', 'E256'),
             ('E5', 'E4', 'E1'), ('E6', 'E4', 'E2'), ('E7', 'E4', 'E3'), ('E640', 'E512', 'E128'), ('E768', 'E512', 'E256'), ('E896', 'E512', 'E384'),
             ('E1024', 'E512', 'E512'), ('E2048', 'E1024', 'E1024')]
    for w in range(1, 16):
        nx = {m: lt[m][w % 2] for m in (0, 1)}
        for m in (0, 1): cmul(g, nx[m], cur[m], R[m]['E8'])
        if w - 1 < len(extra):
            dn, an, bn = extra[w - 1]
            for m in (0, 1): cmul(g, R[m][dn], R[m][an], R[m][bn])
        for m in (0, 1): cmul2(g, nx[m], cur[m], R[m]['E8'])
        if w - 1 < len(extra):
            for m in (0, 1): cmul2(g, R[m][dn], R[m][an], R[m][bn])
        row(w, nx, False)
        cur = nx
    def reads(dst):
        for t in range(8):
            g('ds_read_b128 %s, v13 offset:%d' % (vr(dst + 4 * t, 4), 16 * t))
    def mfmas(ti, waitn):
        g('s_waitcnt lgkmcnt(%d)' % waitn)
        for t in range(8):
            g('v_mfma_f32_16x16x32_bf16 %s, %s, %s, %s' % (vr(D[ti], 4), vr(AF + 4 * t, 4), vr(BL + 4 * t, 4), '0' if t == 0 else vr(D[ti], 4)))
    reads(BL)
    xt_flag()
    t0rows = [lambda: row(0, {0: 'one', 1: 'one'}, True)] + [(lambda r_=r_: nrow(r_, 'E%d' % r_)) for r_ in range(1, 8)] + \
             [lambda: nrow(8, 'E128')] + [(lambda r_=r_: prow(8 + r_, 'E128', 'E%d' % r_)) for r_ in range(1, 8)]
    t1rows = [lambda: nrow(0, 'E256')] + [(lambda i=i: prow(i, 'E256', 'E%d' % (2 * i))) for i in range(1, 4)] + \
             [lambda: nrow(4, 'E384')] + [(lambda i=i: prow(4 + i, 'E384', 'E%d' % (2 * i))) for i in range(1, 4)]
    for i, k in enumerate((512, 640, 768, 896)):
        t1rows.append(lambda i=i, k=k: nrow(8 + 2 * i, 'E%d' % k))
        t1rows.append(lambda i=i, k=k: prow(9 + 2 * i, 'E%d' % k, 'E4'))
    t2rows = [lambda: nrow(0, 'E1024')] + [(lambda i=i: prow(i, 'E1024', 'E%d' % (128 * i))) for i in range(1, 8)] + [lambda: nrow(8, 'E2048')]
    for f in t0rows: f()
    reads(AF)
    for f in t1rows[:12]: f()
    mfmas(0, 12)
    for f in t1rows[12:]: f()
    reads(AF)
    for f in t2rows: f()
    mfmas(1, 9)
    reads(AF)
    stamp(g, 3)
    if os.environ.get('SCUT') == '3':
        g('s_endpgm'); return
    g.c('poll XT')
    g('s_lshr_b32 s58, s2, 5')
    g('s_bfe_u32 s59, s2, 0x20003')
    g('s_lshl_b32 s58, s58, 2')
    g('s_add_u32 s58, s58, s59')
    g('s_lshl_b32 s58, s58, 8')
    g('s_add_u32 s58, s58, %d' % WS_FX)
    g('v_and_b32 v8, 31, v1')
    g('v_lshlrev_b32 v8, 3, v8')
    g('v_add_u32 v8, s58, v8')
    poll_flags(g, 8, None, 16, 58)
    stamp(g, 4)
    g('s_mul_i32 s58, s2, %d' % (2 * XT_ROW))
    g('s_add_u32 s58, s58, %d' % (WS_XT + 8))
    g('v_lshlrev_b32 v8, 4, v0')
    g('v_add_u32 v8, s58, v8')
    XR = 40
    for c2 in range(2):
        for k, off in enumerate((8, 4, 0)):
            g('buffer_load_dwordx4 %s, v8, %s, 0 offen offset:%d sc1' % (vr(XR + 12 * c2 + 4 * k, 4), sr(S_WS, 4), off + c2 * XT_ROW if False else off) if c2 == 0 else
              'buffer_load_dwordx4 %s, v9, %s, 0 offen offset:%d sc1' % (vr(XR + 12 * c2 + 4 * k, 4), sr(S_WS, 4), off))
        if c2 == 0:
            g('v_add_u32 v9, %d, v8' % XT_ROW)
    g('v_lshrrev_b32 v14, 1, v2')
    g('v_and_b32 v15, 1, v2')
    g('v_lshlrev_b32 v4, 9, v14')
    g('v_lshl_add_u32 v4, v3, 5, v4')
    g('v_lshl_add_u32 v4, v15, 4, v4')
    g('v_add_u32 v4, s62, v4')
    g('v_lshlrev_b32 v5, 8, v2')
    g('v_add_u32 v5, 1024, v5')
    g('v_add_u32 v5, s62, v5')
    g('v_lshl_add_u32 v6, v3, 4, v5')
    g('v_lshl_add_u32 v7, v3, 3, v5')
    g('v_cmp_gt_u32 vcc, 2, v2')
    g('v_cndmask_b32 v5, v7, v6, vcc')
    g('v_add_u32 v6, 8, v5')
    g('v_add_u32 v7, 128, v5')
    g('v_cndmask_b32 v6, v7, v6, vcc')
    g('v_lshlrev_b32 v7, 8, v2')
    g('v_lshl_add_u32 v7, v3, 2, v7')
    g('v_add_u32 v7, 2048, v7')
    g('v_add_u32 v7, s62, v7')
    mfmas(2, 0)
    g('ds_write_b128 v4, %s' % vr(D[0], 4))
    g('ds_write_b64 v5, %s' % vr(D[1], 2))
    g('ds_write_b64 v6, %s' % vr(D[1] + 2, 2))
    for r_ in range(4):
        g('ds_write_b32 v7, v%d offset:%d' % (D[2] + r_, 64 * r_))
    g('s_waitcnt lgkmcnt(0)')
    g('s_barrier')
    g.c('expansion')
    KR = 64
    for ch in range(2):
        for hf in range(2):
            for i in range(8):
                g('ds_read_b32 v%d, v%d offset:%d' % (KR + 16 * ch + 8 * hf + i, EA + i, (2 * ch + hf) * STG))
    g('v_lshlrev_b32 v10, 4, v0')
    g('v_sub_u32 v10, %d, v10' % (RB + 4080))
    for i in range(4):
        g('v_mov_b32 v%d, 0' % (96 + i))
    g('s_mov_b32 s58, 0x%x' % ((1 << 32) // 18 + 1))
    g('v_mul_hi_u32 v11, v0, s58')
    g('v_mul_u32_u24 v12, 18, v11')
    g('v_sub_u32 v12, v0, v12')
    g('v_mul_u32_u24 v11, %d, v11' % CS)
    g('v_lshl_add_u32 v11, v12, 4, v11')
    g('v_lshrrev_b32 v12, 4, v12')
    g('v_lshl_add_u32 v11, v12, 5, v11')
    g('v_add_u32 v11, %d, v11' % XC)
    g('v_subrev_u32 v12, 144, v0')
    g('v_and_b32 v13, 15, v12')
    g('v_lshrrev_b32 v12, 4, v12')
    g('v_mul_u32_u24 v12, %d, v12' % (2 * STG))
    g('v_lshl_add_u32 v12, v13, 4, v12')
    g('v_add_u32 v12, %d, v12' % (RB + 4096))
    g('v_cmp_gt_u32 vcc, 144, v0')
    g('v_cndmask_b32 v11, v12, v11, vcc')
    g('v_cmp_gt_u32 vcc, 176, v0')
    g('s_and_saveexec_b64 s[58:59], vcc')
    Lq = g.newlabel('L_zq')
    g('s_cbranch_execz %s' % Lq)
    g('ds_write_b128 v11, v[96:99]')
    g.label(Lq)
    g('s_mov_b64 exec, s[58:59]')
    g('v_lshlrev_b32 v11, 3, v0')
    g('v_add_u32 v11, 144, v11')
    g('v_lshrrev_b32 v12, 7, v11')
    g('v_lshlrev_b32 v11, 1, v11')
    g('v_lshl_add_u32 v11, v12, 5, v11')
    g('v_add_u32 v11, %d, v11' % XC)
    g('s_waitcnt lgkmcnt(0)')
    for ch in range(2):
        for i in range(8):
            g('v_add_f32 v%d, v%d, v%d' % (KR + 16 * ch + i, KR + 16 * ch + i, KR + 16 * ch + 8 + i))
        for i in range(0, 8, 2):
            g('v_cvt_pk_bf16_f32 v%d, v%d, v%d' % (100 + 4 * ch + i // 2, KR + 16 * ch + i, KR + 16 * ch + i + 1))
        g('ds_write_b128 v10, %s offset:%d' % (vr(100 + 4 * ch, 4), ch * 2 * STG))
    g('s_waitcnt vmcnt(0)')
    for ch in range(2):
        A = XR + 12 * ch; B = A + 4; C = A + 8
        c1 = 108 + 8 * ch; c3 = c1 + 4
        for k in range(4):
            g('v_alignbit_b32 v%d, v%d, v%d, 16' % (c1 + k, A + k, B + k))
            g('v_alignbit_b32 v%d, v%d, v%d, 16' % (c3 + k, B + k, C + k))
        g('ds_write_b128 v11, %s offset:%d' % (vr(A, 4), (4 * ch + 0) * CS))
        g('ds_write_b128 v11, %s offset:%d' % (vr(c1, 4), (4 * ch + 1) * CS))
        g('ds_write_b128 v11, %s offset:%d' % (vr(B, 4), (4 * ch + 2) * CS))
        g('ds_write_b128 v11, %s offset:%d' % (vr(c3, 4), (4 * ch + 3) * CS))
    g.c('conv')
    g('s_lshr_b32 s58, s14, 1')
    g('s_and_b32 s59, s14, 1')
    g('s_mul_i32 s60, s58, %d' % (2 * STG))
    g('s_lshl_b32 s61, s59, 8')
    g('s_sub_u32 s60, s60, s61')
    g('s_add_u32 s60, s60, %d' % (RB + 4272 - 3584))
    g('v_sub_u32 v4, v2, v3')
    g('v_lshlrev_b32 v4, 4, v4')
    g('v_add_u32 v4, s60, v4')
    g('v_lshrrev_b32 v5, 3, v3')
    g('v_lshlrev_b32 v5, 7, v5')
    g('v_lshl_add_u32 v5, v2, 3, v5')
    g('v_and_b32 v6, 4, v3')
    g('v_add_u32 v5, v5, v6')
    g('s_lshl_b32 s61, s59, 7')
    g('s_sub_u32 s61, 236, s61')
    g('v_add_u32 v5, s61, v5')
    g('v_and_b32 v6, 3, v3')
    g('v_sub_u32 v6, 3, v6')
    g('v_mul_u32_u24 v6, %d, v6' % CS)
    g('s_mul_i32 s61, s58, %d' % (4 * CS))
    g('s_add_u32 s61, s61, %d' % XC)
    g('v_add_u32 v6, s61, v6')
    g('s_waitcnt lgkmcnt(0)')
    g('s_barrier')
    stamp(g, 5)
    ACC = 16; F = 48; GG = 80
    for i in range(32):
        g('v_mov_b32 v%d, 0' % (ACC + i))
    SETS = [(48, 80), (112, 144)]
    def rd_list(st):
        F_, G_ = SETS[st]
        out = []
        out.append('v_lshrrev_b32 v7, 7, v5'); out.append('v_lshlrev_b32 v8, 1, v5'); out.append('v_lshl_add_u32 v7, v7, 5, v8'); out.append('v_add_u32 v7, v6, v7')
        out.append('v_add_u32 v8, 4, v5'); out.append('v_lshrrev_b32 v9, 7, v8'); out.append('v_lshlrev_b32 v8, 1, v8'); out.append('v_lshl_add_u32 v8, v9, 5, v8'); out.append('v_add_u32 v8, v6, v8')
        out.append('ds_read_b128 %s, v4 offset:%d' % (vr(F_, 4), 512 * 7))
        for w in range(8):
            out.append('ds_read_b64 %s, v7 offset:%d' % (vr(G_ + 4 * w, 2), 576 * w))
            out.append('ds_read_b64 %s, v8 offset:%d' % (vr(G_ + 4 * w + 2, 2), 576 * w))
        for v in range(1, 8):
            out.append('ds_read_b128 %s, v4 offset:%d' % (vr(F_ + 4 * v, 4), 512 * (7 - v)))
        out.append('v_subrev_u32 v4, 64, v4'); out.append('v_subrev_u32 v5, 32, v5')
        return out
    def mf_list(st):
        F_, G_ = SETS[st]
        return ['v_mfma_f32_16x16x32_bf16 %s, %s, %s, %s' % (vr(ACC + 4 * (v + w), 4), vr(G_ + 4 * w, 4), vr(F_ + 4 * v, 4), vr(ACC + 4 * (v + w), 4))
                for v in range(8) for w in range(8 - v)]
    for l in rd_list(0): g(l)
    for rr in range(4):
        g('s_waitcnt lgkmcnt(0)')
        m_ = mf_list(rr & 1)
        r_ = rd_list((rr + 1) & 1) if rr < 3 else []
        k = 0
        for i, l in enumerate(m_):
            g(l)
            while k < len(r_) and k < (i + 1) * 2:
                g(r_[k]); k += 1
    stamp(g, 6)
    g('s_barrier')
    g('v_lshrrev_b32 v14, 1, v2')
    g('v_and_b32 v15, 1, v2')
    g('v_lshlrev_b32 v4, 9, v14')
    g('v_lshl_add_u32 v4, v3, 5, v4')
    g('v_lshl_add_u32 v4, v15, 4, v4')
    g('s_lshl_b32 s58, s14, 13')
    g('s_add_u32 s58, s58, %d' % XC)
    g('v_add_u32 v4, s58, v4')
    for ct in range(8):
        g('ds_write_b128 v4, %s offset:%d' % (vr(ACC + 4 * ct, 4), 1024 * ct))
    g('s_waitcnt lgkmcnt(0)')
    g('s_barrier')
    g('v_lshlrev_b32 v4, 5, v0')
    g('v_add_u32 v4, %d, v4' % XC)
    for a_ in range(4):
        g('ds_read_b128 %s, v4 offset:%d' % (vr(48 + 8 * a_, 4), 8192 * a_))
        g('ds_read_b128 %s, v4 offset:%d' % (vr(52 + 8 * a_, 4), 8192 * a_ + 16))
    g('s_lshl_b32 s58, s2, 13')
    g('s_add_u32 s58, s58, %d' % WS_Y2)
    g('v_lshlrev_b32 v5, 5, v0')
    g('v_add_u32 v5, s58, v5')
    g('s_waitcnt lgkmcnt(0)')
    for i in range(8):
        g('v_add_f32 v%d, v%d, v%d' % (48 + i, 48 + i, 56 + i))
        g('v_add_f32 v%d, v%d, v%d' % (64 + i, 64 + i, 72 + i))
    for i in range(8):
        g('v_cvt_pk_bf16_f32 v%d, v%d, v%d' % (80 + i, 48 + i, 64 + i))
    g('buffer_store_dwordx4 v[80:83], v5, %s, 0 offen sc1' % sr(S_WS, 4))
    g('buffer_store_dwordx4 v[84:87], v5, %s, 0 offen offset:16 sc1' % sr(S_WS, 4))
    g('s_mov_b32 s58, 0x%x' % ((1 << 32) // 28 + 1))
    g('s_mul_hi_u32 s59, s2, s58')
    g('s_mul_i32 s60, s59, 28')
    g('s_sub_u32 s60, s2, s60')
    g('s_lshl_b32 s59, s59, 2')
    g('s_add_u32 s59, s59, s14')
    g('s_lshl_b32 s59, s59, 5')
    g('s_add_u32 s59, s59, s60')
    g('s_lshl_b32 s59, s59, 3')
    g('s_add_u32 s59, s59, %d' % WS_FY)
    g('v_mov_b32 v6, s59')
    g('s_waitcnt vmcnt(0)')
    stamp(g, 7)
    set_flag(g, 6, 8)
    stamp(g, 8)
    stamp(g, 9)
    stamp_flush(g)
    g('s_endpgm')
```

```python
import sys
sys.path.insert(0, 'g')
from common import *
import gen_s
def build(with_a=True):
    g = G()
    g('s_load_dwordx16 s[16:31], s[0:1], 0')
    g('s_load_dwordx16 s[32:47], s[0:1], 64')
    g('s_load_dwordx2 s[48:49], s[0:1], 128')
    g('v_lshrrev_b32 v1, 6, v0')
    g('s_cmp_ge_u32 s2, %d' % (NS + NA))
    g('s_cbranch_scc1 L_exit')
    g('v_readfirstlane_b32 s14, v1')
    g('v_and_b32 v1, 63, v0')
    g('s_waitcnt lgkmcnt(0)')
    stamp(g, 0, STSET[0])
    if STSET[0] == 'hw':
        g('s_getreg_b32 s93, hwreg(HW_REG_HW_ID)')
        g('s_getreg_b32 s94, hwreg(HW_REG_XCC_ID)')
        g('s_memtime s[90:91]')
        g('s_waitcnt lgkmcnt(0)')
        g('s_mov_b32 s95, s90')
    g('s_mov_b32 s4, s48')
    g('s_mov_b32 s5, s49')
    g('s_mov_b32 s6, 0x2000000')
    g('s_mov_b32 s7, 0x00020000')
    g('s_or_b32 s58, s2, s14')
    g('s_cmp_lg_u32 s58, 0')
    g('s_cbranch_scc1 L_nn')
    g('s_memrealtime s[60:61]')
    g('s_waitcnt lgkmcnt(0)')
    g('s_or_b32 s60, s60, 1')
    g('s_mov_b32 s12, s60')
    g('s_mov_b32 s13, s61')
    g('v_mov_b32 v6, s60')
    g('v_mov_b32 v7, s61')
    g('v_mov_b32 v8, 0')
    g('global_store_dwordx2 v8, v[6:7], %s sc0 sc1' % sr(P_DBG, 2))
    g.label('L_nn')
    g('s_cmp_ge_u32 s2, %d' % NS)
    g('s_cbranch_scc1 L_A')
    if '--nos' in sys.argv:
        g('s_endpgm')
    else:
        gen_s.gen_S(g)
    g.label('L_A')
    if with_a:
        import gen_a
        gen_a.gen_A(g)
    g.label('L_exit')
    g('s_endpgm')
    g.label('L_end')
    body = '\n'.join(fix_hazards(g.lines))
    lds = 81920
    hdr = open('gated_mix__linear_kernel_hedgehog__ssm_conv_s4__prompt.s.ref').read().split('\n')
    com = [l for l in hdr if l.startswith(';') and '@launch' not in l]
    out = '\n'.join(com) + '\n; @launch grid=(%d,1,1) block=(256,1,1) lds=%d\n' % (NS + NA, lds)
    out += '''.amdgcn_target "amdgcn-amd-amdhsa--gfx950"
.text
.globl %s
.p2align 8
.type %s,@function
%s:
%s
.section .rodata,"a"
.p2align 6
.amdhsa_kernel %s
  .amdhsa_next_free_vgpr 256
  .amdhsa_next_free_sgpr 102
  .amdhsa_accum_offset 256
  .amdhsa_group_segment_fixed_size 0
  .amdhsa_kernarg_size 136
  .amdhsa_user_sgpr_count 2
  .amdhsa_user_sgpr_kernarg_segment_ptr 1
  .amdhsa_system_sgpr_workgroup_id_x 1
.end_amdhsa_kernel
''' % (KNAME, KNAME, KNAME, body, KNAME)
    return out
if __name__ == '__main__':
    with_a = '--noa' not in sys.argv
    STAMPS[0] = '--stamps' in sys.argv
    for a_ in sys.argv:
        if a_.startswith('--stset='): STSET[0] = a_.split('=')[1]
    out = build(with_a)
    fn = [a for a in sys.argv[1:] if not a.startswith('--')][0]
    open(fn, 'w').write(out)
    print('lines', out.count('\n'))
```

```python
from common import *
import os
import struct
def f2u(x): return struct.unpack('<I', struct.pack('<f', x))[0]
L2E = f2u(1.4426950408889634); LN2 = f2u(0.6931471805599453)
WK = 0; WV = 28672; WQ = 57344; WQ6 = 53248; RED = 0; KVX = 61440
XF = 144
S_W = 64
S_P = 68
S_UP = 72
S_L28 = 74
S_F28 = 76
S_TT = 78; S_H = 79; S_L2E = 80; S_LN2 = 81; S_TT64 = 82; S_CG = 83

def srd(g, s, ptr, nbytes):
    g('s_mov_b32 s%d, s%d' % (s, ptr)); g('s_mov_b32 s%d, s%d' % (s + 1, ptr + 1))
    g('s_mov_b32 s%d, %d' % (s + 2, nbytes)); g('s_mov_b32 s%d, 0x00020000' % (s + 3))

def softmax_stats(g, DP, T, want_c):
    MX, MN, SP, SM, A, B, TM, TN = T, T + 1, T + 2, T + 3, T + 4, T + 5, T + 6, T + 7
    EP = T + 8; EM = T + 24
    for i in range(12, 16):
        g('v_cndmask_b32 v%d, v%d, v%d, %s' % (DP + i, DP + i, DP + 11, sr(S_UP, 2)))
    g('v_max3_f32 v%d, v%d, v%d, v%d' % (MX, DP, DP + 1, DP + 2))
    g('v_min3_f32 v%d, v%d, v%d, v%d' % (MN, DP, DP + 1, DP + 2))
    for i in range(3, 15, 2):
        g('v_max3_f32 v%d, v%d, v%d, v%d' % (MX, MX, DP + i, DP + i + 1))
        g('v_min3_f32 v%d, v%d, v%d, v%d' % (MN, MN, DP + i, DP + i + 1))
    g('v_max_f32 v%d, v%d, v%d' % (MX, MX, DP + 15))
    g('v_min_f32 v%d, v%d, v%d' % (MN, MN, DP + 15))
    g('v_mov_b32 v%d, v%d' % (A, MX)); g('v_mov_b32 v%d, v%d' % (B, MX))
    g('v_mov_b32 v%d, v%d' % (TM, MN)); g('v_mov_b32 v%d, v%d' % (TN, MN))
    g('v_permlane32_swap_b32 v%d, v%d' % (A, B))
    g('v_permlane32_swap_b32 v%d, v%d' % (TM, TN))
    g('v_max_f32 v%d, v%d, v%d' % (MX, A, B))
    g('v_min_f32 v%d, v%d, v%d' % (MN, TM, TN))
    g('v_mul_f32 v%d, s%d, v%d' % (TM, S_L2E, MX))
    g('v_mul_f32 v%d, s%d, v%d' % (TN, S_L2E, MN))
    for i in range(16):
        g('v_fma_f32 v%d, v%d, s%d, -v%d' % (EP + i, DP + i, S_L2E, TM))
        g('v_fma_f32 v%d, -v%d, s%d, v%d' % (EM + i, DP + i, S_L2E, TN))
    for i in range(16):
        g('v_exp_f32 v%d, v%d' % (EP + i, EP + i))
        g('v_exp_f32 v%d, v%d' % (EM + i, EM + i))
    for i in range(12, 16):
        g('v_cndmask_b32 v%d, v%d, 0, %s' % (EP + i, EP + i, sr(S_UP, 2)))
        g('v_cndmask_b32 v%d, v%d, 0, %s' % (EM + i, EM + i, sr(S_UP, 2)))
    g('v_add_f32 v%d, v%d, v%d' % (SP, EP, EP + 1)); g('v_add_f32 v%d, v%d, v%d' % (SM, EM, EM + 1))
    g('v_add_f32 v%d, v%d, v%d' % (A, EP + 2, EP + 3)); g('v_add_f32 v%d, v%d, v%d' % (B, EM + 2, EM + 3))
    for i in range(4, 16, 2):
        g('v_add_f32 v%d, v%d, v%d' % (SP, SP, EP + i)); g('v_add_f32 v%d, v%d, v%d' % (SM, SM, EM + i))
        g('v_add_f32 v%d, v%d, v%d' % (A, A, EP + i + 1)); g('v_add_f32 v%d, v%d, v%d' % (B, B, EM + i + 1))
    g('v_add_f32 v%d, v%d, v%d' % (SP, SP, A)); g('v_add_f32 v%d, v%d, v%d' % (SM, SM, B))
    g('v_mov_b32 v%d, v%d' % (A, SP)); g('v_mov_b32 v%d, v%d' % (B, SP))
    g('v_mov_b32 v%d, v%d' % (TM, SM)); g('v_mov_b32 v%d, v%d' % (TN, SM))
    g('v_permlane32_swap_b32 v%d, v%d' % (A, B))
    g('v_permlane32_swap_b32 v%d, v%d' % (TM, TN))
    g('v_add_f32 v%d, v%d, v%d' % (SP, A, B))
    g('v_add_f32 v%d, v%d, v%d' % (SM, TM, TN))
    return MX, MN, SP, SM, EP, EM

def gen_A(g, stage=99):
    g.c('---- A type')
    g('s_setprio %s' % os.environ.get('AP1', '1'))
    g('s_sub_u32 s50, s2, %d' % NS)
    g('s_and_b32 s51, s50, 7')
    g('s_lshr_b32 s52, s50, 3')
    g('s_and_b32 s53, s51, 3')
    g('s_lshl_b32 s53, s53, 2')
    g('s_and_b32 s54, s52, 3')
    g('s_add_u32 s%d, s53, s54' % S_TT)
    g('s_lshr_b32 s53, s51, 2')
    g('s_lshl_b32 s53, s53, 3')
    g('s_lshr_b32 s54, s52, 2')
    g('s_add_u32 s%d, s53, s54' % S_H)
    g('s_and_b32 s%d, s52, 7' % S_CG)
    g('s_lshl_b32 s53, s51, 2')
    g('s_lshr_b32 s54, s52, 3')
    g('s_add_u32 s%d, s53, s54' % S_TT64)
    srd(g, S_W, P_WQKV, 448 * 2688)
    g('v_and_b32 v2, 31, v1')
    g('v_lshrrev_b32 v3, 5, v1')
    g('s_lshl_b32 s53, s%d, 7' % S_TT)
    g('s_lshl_b32 s54, s14, 5')
    g('s_add_u32 s53, s53, s54')
    g('v_and_b32 v4, 3, v1')
    g('v_bfe_u32 v5, v1, 2, 3')
    g('v_lshl_add_u32 v9, v4, 3, v5')
    g('v_add_u32 v5, s53, v5')
    g('v_mul_u32_u24 v5, 896, v5')
    g('v_lshl_add_u32 v5, v3, 6, v5')
    g('v_lshl_add_u32 v5, v4, 4, v5')
    g('v_add_u32 v4, s53, v9')
    g('v_add_u32 v140, %d, v5' % (8 * 896))
    g('v_add_u32 v141, %d, v5' % (16 * 896))
    g('v_add_u32 v142, %d, v5' % (24 * 896))
    g('v_lshrrev_b32 v6, 2, v1')
    g('v_and_b32 v7, 3, v1')
    g('v_mul_u32_u24 v8, 2688, v6')
    g('v_lshl_add_u32 v8, v7, 4, v8')
    g('s_mul_i32 s53, s%d, 56' % S_H)
    g('v_add_u32 v8, s53, v8')
    g('s_mul_i32 s55, s14, %d' % (16 * 2688))
    g('s_lshl_b32 s56, s14, 10')
    W0 = 64; W1 = 68
    XO = (5, 140, 141, 142)
    ROT = os.environ.get('ROT', '1') == '1'
    g('s_mul_i32 s63, s52, 37')
    g('s_lshr_b32 s63, s63, 8')
    g('s_mul_i32 s63, s63, 7')
    g('s_sub_u32 s63, s52, s63')
    if not ROT: g('s_mov_b32 s63, 0')
    g('s_mov_b32 s62, s63')
    srd(g, S_P, P_X, 2048 * 896)
    def adv():
        g('s_add_u32 s62, s62, 1')
        g('s_cmp_eq_u32 s62, 7')
        g('s_cselect_b32 s62, 0, s62')
    def issue_w(c):
        g('s_mul_i32 s58, s62, %d' % (64 * 2688))
        g('s_add_u32 s58, s58, s55')
        g('s_add_u32 s57, s58, 896')
        g('s_add_u32 m0, s56, %d' % (WK + c * 4096))
        g('s_add_u32 s58, s58, 1792')
        g('buffer_load_dwordx4 v8, %s, s57 offen lds' % sr(S_W, 4))
        g('s_add_u32 m0, s56, %d' % (WV + c * 4096))
        adv()
        g('buffer_load_dwordx4 v8, %s, s58 offen lds' % sr(S_W, 4))
    def issue_chunk(c):
        g('s_lshl_b32 s57, s62, 7')
        for i in range(4):
            g('buffer_load_dwordx4 %s, v%d, %s, s57 offen' % (vr(XF + 16 * c + 4 * i, 4), XO[i], sr(S_P, 4)))
    def issue_wq(c):
        if c == 0: g('s_mov_b32 s62, s63')
        g('s_mul_i32 s57, s62, %d' % (64 * 2688))
        g('s_add_u32 s57, s57, s55')
        g('s_add_u32 m0, s56, %d' % ((WQ + c * 4096) if c < 6 else WQ6))
        adv()
        g('buffer_load_dwordx4 v8, %s, s57 offen lds' % sr(S_W, 4))
    PD = int(os.environ.get('PD', '3'))
    for c in range(PD):
        issue_chunk(c); issue_w(c)
    def small_loads():
        srd(g, S_P, P_WPHI, 16 * 784 * 2)
        g('s_mul_i32 s53, s%d, 784' % S_H)
        g('v_mul_u32_u24 v9, 112, v3')
        g('v_add_u32 v9, v9, v2')
        g('v_add_u32 v9, s53, v9')
        g('v_lshlrev_b32 v9, 1, v9')
        g('v_cmp_lt_u32 vcc, 27, v2')
        g('s_mov_b64 %s, vcc' % sr(S_F28, 2))
        g('v_mov_b32 v10, 0x7ffff000')
        g('v_cndmask_b32 v9, v9, v10, vcc')
        W0 = 64; W1 = 68
        for tp in range(2):
            for j in range(8):
                d = 16 * tp + 8 * (j >> 2) + (j & 3)
                g('buffer_load_ushort v%d, v9, %s, 0 offen offset:%d' % (48 + 8 * tp + j, sr(S_P, 4), d * 56))
        srd(g, S_P + 16, P_GW, 896)
        g('v_lshrrev_b32 v10, 4, v1')
        g('v_and_b32 v14, 15, v1')
        g('s_lshl_b32 s53, s14, 4')
        g('v_add_u32 v14, s53, v14')
        g('v_lshl_add_u32 v143, v10, 6, v14')
        g('v_lshlrev_b32 v143, 1, v143')
        for i in range(2):
            g('v_add_u32 v15, s63, v10')
            if i: g('v_add_u32 v15, 4, v15')
            g('v_subrev_u32 v9, 7, v15')
            g('v_cmp_gt_u32 vcc, 7, v15')
            g('v_cndmask_b32 v15, v9, v15, vcc')
            g('v_lshl_add_u32 v15, v15, 6, v14')
            g('v_lshlrev_b32 v15, 1, v15')
            g('buffer_load_ushort v%d, v15, %s, 0 offen' % (12 + i, sr(S_P + 16, 4)))
        if os.environ.get('TLBW', '1') == '1':
            g('v_min_u32 v14, 5, v1')
            g('v_lshlrev_b32 v14, 21, v14')
            g('v_add_u32 v14, 0x1f0000, v14')
            g('buffer_load_dword v15, v14, %s, 0 offen' % sr(S_WS, 4))
            g('v_mov_b32 v14, 0')
            g('global_load_dword v15, v14, %s' % sr(P_OUT, 2))
            g('global_load_dword v15, v14, %s' % sr(P_WO, 2))
    NPRE = 42 + 16 + 2
    stamp(g, 1, 'p1')
    g('s_mov_b32 s%d, 0' % S_UP); g('s_mov_b32 s%d, -1' % (S_UP + 1))
    g('s_mov_b32 s%d, 0x10000000' % S_L28); g('s_mov_b32 s%d, 0x10000000' % (S_L28 + 1))
    g('s_mov_b32 s%d, 0x%x' % (S_L2E, L2E)); g('s_mov_b32 s%d, 0x%x' % (S_LN2, LN2))
    g('v_lshrrev_b32 v10, 4, v1')
    g('v_bfe_u32 v11, v1, 2, 2')
    g('v_lshl_add_u32 v11, v3, 5, v11')
    g('v_lshlrev_b32 v11, 6, v11')
    g('v_and_b32 v14, 1, v10')
    g('v_lshl_add_u32 v11, v14, 5, v11')
    g('v_lshl_add_u32 v11, v7, 3, v11')
    DK = 16; DV = 32; WF = 96
    def mf(c):
        for tq in range(4):
            t = 4 * c + tq
            g('v_mfma_f32_32x32x16_bf16 %s, %s, %s, %s' % (vr(DK, 16), vr(WF + 8 * tq, 4), vr(XF + 4 * t, 4), '0' if t == 0 else vr(DK, 16)))
            g('v_mfma_f32_32x32x16_bf16 %s, %s, %s, %s' % (vr(DV, 16), vr(XF + 4 * t, 4), vr(WF + 8 * tq + 4, 4), '0' if t == 0 else vr(DV, 16)))
    seq = []
    for c in range(PD): seq += [c] * 6
    WFB = (64, 96)
    TT = 128
    def waitx(c):
        last = max(i for i, x in enumerate(seq) if x == c)
        g('s_waitcnt vmcnt(%d)' % (len(seq) - 1 - last))
    def stA(c):
        R = [XF + 16 * c + 4 * i for i in range(4)]
        o = []
        d1 = 'quad_perm:[1,0,3,2] row_mask:0xf bank_mask:0xf'; d2 = 'quad_perm:[2,3,0,1] row_mask:0xf bank_mask:0xf'
        def setv(m): o.append('s_mov_b32 vcc_lo, 0x%x' % m); o.append('s_mov_b32 vcc_hi, 0x%x' % m)
        setv(0x55555555)
        for d in range(4): o.append('v_cndmask_b32_dpp v%d, v%d, v%d, vcc %s' % (TT + d, R[1] + d, R[0] + d, d1))
        for d in range(4): o.append('v_cndmask_b32_dpp v%d, v%d, v%d, vcc %s' % (TT + 4 + d, R[3] + d, R[2] + d, d1))
        setv(0xaaaaaaaa)
        for d in range(4): o.append('v_cndmask_b32_dpp v%d, v%d, v%d, vcc %s' % (R[1] + d, R[0] + d, R[1] + d, d1))
        for d in range(4): o.append('v_cndmask_b32_dpp v%d, v%d, v%d, vcc %s' % (R[3] + d, R[2] + d, R[3] + d, d1))
        setv(0x33333333)
        for d in range(4): o.append('v_cndmask_b32_dpp v%d, v%d, v%d, vcc %s' % (R[0] + d, TT + 4 + d, TT + d, d2))
        setv(0xcccccccc)
        for d in range(4): o.append('v_cndmask_b32_dpp v%d, v%d, v%d, vcc %s' % (R[2] + d, TT + d, TT + 4 + d, d2))
        for d in range(4): o.append('v_cndmask_b32_dpp v%d, v%d, v%d, vcc %s' % (TT + d, R[1] + d, R[3] + d, d2))
        setv(0x33333333)
        for d in range(4): o.append('v_cndmask_b32_dpp v%d, v%d, v%d, vcc %s' % (R[1] + d, R[3] + d, R[1] + d, d2))
        for d in range(4): o.append('v_mov_b32 v%d, v%d' % (R[3] + d, TT + d))
        return o
    def stB(c):
        out = []
        for tq in range(4):
            t = 4 * c + tq
            for sg, segb in ((0, WK), (1, WV)):
                for a_ in range(2):
                    out.append('ds_read_b64_tr_b16 %s, v11 offset:%d' % (vr(WFB[c & 1] + 8 * tq + 4 * sg + 2 * a_, 2), segb + 4096 * c + 512 * tq + 256 * a_))
        return out
    def stC(c):
        out = []
        W_ = WFB[c & 1]
        for tq in range(4):
            t = 4 * c + tq
            out.append('v_mfma_f32_32x32x16_bf16 %s, %s, %s, %s' % (vr(DK, 16), vr(W_ + 8 * tq, 4), vr(XF + 4 * t, 4), '0' if t == 0 else vr(DK, 16)))
            out.append('v_mfma_f32_32x32x16_bf16 %s, %s, %s, %s' % (vr(DV, 16), vr(XF + 4 * t, 4), vr(W_ + 8 * tq + 4, 4), '0' if t == 0 else vr(DV, 16)))
        return out
    def more(c):
        if c < 7:
            issue_chunk(c); issue_w(c); seq.extend([c] * 6)
        if c == 6:
            small_loads(); seq.extend([99] * (21 if os.environ.get('TLBW', '1') == '1' else 18))
    waitx(0)
    g('s_barrier')
    for l in stB(0): g(l)
    for l in stA(0): g(l)
    if PD == 7:
        small_loads(); seq.extend([99] * (21 if os.environ.get('TLBW', '1') == '1' else 18))
    for c in range(7):
        stamp(g, 2 + c, 'p1')
        ra = []; rb = []
        if c + 1 < 7:
            waitx(c + 1)
            g('s_barrier')
            ra = stA(c + 1); rb = stB(c + 1)
        g('s_waitcnt lgkmcnt(0)')
        na = (len(ra) + 7) // 8
        for i, l in enumerate(stC(c)):
            g(l)
            for r_ in rb[2 * i:2 * i + 2]: g(r_)
            for r_ in ra[na * i:na * i + na]: g(r_)
        if c + PD < 7: more(c + PD)
        if c >= 4:
            issue_wq(2 * (c - 4)); issue_wq(2 * (c - 4) + 1); seq.extend([98] * 2)
    stamp(g, 1)
    stamp(g, 9, 'p1')
    g('s_waitcnt vmcnt(6)')
    g('s_setprio %s' % os.environ.get('AP2', '2'))
    g('v_mov_b32 v94, 0')
    g('global_load_dwordx2 v[92:93], v94, %s sc0 sc1' % sr(P_DBG, 2))
    W1Z = 72; W1P = 76; W0N = 80; W1N = 84
    g('v_mov_b32 v14, 0x3f803f80')
    g('v_mov_b32 v15, 0x80008000')
    for i in range(8):
        g('v_lshl_or_b32 v%d, v%d, 16, v%d' % (W0 + i, 48 + 2 * i + 1, 48 + 2 * i))
    for i in range(8):
        g('v_cndmask_b32 v%d, v%d, 0, %s' % (W0 + i, W0 + i, sr(S_F28, 2)))
    for i in range(4):
        g('v_xor_b32 v%d, v15, v%d' % (W0N + i, W0 + i))
        g('v_xor_b32 v%d, v15, v%d' % (W1N + i, W1 + i))
    for i in range(2):
        for dst in (W1Z, W1P):
            g('v_mov_b32 v%d, v%d' % (dst + i, W1 + i))
    g('v_cndmask_b32 v%d, v%d, 0, %s' % (W1Z + 2, W1 + 2, sr(S_UP, 2)))
    g('v_cndmask_b32 v%d, v%d, 0, %s' % (W1Z + 3, W1 + 3, sr(S_UP, 2)))
    g('v_cndmask_b32 v%d, v%d, v14, %s' % (W1P + 2, W1 + 2, sr(S_UP, 2)))
    g('v_cndmask_b32 v%d, v%d, 0, %s' % (W1P + 3, W1 + 3, sr(S_UP, 2)))
    g('v_cndmask_b32 v%d, v%d, 0, %s' % (W1N + 2, W1N + 2, sr(S_UP, 2)))
    g('v_cndmask_b32 v%d, v%d, v14, %s' % (W1N + 3, W1N + 3, sr(S_UP, 2)))
    KB = 48; VB = 56; DP = 16; T = 96
    for i in range(8):
        g('v_cvt_pk_bf16_f32 v%d, v%d, v%d' % (KB + i, DK + 2 * i, DK + 2 * i + 1))
    for i in range(8):
        g('v_cvt_pk_bf16_f32 v%d, v%d, v%d' % (VB + i, DV + 2 * i, DV + 2 * i + 1))
    g('v_mfma_f32_32x32x16_bf16 %s, %s, %s, 0' % (vr(DP, 16), vr(W0, 4), vr(KB, 4)))
    g('v_mfma_f32_32x32x16_bf16 %s, %s, %s, %s' % (vr(DP, 16), vr(W1Z, 4), vr(KB + 4, 4), vr(DP, 16)))
    for i in range(8):
        g('v_cndmask_b32 v%d, v%d, v14, %s' % (VB + i, VB + i, sr(S_L28, 2)))
    MX, MN, SP, SM, EP, EM = softmax_stats(g, DP, T, True)
    A_, B_ = T + 4, T + 5
    g('v_log_f32 v%d, v%d' % (SP, SP)); g('v_log_f32 v%d, v%d' % (SM, SM))
    g('v_fma_f32 v%d, -v%d, s%d, -v%d' % (SP, SP, S_LN2, MX))
    g('v_fma_f32 v%d, -v%d, s%d, v%d' % (SM, SM, S_LN2, MN))
    for r_, tmp in ((SP, A_), (SM, B_)):
        g('v_cvt_pk_bf16_f32 v%d, v%d, v%d' % (tmp, r_, r_))
        g('v_lshlrev_b32 v%d, 16, v%d' % (tmp, tmp))
        g('v_sub_f32 v%d, v%d, v%d' % (tmp, r_, tmp))
        g('v_cvt_pk_bf16_f32 v%d, v%d, v%d' % (tmp, r_, tmp))
    g('v_cndmask_b32 v%d, v%d, v%d, %s' % (KB + 6, KB + 6, A_, sr(S_UP, 2)))
    g('v_cndmask_b32 v%d, v%d, v%d, %s' % (KB + 7, KB + 7, B_, sr(S_UP, 2)))
    DPP = 16; DPM = 32
    g('v_mfma_f32_32x32x16_bf16 %s, %s, %s, 0' % (vr(DPP, 16), vr(KB, 4), vr(W0, 4)))
    g('v_mfma_f32_32x32x16_bf16 %s, %s, %s, 0' % (vr(DPM, 16), vr(KB, 4), vr(W0N, 4)))
    g('v_mfma_f32_32x32x16_bf16 %s, %s, %s, %s' % (vr(DPP, 16), vr(KB + 4, 4), vr(W1P, 4), vr(DPP, 16)))
    g('v_mfma_f32_32x32x16_bf16 %s, %s, %s, %s' % (vr(DPM, 16), vr(KB + 4, 4), vr(W1N, 4), vr(DPM, 16)))
    for i in range(16):
        g('v_mul_f32 v%d, s%d, v%d' % (DPP + i, S_L2E, DPP + i))
    for i in range(16):
        g('v_exp_f32 v%d, v%d' % (DPP + i, DPP + i))
        g('v_mul_f32 v%d, s%d, v%d' % (DPM + i, S_L2E, DPM + i))
    for i in range(16):
        g('v_exp_f32 v%d, v%d' % (DPM + i, DPM + i))
    PH = 96
    for i in range(8):
        g('v_cvt_pk_bf16_f32 v%d, v%d, v%d' % (PH + i, DPP + 2 * i, DPP + 2 * i + 1))
    for i in range(8):
        g('v_cvt_pk_bf16_f32 v%d, v%d, v%d' % (PH + 8 + i, DPM + 2 * i, DPM + 2 * i + 1))
    KVP_ = 16; KVM = 32
    g('v_mfma_f32_32x32x16_bf16 %s, %s, %s, 0' % (vr(KVP_, 16), vr(PH, 4), vr(VB, 4)))
    g('v_mfma_f32_32x32x16_bf16 %s, %s, %s, 0' % (vr(KVM, 16), vr(PH + 8, 4), vr(VB, 4)))
    g('v_mfma_f32_32x32x16_bf16 %s, %s, %s, %s' % (vr(KVP_, 16), vr(PH + 4, 4), vr(VB + 4, 4), vr(KVP_, 16)))
    g('v_mfma_f32_32x32x16_bf16 %s, %s, %s, %s' % (vr(KVM, 16), vr(PH + 12, 4), vr(VB + 4, 4), vr(KVM, 16)))
    g('s_barrier')
    g('s_lshl_b32 s57, s14, 13')
    g('s_add_u32 s57, s57, %d' % RED)
    g('v_lshlrev_b32 v14, 4, v1')
    g('v_add_u32 v15, s57, v14')
    for gq in range(8):
        g('ds_write_b128 v15, %s offset:%d' % (vr(16 + 4 * gq, 4), 1024 * gq))
    g('s_waitcnt lgkmcnt(0)')
    g('s_barrier')
    g('s_lshl_b32 s57, s14, 11')
    g('s_add_u32 s57, s57, %d' % RED)
    g('v_add_u32 v15, s57, v14')
    for wv in range(4):
        for k in range(2):
            g('ds_read_b128 %s, v15 offset:%d' % (vr(96 + 8 * wv + 4 * k, 4), 8192 * wv + 1024 * k))
    g('s_lshl_b32 s57, s%d, 4' % S_H)
    g('s_add_u32 s57, s57, s%d' % S_TT)
    g('s_lshl_b32 s57, s57, 2')
    g('s_add_u32 s57, s57, s14')
    g('s_lshl_b32 s57, s57, 10')
    g('s_add_u32 s57, s57, %d' % WS_KVP)
    g('v_add_u32 v15, s57, v14')
    g('s_waitcnt lgkmcnt(0)')
    for i in range(8):
        g('v_add_f32 v%d, v%d, v%d' % (96 + i, 96 + i, 104 + i))
        g('v_add_f32 v%d, v%d, v%d' % (112 + i, 112 + i, 120 + i))
    for i in range(8):
        g('v_add_f32 v%d, v%d, v%d' % (96 + i, 96 + i, 112 + i))
    for i in range(4):
        g('v_cvt_pk_bf16_f32 v%d, v%d, v%d' % (104 + i, 96 + 2 * i, 97 + 2 * i))
    g('buffer_store_dwordx4 v[104:107], v15, %s, 0 offen sc1' % sr(S_WS, 4))
    issue_wq(6)
    get_nonce(g, 92, 94, 57, pre=True, cnt=1)
    g('s_lshl_b32 s57, s%d, 2' % S_H)
    g('s_add_u32 s57, s57, s14')
    g('s_lshl_b32 s57, s57, 4')
    g('s_add_u32 s58, s57, s%d' % S_TT)
    g('s_lshl_b32 s58, s58, 3')
    g('s_add_u32 s58, s58, %d' % WS_FK)
    g('v_mov_b32 v15, s58')
    set_flag(g, 15, 96)
    stamp(g, 2)
    g('s_lshl_b32 s%d, s57, 3' % 88)
    g('s_waitcnt vmcnt(1)')
    g('v_lshlrev_b32 v14, 5, v143')
    g('ds_write_b16 v14, v12 offset:%d' % (WQ + 56))
    g('v_add_u32 v15, %d, v14' % (256 * 64 + WQ + 56))
    g('v_add_u32 v10, %d, v14' % (256 * 64 - 384 * 64 + WQ6 + 56))
    g('v_cmp_gt_u32 vcc, 32, v1')
    g('v_cndmask_b32 v15, v10, v15, vcc')
    g('v_cmp_gt_u32 vcc, 48, v1')
    g('s_and_saveexec_b64 s[58:59], vcc')
    g('ds_write_b16 v15, v13')
    g('s_mov_b64 exec, s[58:59]')
    g('s_waitcnt lgkmcnt(0)')
    g('s_barrier')
    DQ = 16; WF = 88
    g('v_add_u32 v10, %d, v11' % WQ)
    for grp in range(4):
        for tq in range(7):
            t = 7 * grp + tq
            for a in range(2):
                g('ds_read_b64_tr_b16 %s, v%d offset:%d' % (vr(WF + (28 * (grp & 1)) + 4 * tq + 2 * a, 2), 10 if t < 24 else 11, (4096 * (t >> 2) if t < 24 else WQ6) + 512 * (t & 3) + 256 * a))
        if grp > 0:
            pg = grp - 1
            for tq in range(7):
                t = 7 * pg + tq
                if tq == 0: g('s_waitcnt lgkmcnt(14)')
                g('v_mfma_f32_32x32x16_bf16 %s, %s, %s, %s' % (vr(DQ, 16), vr(WF + 28 * (pg & 1) + 4 * tq, 4), vr(XF + 4 * t, 4), '0' if t == 0 else vr(DQ, 16)))
    g('s_waitcnt lgkmcnt(0)')
    for tq in range(7):
        t = 21 + tq
        g('v_mfma_f32_32x32x16_bf16 %s, %s, %s, %s' % (vr(DQ, 16), vr(WF + 28 + 4 * tq, 4), vr(XF + 4 * t, 4), vr(DQ, 16)))
    g('s_barrier')
    QB = 48
    g('v_mov_b32 v14, v%d' % (DQ + 12))
    for i in range(8):
        g('v_cvt_pk_bf16_f32 v%d, v%d, v%d' % (QB + i, DQ + 2 * i, DQ + 2 * i + 1))
    g('v_mfma_f32_32x32x16_bf16 %s, %s, %s, 0' % (vr(DP, 16), vr(W0, 4), vr(QB, 4)))
    g('v_mfma_f32_32x32x16_bf16 %s, %s, %s, %s' % (vr(DP, 16), vr(W1Z, 4), vr(QB + 4, 4), vr(DP, 16)))
    g('v_mul_f32 v14, s%d, v14' % S_L2E)
    g('v_exp_f32 v14, -v14')
    g('v_add_f32 v14, 1.0, v14')
    g('v_rcp_f32 v14, v14')
    Lg = g.newlabel('L_ng')
    g('s_cmp_lg_u32 s%d, 0' % S_H)
    g('s_cbranch_scc1 %s' % Lg)
    g('v_lshlrev_b32 v15, 2, v4')
    g('v_add_u32 v15, %d, v15' % WS_G)
    g('s_mov_b64 exec, %s' % sr(S_UP, 2))
    g('buffer_store_dword v14, v15, %s, 0 offen sc1' % sr(S_WS, 4))
    g('s_mov_b64 exec, -1')
    g.label(Lg)
    MX, MN, SP, SM, EP, EM = softmax_stats(g, DP, T, False)
    g('v_rcp_f32 v%d, v%d' % (SP, SP)); g('v_rcp_f32 v%d, v%d' % (SM, SM))
    for i in range(16):
        g('v_mul_f32 v%d, v%d, v%d' % (EP + i, EP + i, SP))
        g('v_mul_f32 v%d, v%d, v%d' % (EM + i, EM + i, SM))
    PQ = 48
    for i in range(8):
        g('v_cvt_pk_bf16_f32 v%d, v%d, v%d' % (PQ + i, EP + 2 * i, EP + 2 * i + 1))
        g('v_cvt_pk_bf16_f32 v%d, v%d, v%d' % (PQ + 8 + i, EM + 2 * i, EM + 2 * i + 1))
    SEL = 64
    g('v_lshrrev_b32 v8, 3, v2')
    g('v_bfe_u32 v9, v2, 2, 1')
    g('v_and_b32 v10, 3, v2')
    g('v_lshrrev_b32 v12, 1, v10')
    g('v_lshl_add_u32 v12, v8, 1, v12')
    g('v_and_b32 v13, 1, v10')
    g('v_mov_b32 v14, 0x3f80')
    g('v_mov_b32 v15, 0x3f800000')
    g('v_cmp_eq_u32 vcc, 1, v13')
    g('v_cndmask_b32 v13, v14, v15, vcc')
    g('v_cmp_eq_u32 vcc, v9, v3')
    g('v_cndmask_b32 v13, 0, v13, vcc')
    for i in range(4):
        g('v_cmp_eq_u32 vcc, %d, v12' % i)
        g('v_cndmask_b32 v%d, 0, v13, vcc' % (SEL + i))
    stamp(g, 3)
    g('v_and_b32 v8, 15, v1')
    g('v_lshlrev_b32 v8, 3, v8')
    g('s_add_u32 s57, s88, %d' % WS_FK)
    g('v_add_u32 v8, s57, v8')
    poll_flags(g, 8, None, 96, 57)
    stamp(g, 4)
    stamp(g, 1, 'p3')
    g('s_lshl_b32 s57, s%d, 6' % S_H)
    g('s_add_u32 s57, s57, s14')
    g('s_lshl_b32 s57, s57, 10')
    g('s_add_u32 s57, s57, %d' % WS_KVP)
    g('v_lshlrev_b32 v9, 4, v1')
    g('v_add_u32 v8, s57, v9')
    PL = 144
    PSC = os.environ.get('PSC', 'sc1')
    for j in range(16):
        g('s_mov_b32 s57, %d' % (j * 4096))
        g('buffer_load_dwordx4 %s, v8, %s, s57 offen %s' % (vr(PL + 4 * j, 4), sr(S_WS, 4), PSC))
    DS_ = 16
    stamp(g, 2, 'p3')
    for j in range(16):
        g('s_waitcnt vmcnt(%d)' % (15 - j))
        g('v_mfma_f32_32x32x16_bf16 %s, %s, %s, %s' % (vr(DS_, 16), vr(SEL, 4), vr(PL + 4 * j, 4), '0' if j == 0 else vr(DS_, 16)))
    for i in range(4):
        g('v_cvt_pk_bf16_f32 v%d, v%d, v%d' % (96 + i, DS_ + 2 * i, DS_ + 2 * i + 1))
    g('s_lshl_b32 s57, s14, 10')
    g('s_add_u32 s57, s57, %d' % KVX)
    g('v_add_u32 v8, s57, v9')
    stamp(g, 3, 'p3')
    g('ds_write_b128 v8, v[96:99]')
    g('s_waitcnt lgkmcnt(0)')
    g('s_barrier')
    stamp(g, 4, 'p3')
    g('v_add_u32 v8, %d, v9' % KVX)
    KF = 100
    for t in range(4):
        g('ds_read_b128 %s, v8 offset:%d' % (vr(KF + 4 * t, 4), 1024 * t))
    DO = 16
    for t in range(4):
        g('s_waitcnt lgkmcnt(%d)' % (3 - t))
        g('v_mfma_f32_32x32x16_bf16 %s, %s, %s, %s' % (vr(DO, 16), vr(KF + 4 * t, 4), vr(PQ + 4 * t, 4), '0' if t == 0 else vr(DO, 16)))
    g('v_mov_b32 v8, v%d' % (DO + 12)); g('v_mov_b32 v9, v%d' % (DO + 12))
    g('v_permlane32_swap_b32 v8, v9')
    g('v_add_f32 v9, 0x%x, v9' % f2u(1e-6))
    g('v_rcp_f32 v9, v9')
    for i in range(16):
        g('v_mul_f32 v%d, v%d, v9' % (DO + i, DO + i))
    for i in range(8):
        g('v_cvt_pk_bf16_f32 v%d, v%d, v%d' % (96 + i, DO + 2 * i, DO + 2 * i + 1))
    g('v_cndmask_b32 v102, v102, 0, %s' % sr(S_UP, 2))
    g('v_cndmask_b32 v103, v103, 0, %s' % sr(S_UP, 2))
    g('s_lshl_b32 s57, s%d, 2' % S_TT)
    g('s_add_u32 s57, s57, s14')
    g('s_lshl_b32 s57, s57, 15')
    g('s_lshl_b32 s58, s%d, 10' % S_H)
    g('s_add_u32 s57, s57, s58')
    g('s_add_u32 s57, s57, %d' % WS_O)
    g('v_lshrrev_b32 v8, 4, v2')
    g('v_lshlrev_b32 v8, 14, v8')
    g('v_lshl_add_u32 v8, v3, 8, v8')
    g('v_and_b32 v10, 15, v2')
    g('v_lshl_add_u32 v8, v10, 4, v8')
    g('v_add_u32 v8, s57, v8')
    g('buffer_store_dwordx4 v[96:99], v8, %s, 0 offen sc1' % sr(S_WS, 4))
    g('buffer_store_dwordx4 v[100:103], v8, %s, 0 offen offset:512 sc1' % sr(S_WS, 4))
    stamp(g, 5, 'p3')
    g('s_lshl_b32 s57, s%d, 2' % S_TT)
    g('s_add_u32 s57, s57, s14')
    g('s_lshl_b32 s57, s57, 4')
    g('s_add_u32 s57, s57, s%d' % S_H)
    g('s_lshl_b32 s57, s57, 3')
    g('s_add_u32 s57, s57, %d' % WS_FO)
    g('v_mov_b32 v15, s57')
    g('s_waitcnt vmcnt(0)')
    set_flag(g, 15, 96)
    stamp(g, 5)
    stamp(g, 6, 'p3')
    srd(g, S_P, P_WO, 448 * 896)
    g('v_lshrrev_b32 v6, 2, v1')
    g('v_and_b32 v7, 3, v1')
    g('v_mul_u32_u24 v9, 896, v6')
    g('v_lshl_add_u32 v9, v7, 4, v9')
    g('s_mul_i32 s53, s%d, 112' % S_CG)
    g('v_add_u32 v9, s53, v9')
    g('s_mul_i32 s55, s14, %d' % (16 * 896))
    for c in range(7):
        for sg in range(2):
            g('s_add_u32 s57, s55, %d' % (c * 64 * 896 + 56 * sg))
            g('s_add_u32 m0, s56, %d' % (28672 * sg + c * 4096))
            g('s_nop 0')
            g('buffer_load_dwordx4 v9, %s, s57 offen lds' % sr(S_P, 4))
    g('v_and_b32 v2, 15, v1')
    g('v_lshrrev_b32 v3, 4, v1')
    g('s_lshl_b32 s57, s%d, 6' % S_TT64)
    g('s_lshr_b32 s58, s14, 1')
    g('s_lshl_b32 s58, s58, 5')
    g('s_add_u32 s57, s57, s58')
    g('s_and_b32 s58, s14, 1')
    g('s_lshl_b32 s58, s58, 2')
    g('s_add_u32 s57, s57, s58')
    g('v_and_b32 v4, 3, v2')
    g('v_lshlrev_b32 v4, 3, v4')
    g('v_lshrrev_b32 v8, 2, v2')
    g('v_add3_u32 v4, v4, v8, s57')
    srd(g, S_P, P_X, 2048 * 896)
    srd(g, S_W, P_DSK, 896)
    g('s_mul_i32 s58, s%d, 112' % S_CG)
    g('v_lshlrev_b32 v5, 3, v3')
    g('v_add_u32 v5, s58, v5')
    g('v_mul_u32_u24 v6, 896, v4')
    g('v_add_u32 v6, v6, v5')
    XE = 96; DE = 104
    for m in range(4):
        mo = 56 * (m >> 1) + 32 * (m & 1)
        g('buffer_load_dwordx2 %s, v6, %s, 0 offen offset:%d' % (vr(XE + 2 * m, 2), sr(S_P, 4), mo))
        g('buffer_load_dwordx2 %s, v5, %s, 0 offen offset:%d' % (vr(DE + 2 * m, 2), sr(S_W, 4), mo))
    g('v_bfe_u32 v7, v1, 2, 2')
    g('v_lshrrev_b32 v8, 1, v3')
    g('v_lshl_add_u32 v7, v8, 4, v7')
    g('v_and_b32 v8, 1, v3')
    g('v_lshl_add_u32 v7, v8, 2, v7')
    g('v_lshlrev_b32 v7, 6, v7')
    g('v_and_b32 v8, 3, v1')
    g('v_lshl_add_u32 v7, v8, 3, v7')
    g('s_lshr_b32 s57, s%d, 1' % S_TT64)
    g('s_lshl_b32 s57, s57, 2')
    g('s_and_b32 s58, s%d, 1' % S_TT64)
    g('s_lshl_b32 s58, s58, 1')
    g('s_add_u32 s57, s57, s58')
    g('s_lshr_b32 s58, s14, 1')
    g('s_add_u32 s57, s57, s58')
    g('s_lshl_b32 s57, s57, 7')
    g('s_add_u32 s57, s57, %d' % WS_FO)
    g('v_lshlrev_b32 v8, 3, v2')
    g('v_add_u32 v8, s57, v8')
    g('s_lshl_b32 s57, s%d, 2' % S_CG)
    g('s_lshr_b32 s58, s%d, 3' % S_TT64)
    g('s_add_u32 s57, s57, s58')
    g('s_lshl_b32 s57, s57, 8')
    g('s_add_u32 s57, s57, %d' % WS_FY)
    g('v_and_b32 v10, 31, v1')
    g('v_min_u32 v10, 27, v10')
    g('v_lshlrev_b32 v10, 3, v10')
    g('v_add_u32 v10, s57, v10')
    if os.environ.get('COMB', '0') == '1': g('v_cndmask_b32 v8, v8, v10, %s' % sr(S_UP, 2))
    Lp = g.newlabel('L_pfo'); Lpd = g.newlabel('L_pfod')
    g('s_mov_b32 s57, 0')
    g.label(Lp)
    g('buffer_load_dwordx2 v[112:113], v8, %s, 0 offen sc1' % sr(S_WS, 4))
    g('s_waitcnt vmcnt(0)')
    g('v_cmp_eq_u64 vcc, %s, v[112:113]' % sr(S_NONCE, 2))
    g('s_cmp_eq_u32 vcc_lo, -1')
    g('s_cbranch_scc1 %s' % Lpd)
    g('s_add_u32 s57, s57, 1')
    g('s_cmp_ge_u32 s57, 200000')
    g('s_cbranch_scc1 %s' % Lpd)
    g('s_sleep 1')
    g('s_branch %s' % Lp)
    g.label(Lpd)
    if os.environ.get('COMB', '0') == '1': g('s_mov_b32 s89, vcc_hi')
    else: g('s_mov_b32 s89, 0')
    g('s_mul_i32 s57, s%d, %d' % (S_CG, 28 * 8192))
    g('s_add_u32 s57, s57, %d' % WS_Y2)
    g('v_lshlrev_b32 v12, 14, v3')
    g('v_lshl_add_u32 v12, v4, 2, v12')
    g('v_add_u32 v12, s57, v12')
    YE = 112
    def yloads():
        for m in range(4):
            for k in range(2):
                pr = 14 * (m >> 1) + 8 * (m & 1) + k
                g('s_mov_b32 s57, %d' % (pr * 8192))
                g('buffer_load_dword v%d, v12, %s, s57 offen sc1' % (YE + 2 * m + k, sr(S_WS, 4)))
    Ly = g.newlabel('L_ny')
    g('s_cmp_lg_u32 s89, -1')
    g('s_cbranch_scc1 %s' % Ly)
    yloads()
    g.label(Ly)
    stamp(g, 7, 'p3')
    stamp(g, 6)
    g('s_lshl_b32 s57, s%d, 2' % S_TT64)
    g('s_add_u32 s57, s57, s14')
    g('s_lshl_b32 s57, s57, 14')
    g('s_add_u32 s57, s57, %d' % WS_O)
    g('v_lshlrev_b32 v8, 4, v1')
    g('v_add_u32 v8, s57, v8')
    OF = 144
    for t in range(16):
        g('s_movk_i32 s57, %d' % (1024 * t))
        g('buffer_load_dwordx4 %s, v8, %s, s57 offen sc1' % (vr(OF + 4 * t, 4), sr(S_WS, 4)))
    g('v_lshlrev_b32 v9, 2, v4')
    g('v_add_u32 v9, %d, v9' % WS_G)
    g('buffer_load_dword v14, v9, %s, 0 offen sc1' % sr(S_WS, 4))
    g('s_barrier')
    stamp(g, 8, 'p3')
    DA = 16
    WFR = 32
    def wreads(t):
        for m in range(4):
            for a in range(2):
                g('ds_read_b64_tr_b16 %s, v7 offset:%d' % (vr(WFR + 16 * (t & 1) + 4 * m + 2 * a, 2), 28672 * (m >> 1) + (28 * t + 8 * a) * 64 + 32 * (m & 1)))
    wreads(0)
    for t in range(16):
        if t < 15:
            wreads(t + 1)
            g('s_waitcnt lgkmcnt(8)')
        else:
            g('s_waitcnt lgkmcnt(0)')
        g('s_waitcnt vmcnt(%d)' % (16 - t))
        for m in range(4):
            g('v_mfma_f32_16x16x32_bf16 %s, %s, %s, %s' % (vr(DA + 4 * m, 4), vr(WFR + 16 * (t & 1) + 4 * m, 4), vr(OF + 4 * t, 4), '0' if t == 0 else vr(DA + 4 * m, 4)))
    stamp(g, 7)
    stamp(g, 9, 'p3')
    Ly2 = g.newlabel('L_ny2')
    g('s_cmp_eq_u32 s89, -1')
    g('s_cbranch_scc1 %s' % Ly2)
    poll_flags(g, 10, None, 120, 57)
    yloads()
    g.label(Ly2)
    stamp(g, 8)
    srd(g, S_P, P_OUT, 2048 * 896)
    g('v_cmp_eq_u32 vcc, 3, v3')
    g('v_mov_b32 v9, 0x7ffff000')
    g('v_cndmask_b32 v9, v6, v9, vcc')
    g('v_sub_f32 v15, 1.0, v14') if False else None
    g('s_waitcnt vmcnt(0)')
    g('v_sub_f32 v15, 1.0, v14')
    for m in range(4):
        U = 64 + 16 * 0
        for k in range(2):
            g('v_lshlrev_b32 v%d, 16, v%d' % (U + 2 * k, XE + 2 * m + k))
            g('v_and_b32 v%d, 0xffff0000, v%d' % (U + 2 * k + 1, XE + 2 * m + k))
            g('v_lshlrev_b32 v%d, 16, v%d' % (U + 4 + 2 * k, DE + 2 * m + k))
            g('v_and_b32 v%d, 0xffff0000, v%d' % (U + 4 + 2 * k + 1, DE + 2 * m + k))
            g('v_lshlrev_b32 v%d, 16, v%d' % (U + 8 + 2 * k, YE + 2 * m + k))
            g('v_and_b32 v%d, 0xffff0000, v%d' % (U + 8 + 2 * k + 1, YE + 2 * m + k))
        for i in range(4):
            g('v_fma_f32 v%d, v%d, v%d, v%d' % (U + 8 + i, U + i, U + 4 + i, U + 8 + i))
            g('v_mul_f32 v%d, v15, v%d' % (U + 8 + i, U + 8 + i))
            g('v_fma_f32 v%d, v14, v%d, v%d' % (U + 8 + i, DA + 4 * m + i, U + 8 + i))
        g('v_cvt_pk_bf16_f32 v%d, v%d, v%d' % (80 + 2 * m, U + 8, U + 9))
        g('v_cvt_pk_bf16_f32 v%d, v%d, v%d' % (80 + 2 * m + 1, U + 10, U + 11))
        mo = 56 * (m >> 1) + 32 * (m & 1)
        g('buffer_store_dwordx2 %s, v%d, %s, 0 offen offset:%d' % (vr(80 + 2 * m, 2), 9 if (m & 1) else 6, sr(S_P, 4), mo))
    stamp(g, 9)
    if STSET[0] == 'hw':
        stamp(g, 9, 'hw')
        g('s_memtime s[90:91]')
        g('s_waitcnt lgkmcnt(0)')
        g('s_mov_b32 s96, s90')
    stamp_flush(g)
    g('s_endpgm')
```

```python
from common import *
import os
import struct
def f2u(x): return struct.unpack('<I', struct.pack('<f', x))[0]
LOG2E = 1.4426950408889634
L_HI = struct.unpack('<f', struct.pack('<f', LOG2E))[0]
L_LO = LOG2E - L_HI
STG = 8448
ROWS = 528
XC = 33792
CS = 5056
RB = 2688
S_LDS = XC + 8 * CS

def gen_S(g, dbg=False):
    g.label('L_S')
    g.c('---- S type: v0 tid, v1 lane, s14 wave')
    g('s_setprio %s' % os.environ.get('SPRIO', '3'))
    g('s_mul_hi_u32 s50, s2, 0x24924925')
    g('s_mul_i32 s51, s50, 7')
    g('s_sub_u32 s51, s2, s51')
    g('s_mul_i32 s52, s50, 57344')
    g('s_lshl_b32 s53, s51, 7')
    g('s_add_u32 s52, s52, s53')
    g('s_add_u32 s54, s%d, s52' % P_X)
    g('s_addc_u32 s55, s%d, 0' % (P_X + 1))
    g('v_lshrrev_b32 v2, 2, v0')
    g('v_and_b32 v3, 3, v0')
    g('v_mul_u32_u24 v4, 896, v2')
    g('v_lshl_add_u32 v4, v3, 5, v4')
    g('global_load_dwordx4 v[16:19], v4, s[54:55]')
    g('global_load_dwordx4 v[20:23], v4, s[54:55] offset:16')
    g('s_lshl_b32 s57, s2, 10')
    g('v_lshlrev_b32 v5, 2, v0')
    g('v_add_u32 v5, s57, v5')
    for i, p in enumerate((P_ARE, P_AIM, P_BRE, P_BIM, P_CRE, P_CIM)):
        g('global_load_dword v%d, v5, %s' % (32 + i, sr(p, 2)))
    g('s_lshl_b32 s57, s2, 2')
    g('s_load_dword s56, %s, s57' % sr(P_LDT, 2))
    g('v_mov_b32 v254, 0')
    g('global_load_dwordx2 v[252:253], v254, %s sc0 sc1' % sr(P_DBG, 2))
    if os.environ.get('CPF', '1') == '1':
        g('v_min_u32 v255, 5, v1')
        g('v_lshlrev_b32 v255, 21, v255')
        g('v_add_u32 v255, 0x1f0000, v255')
        g('buffer_load_dword v230, v255, %s, 0 offen' % sr(S_WS, 4))
    if os.environ.get('L2PF', '1') == '1':
        g('s_and_b32 s58, s2, 7')
        g('s_lshr_b32 s59, s2, 3')
        g('s_lshl_b32 s59, s59, 2')
        g('s_add_u32 s59, s59, s14')
        g('s_and_b32 s60, s58, 3')
        g('s_mul_i32 s60, s60, 458752')
        g('s_lshl_b32 s61, s59, 12')
        g('s_add_u32 s60, s60, s61')
        g('v_lshlrev_b32 v226, 4, v1')
        g('v_add_u32 v226, s60, v226')
        for i in range(4):
            g('global_load_dwordx4 v[228:231], v226, %s offset:%d' % (sr(P_X, 2), 1024 * i))
        g('s_lshr_b32 s60, s58, 2')
        g('s_mul_i32 s60, s60, 448')
        g('s_mul_i32 s61, s59, %d' % (4 * 2688))
        g('s_add_u32 s60, s60, s61')
        g('s_add_u32 s60, s60, 896')
        g('v_lshrrev_b32 v226, 5, v1')
        g('v_mul_u32_u24 v226, 896, v226')
        g('v_and_b32 v227, 31, v1')
        g('v_min_u32 v227, 27, v227')
        g('v_lshl_add_u32 v226, v227, 4, v226')
        g('v_add_u32 v226, s60, v226')
        for i in range(4):
            g('v_add_u32 v227, %d, v226' % (2688 * i))
            g('global_load_dwordx4 v[228:231], v227, %s' % sr(P_WQKV, 2))
    g('v_mul_u32_u24 v6, 144, v2')
    g('v_lshl_add_u32 v6, v3, 5, v6')
    g('v_add_u32 v6, %d, v6' % XC)
    g('v_lshrrev_b32 v2, 4, v1')
    g('v_and_b32 v3, 15, v1')
    g('v_lshrrev_b32 v7, 2, v3')
    g('v_lshl_add_u32 v7, v2, 3, v7')
    g('v_mul_u32_u24 v7, 144, v7')
    g('v_and_b32 v8, 3, v1')
    g('v_lshl_add_u32 v7, v8, 3, v7')
    g('s_lshl_b32 s58, s14, 5')
    g('s_add_u32 s58, s58, %d' % XC)
    g('v_add_u32 v7, s58, v7')
    g('s_lshl_b32 s58, s51, 6')
    g('s_lshl_b32 s59, s14, 4')
    g('s_add_u32 s58, s58, s59')
    g('v_add_u32 v8, s58, v3')
    g('s_movk_i32 s59, %d' % XT_ROW)
    g('v_mul_lo_u32 v8, v8, s59')
    g('s_lshl_b32 s58, s50, 7')
    g('s_add_u32 s58, s58, %d' % (WS_XT + 16))
    g('v_lshl_add_u32 v9, v2, 4, v8')
    g('v_add_u32 v9, s58, v9')
    EA = 244
    g('v_lshlrev_b32 v10, 3, v0')
    for i in range(8):
        g('v_add_u32 v%d, %d, v10' % (110 + i, 7 - i))
    for i in range(8):
        g('v_cvt_f32_u32 v%d, v%d' % (EA + i, 110 + i))
    for i in range(0, 8, 2):
        g('v_cvt_pk_bf16_f32 v%d, v%d, v%d' % (120 + i // 2, EA + i, EA + i + 1))
    g('v_cmp_gt_u32 vcc, 32, v0')
    for i in range(8):
        src = 120 + i // 2
        if i % 2 == 0:
            g('v_and_b32 v%d, 0xffff, v%d' % (EA + i, src))
        else:
            g('v_lshrrev_b32 v%d, 16, v%d' % (EA + i, src))
        g('v_subrev_u32 v%d, 17024, v%d' % (EA + i, EA + i))
        g('v_cndmask_b32 v%d, v%d, v%d, vcc' % (EA + i, EA + i, 110 + i))
        g('v_lshlrev_b32 v%d, 2, v%d' % (EA + i, EA + i))
    g('s_waitcnt vmcnt(%d)' % ((8 if os.environ.get('CPF', '1') == '1' else 7) + (8 if os.environ.get('L2PF', '1') == '1' else 0)))
    g('ds_write_b128 v6, v[16:19]')
    g('ds_write_b128 v6, v[20:23] offset:16')
    g('s_waitcnt lgkmcnt(0)')
    g('s_barrier')
    for m in range(2):
        for a in range(2):
            g('ds_read_b64_tr_b16 %s, v7 offset:%d' % (vr(24 + 4 * m + 2 * a, 2), (32 * m + 4 * a) * 144))
    g('s_waitcnt vmcnt(%d) lgkmcnt(0)' % ((2 if os.environ.get('CPF', '1') == '1' else 1) + (8 if os.environ.get('L2PF', '1') == '1' else 0)))
    g('buffer_store_dwordx4 v[24:27], v9, %s, 0 offen sc1' % sr(S_WS, 4))
    g('buffer_store_dwordx4 v[28:31], v9, %s, 0 offen offset:64 sc1' % sr(S_WS, 4))
    Lz = g.newlabel('L_nz')
    g('s_cmp_lg_u32 s50, 0')
    g('s_cbranch_scc1 %s' % Lz)
    for i in range(4):
        g('v_mov_b32 v%d, 0' % (12 + i))
    g('s_mov_b64 exec, 0xffff')
    g('buffer_store_dwordx4 v[12:15], v8, %s, 0 offen sc1' % sr(S_WS, 4))
    g('s_mov_b64 exec, -1')
    g.label(Lz)
    stamp(g, 1)
    if os.environ.get('SCUT') == '1':
        g('s_endpgm'); return
    def renonce():
        Lr = g.newlabel('L_rn')
        g('s_or_b32 s58, s2, s14')
        g('s_cmp_lg_u32 s58, 0')
        g('s_cbranch_scc1 %s' % Lr)
        g('v_mov_b32 v252, s%d' % S_NONCE)
        g('v_mov_b32 v253, s%d' % (S_NONCE + 1))
        g('global_store_dwordx2 v254, v[252:253], %s sc0 sc1' % sr(P_DBG, 2))
        g.label(Lr)
    def xt_flag():
        if os.environ.get('SCUT') == '3': return
        Lw = g.newlabel('L_w0'); Lw2 = g.newlabel('L_w0d')
        g('s_or_b32 s58, s2, s14')
        g('s_cmp_eq_u32 s58, 0')
        g('s_cbranch_scc1 %s' % Lw)
        get_nonce(g, 252, 254, 58, pre=True)
        g('s_branch %s' % Lw2)
        g.label(Lw)
        g('s_waitcnt vmcnt(0)')
        g.label(Lw2)
        g('s_lshl_b32 s58, s51, 2')
        g('s_add_u32 s58, s58, s14')
        g('s_lshl_b32 s58, s58, 5')
        g('s_add_u32 s58, s58, s50')
        g('s_lshl_b32 s58, s58, 3')
        g('s_add_u32 s58, s58, %d' % WS_FX)
        g('v_mov_b32 v11, s58')
        set_flag(g, 11, 252)
        renonce()
        g('s_setprio %s' % os.environ.get('SP2', '0'))
        stamp(g, 2)
    g.c('K-gen')
    g('s_waitcnt lgkmcnt(0)')
    g('s_lshl_b32 s58, s56, 16')
    g('s_and_b32 s59, s56, 0xffff0000')
    g('s_cmp_ge_u32 s14, 2')
    g('s_cselect_b32 s58, s59, s58')
    DT = 38
    g('v_mov_b32 v40, s58')
    g('v_mul_f32 v41, 0x%x, v40' % f2u(L_HI))
    g('s_mov_b32 s59, 0x%x' % f2u(L_HI))
    g('v_fma_f32 v42, v40, s59, -v41')
    g('v_mul_f32 v43, 0x%x, v40' % f2u(L_LO))
    g('v_add_f32 v42, v42, v43')
    g('v_exp_f32 v41, v41')
    g('v_mul_f32 v42, 0x%x, v42' % f2u(0.6931471805599453))
    g('v_fma_f32 v41, v41, v42, v41')
    g('v_cvt_pk_bf16_f32 v41, v41, v41')
    g('v_lshlrev_b32 v%d, 16, v41' % DT)
    base = {0: 40, 1: 70}
    R = {}
    for m in (0, 1):
        b = base[m]
        R[m] = dict(ar=b, ai=b + 1, B=b + 2, C=b + 4, c=b + 6, t0=b + 8, t1=b + 9, t2=b + 10, t3=b + 11,
                    E1=b + 12, E2=b + 14, E3=b + 16, E4=b + 18, E5=b + 20, E6=b + 22, E7=b + 24, E8=b + 26, L0=b + 28)
    pb = {0: 100, 1: 118}
    for m in (0, 1):
        b = pb[m]
        for i, k in enumerate((128, 256, 384, 512, 640, 768, 896, 1024, 2048)):
            R[m]['E%d' % k] = b + 2 * i
    tmp = {0: [136, 138, 140, 142], 1: [144, 146, 148, 150]}
    pk = [152, 154, 156, 158]; pkc = [0]
    BL = 160; AF = 192; D = [232, 236, 240]
    def unpack(dst, src, m):
        if m == 0: g('v_lshlrev_b32 v%d, 16, v%d' % (dst, src))
        else: g('v_and_b32 v%d, 0xffff0000, v%d' % (dst, src))
    for m in (0, 1):
        r = R[m]
        unpack(r['ar'], 32, m); unpack(r['ai'], 33, m)
        unpack(r['B'], 34, m); unpack(r['B'] + 1, 35, m)
        unpack(r['C'], 36, m); unpack(r['C'] + 1, 37, m)
    for m in (0, 1):
        r = R[m]
        g('v_mul_f32 v%d, v%d, v%d' % (r['ar'], r['ar'], DT))
        g('v_mul_f32 v%d, v%d, v%d' % (r['ai'], r['ai'], DT))
        g('v_mul_f32 v%d, v%d, v%d' % (r['B'], r['B'], DT))
        g('v_mul_f32 v%d, v%d, v%d' % (r['B'] + 1, r['B'] + 1, DT))
    for m in (0, 1):
        r = R[m]
        g('v_mul_f32 v%d, 0x%x, v%d' % (r['ar'], f2u(L_HI), r['ar']))
        g('v_mul_f32 v%d, 0x%x, v%d' % (r['ai'], f2u(0.15915494309189535), r['ai']))
        cmul(g, r['c'], r['C'], r['B'])
    for m in (0, 1):
        cmul2(g, R[m]['c'], R[m]['C'], R[m]['B'])
    def direct(name, k):
        for m in (0, 1):
            r = R[m]
            g('v_mul_f32 v%d, 0x%x, v%d' % (r['t0'], f2u(float(k)), r['ar']))
            g('v_mul_f32 v%d, 0x%x, v%d' % (r['t1'], f2u(float(k)), r['ai']))
        for m in (0, 1):
            r = R[m]
            g('v_exp_f32 v%d, v%d' % (r['t0'], r['t0']))
            g('v_fract_f32 v%d, v%d' % (r['t1'], r['t1']))
        for m in (0, 1):
            r = R[m]
            g('v_cos_f32 v%d, v%d' % (r['t2'], r['t1']))
            g('v_sin_f32 v%d, v%d' % (r['t3'], r['t1']))
        for m in (0, 1):
            r = R[m]
            g('v_pk_mul_f32 %s, %s, %s op_sel_hi:[1,0]' % (vr(r[name], 2), vr(r['t2'], 2), vr(r['t0'], 2)))
    direct('E8', 8); direct('E1', 1); direct('E128', 128)
    g('s_mul_i32 s62, s14, %d' % STG)
    g('v_lshlrev_b32 v12, 3, v1')
    g('v_add_u32 v12, s62, v12')
    g('v_mul_u32_u24 v13, %d, v3' % ROWS)
    g('v_and_b32 v14, 1, v2')
    g('v_lshl_add_u32 v13, v14, 8, v13')
    g('v_lshrrev_b32 v14, 1, v2')
    g('v_lshl_add_u32 v13, v14, 7, v13')
    g('v_add_u32 v13, s62, v13')
    def row(idx, regs, conj):
        t = pk[pkc[0] % 4]; pkc[0] += 1
        for m in (0, 1):
            rr = regs[m]
            if rr == 'one':
                g('v_mov_b32 v%d, 0x3f80' % (t + m))
            else:
                g('v_cvt_pk_bf16_f32 v%d, v%d, %sv%d' % (t + m, rr, '-' if conj else '', rr + 1))
        g('ds_write_b64 v12, %s offset:%d' % (vr(t, 2), idx * ROWS))
    tc = [0]
    def prow(idx, an, bn, conj=True):
        k = tc[0] % 4; tc[0] += 1
        for m in (0, 1): cmul(g, tmp[m][k], R[m][an], R[m][bn])
        for m in (0, 1): cmul2(g, tmp[m][k], R[m][an], R[m][bn])
        row(idx, {0: tmp[0][k], 1: tmp[1][k]}, conj)
    def nrow(idx, an, conj=True):
        row(idx, {0: R[0][an], 1: R[1][an]}, conj)
    nrow(0, 'c', False)
    cur = {0: R[0]['c'], 1: R[1]['c']}
    lt = {0: [R[0]['L0'], R[0]['B']], 1: [R[1]['L0'], R[1]['B']]}
    extra = [('E2', 'E1', 'E1'), ('E256', 'E128', 'E128'), ('E3', 'E2', 'E1'), ('E4', 'E2', 'E2'), ('E384', 'E256', 'E128'), ('E512', 'E256', 'E256'),
             ('E5', 'E4', 'E1'), ('E6', 'E4', 'E2'), ('E7', 'E4', 'E3'), ('E640', 'E512', 'E128'), ('E768', 'E512', 'E256'), ('E896', 'E512', 'E384'),
             ('E1024', 'E512', 'E512'), ('E2048', 'E1024', 'E1024')]
    for w in range(1, 16):
        nx = {m: lt[m][w % 2] for m in (0, 1)}
        for m in (0, 1): cmul(g, nx[m], cur[m], R[m]['E8'])
        if w - 1 < len(extra):
            dn, an, bn = extra[w - 1]
            for m in (0, 1): cmul(g, R[m][dn], R[m][an], R[m][bn])
        for m in (0, 1): cmul2(g, nx[m], cur[m], R[m]['E8'])
        if w - 1 < len(extra):
            for m in (0, 1): cmul2(g, R[m][dn], R[m][an], R[m][bn])
        row(w, nx, False)
        cur = nx
    def reads(dst):
        for t in range(8):
            g('ds_read_b128 %s, v13 offset:%d' % (vr(dst + 4 * t, 4), 16 * t))
    def mfmas(ti, waitn):
        g('s_waitcnt lgkmcnt(%d)' % waitn)
        for t in range(8):
            g('v_mfma_f32_16x16x32_bf16 %s, %s, %s, %s' % (vr(D[ti], 4), vr(AF + 4 * t, 4), vr(BL + 4 * t, 4), '0' if t == 0 else vr(D[ti], 4)))
    reads(BL)
    xt_flag()
    t0rows = [lambda: row(0, {0: 'one', 1: 'one'}, True)] + [(lambda r_=r_: nrow(r_, 'E%d' % r_)) for r_ in range(1, 8)] + \
             [lambda: nrow(8, 'E128')] + [(lambda r_=r_: prow(8 + r_, 'E128', 'E%d' % r_)) for r_ in range(1, 8)]
    t1rows = [lambda: nrow(0, 'E256')] + [(lambda i=i: prow(i, 'E256', 'E%d' % (2 * i))) for i in range(1, 4)] + \
             [lambda: nrow(4, 'E384')] + [(lambda i=i: prow(4 + i, 'E384', 'E%d' % (2 * i))) for i in range(1, 4)]
    for i, k in enumerate((512, 640, 768, 896)):
        t1rows.append(lambda i=i, k=k: nrow(8 + 2 * i, 'E%d' % k))
        t1rows.append(lambda i=i, k=k: prow(9 + 2 * i, 'E%d' % k, 'E4'))
    t2rows = [lambda: nrow(0, 'E1024')] + [(lambda i=i: prow(i, 'E1024', 'E%d' % (128 * i))) for i in range(1, 8)] + [lambda: nrow(8, 'E2048')]
    for f in t0rows: f()
    reads(AF)
    for f in t1rows[:12]: f()
    mfmas(0, 12)
    for f in t1rows[12:]: f()
    reads(AF)
    for f in t2rows: f()
    mfmas(1, 9)
    reads(AF)
    stamp(g, 3)
    if os.environ.get('SCUT') == '3':
        g('s_endpgm'); return
    renonce()
    g.c('poll XT')
    g('s_lshr_b32 s58, s2, 5')
    g('s_bfe_u32 s59, s2, 0x20003')
    g('s_lshl_b32 s58, s58, 2')
    g('s_add_u32 s58, s58, s59')
    g('s_lshl_b32 s58, s58, 8')
    g('s_add_u32 s58, s58, %d' % WS_FX)
    g('v_and_b32 v8, 31, v1')
    g('v_lshlrev_b32 v8, 3, v8')
    g('v_add_u32 v8, s58, v8')
    poll_flags(g, 8, None, 16, 58)
    stamp(g, 4)
    g('s_mul_i32 s58, s2, %d' % (2 * XT_ROW))
    g('s_add_u32 s58, s58, %d' % (WS_XT + 8))
    g('v_lshlrev_b32 v8, 4, v0')
    g('v_add_u32 v8, s58, v8')
    XR = 40
    for c2 in range(2):
        for k, off in enumerate((8, 4, 0)):
            g('buffer_load_dwordx4 %s, v8, %s, 0 offen offset:%d sc1' % (vr(XR + 12 * c2 + 4 * k, 4), sr(S_WS, 4), off + c2 * XT_ROW if False else off) if c2 == 0 else
              'buffer_load_dwordx4 %s, v9, %s, 0 offen offset:%d sc1' % (vr(XR + 12 * c2 + 4 * k, 4), sr(S_WS, 4), off))
        if c2 == 0:
            g('v_add_u32 v9, %d, v8' % XT_ROW)
    g('v_lshrrev_b32 v14, 1, v2')
    g('v_and_b32 v15, 1, v2')
    g('v_lshlrev_b32 v4, 9, v14')
    g('v_lshl_add_u32 v4, v3, 5, v4')
    g('v_lshl_add_u32 v4, v15, 4, v4')
    g('v_add_u32 v4, s62, v4')
    g('v_lshlrev_b32 v5, 8, v2')
    g('v_add_u32 v5, 1024, v5')
    g('v_add_u32 v5, s62, v5')
    g('v_lshl_add_u32 v6, v3, 4, v5')
    g('v_lshl_add_u32 v7, v3, 3, v5')
    g('v_cmp_gt_u32 vcc, 2, v2')
    g('v_cndmask_b32 v5, v7, v6, vcc')
    g('v_add_u32 v6, 8, v5')
    g('v_add_u32 v7, 128, v5')
    g('v_cndmask_b32 v6, v7, v6, vcc')
    g('v_lshlrev_b32 v7, 8, v2')
    g('v_lshl_add_u32 v7, v3, 2, v7')
    g('v_add_u32 v7, 2048, v7')
    g('v_add_u32 v7, s62, v7')
    mfmas(2, 0)
    g('ds_write_b128 v4, %s' % vr(D[0], 4))
    g('ds_write_b64 v5, %s' % vr(D[1], 2))
    g('ds_write_b64 v6, %s' % vr(D[1] + 2, 2))
    for r_ in range(4):
        g('ds_write_b32 v7, v%d offset:%d' % (D[2] + r_, 64 * r_))
    g('s_waitcnt lgkmcnt(0)')
    g('s_barrier')
    g.c('expansion')
    KR = 64
    for ch in range(2):
        for hf in range(2):
            for i in range(8):
                g('ds_read_b32 v%d, v%d offset:%d' % (KR + 16 * ch + 8 * hf + i, EA + i, (2 * ch + hf) * STG))
    g('v_lshlrev_b32 v10, 4, v0')
    g('v_sub_u32 v10, %d, v10' % (RB + 4080))
    for i in range(4):
        g('v_mov_b32 v%d, 0' % (96 + i))
    g('s_mov_b32 s58, 0x%x' % ((1 << 32) // 18 + 1))
    g('v_mul_hi_u32 v11, v0, s58')
    g('v_mul_u32_u24 v12, 18, v11')
    g('v_sub_u32 v12, v0, v12')
    g('v_mul_u32_u24 v11, %d, v11' % CS)
    g('v_lshl_add_u32 v11, v12, 4, v11')
    g('v_lshrrev_b32 v12, 4, v12')
    g('v_lshl_add_u32 v11, v12, 5, v11')
    g('v_add_u32 v11, %d, v11' % XC)
    g('v_subrev_u32 v12, 144, v0')
    g('v_and_b32 v13, 15, v12')
    g('v_lshrrev_b32 v12, 4, v12')
    g('v_mul_u32_u24 v12, %d, v12' % (2 * STG))
    g('v_lshl_add_u32 v12, v13, 4, v12')
    g('v_add_u32 v12, %d, v12' % (RB + 4096))
    g('v_cmp_gt_u32 vcc, 144, v0')
    g('v_cndmask_b32 v11, v12, v11, vcc')
    g('v_cmp_gt_u32 vcc, 176, v0')
    g('s_and_saveexec_b64 s[58:59], vcc')
    Lq = g.newlabel('L_zq')
    g('s_cbranch_execz %s' % Lq)
    g('ds_write_b128 v11, v[96:99]')
    g.label(Lq)
    g('s_mov_b64 exec, s[58:59]')
    g('v_lshlrev_b32 v11, 3, v0')
    g('v_add_u32 v11, 144, v11')
    g('v_lshrrev_b32 v12, 7, v11')
    g('v_lshlrev_b32 v11, 1, v11')
    g('v_lshl_add_u32 v11, v12, 5, v11')
    g('v_add_u32 v11, %d, v11' % XC)
    g('s_waitcnt lgkmcnt(0)')
    for ch in range(2):
        for i in range(8):
            g('v_add_f32 v%d, v%d, v%d' % (KR + 16 * ch + i, KR + 16 * ch + i, KR + 16 * ch + 8 + i))
        for i in range(0, 8, 2):
            g('v_cvt_pk_bf16_f32 v%d, v%d, v%d' % (100 + 4 * ch + i // 2, KR + 16 * ch + i, KR + 16 * ch + i + 1))
        g('ds_write_b128 v10, %s offset:%d' % (vr(100 + 4 * ch, 4), ch * 2 * STG))
    g('s_waitcnt vmcnt(0)')
    for ch in range(2):
        A = XR + 12 * ch; B = A + 4; C = A + 8
        c1 = 108 + 8 * ch; c3 = c1 + 4
        for k in range(4):
            g('v_alignbit_b32 v%d, v%d, v%d, 16' % (c1 + k, A + k, B + k))
            g('v_alignbit_b32 v%d, v%d, v%d, 16' % (c3 + k, B + k, C + k))
        g('ds_write_b128 v11, %s offset:%d' % (vr(A, 4), (4 * ch + 0) * CS))
        g('ds_write_b128 v11, %s offset:%d' % (vr(c1, 4), (4 * ch + 1) * CS))
        g('ds_write_b128 v11, %s offset:%d' % (vr(B, 4), (4 * ch + 2) * CS))
        g('ds_write_b128 v11, %s offset:%d' % (vr(c3, 4), (4 * ch + 3) * CS))
    g.c('conv')
    g('s_lshr_b32 s58, s14, 1')
    g('s_and_b32 s59, s14, 1')
    g('s_mul_i32 s60, s58, %d' % (2 * STG))
    g('s_lshl_b32 s61, s59, 8')
    g('s_sub_u32 s60, s60, s61')
    g('s_add_u32 s60, s60, %d' % (RB + 4272 - 3584))
    g('v_sub_u32 v4, v2, v3')
    g('v_lshlrev_b32 v4, 4, v4')
    g('v_add_u32 v4, s60, v4')
    g('v_lshrrev_b32 v5, 3, v3')
    g('v_lshlrev_b32 v5, 7, v5')
    g('v_lshl_add_u32 v5, v2, 3, v5')
    g('v_and_b32 v6, 4, v3')
    g('v_add_u32 v5, v5, v6')
    g('s_lshl_b32 s61, s59, 7')
    g('s_sub_u32 s61, 236, s61')
    g('v_add_u32 v5, s61, v5')
    g('v_and_b32 v6, 3, v3')
    g('v_sub_u32 v6, 3, v6')
    g('v_mul_u32_u24 v6, %d, v6' % CS)
    g('s_mul_i32 s61, s58, %d' % (4 * CS))
    g('s_add_u32 s61, s61, %d' % XC)
    g('v_add_u32 v6, s61, v6')
    g('s_waitcnt lgkmcnt(0)')
    g('s_barrier')
    stamp(g, 5)
    ACC = 16; F = 48; GG = 80
    for i in range(32):
        g('v_mov_b32 v%d, 0' % (ACC + i))
    SETS = [(48, 80), (112, 144)]
    def rd_list(st):
        F_, G_ = SETS[st]
        out = []
        out.append('v_lshrrev_b32 v7, 7, v5'); out.append('v_lshlrev_b32 v8, 1, v5'); out.append('v_lshl_add_u32 v7, v7, 5, v8'); out.append('v_add_u32 v7, v6, v7')
        out.append('v_add_u32 v8, 4, v5'); out.append('v_lshrrev_b32 v9, 7, v8'); out.append('v_lshlrev_b32 v8, 1, v8'); out.append('v_lshl_add_u32 v8, v9, 5, v8'); out.append('v_add_u32 v8, v6, v8')
        out.append('ds_read_b128 %s, v4 offset:%d' % (vr(F_, 4), 512 * 7))
        for w in range(8):
            out.append('ds_read_b64 %s, v7 offset:%d' % (vr(G_ + 4 * w, 2), 576 * w))
            out.append('ds_read_b64 %s, v8 offset:%d' % (vr(G_ + 4 * w + 2, 2), 576 * w))
        for v in range(1, 8):
            out.append('ds_read_b128 %s, v4 offset:%d' % (vr(F_ + 4 * v, 4), 512 * (7 - v)))
        out.append('v_subrev_u32 v4, 64, v4'); out.append('v_subrev_u32 v5, 32, v5')
        return out
    def mf_list(st):
        F_, G_ = SETS[st]
        return ['v_mfma_f32_16x16x32_bf16 %s, %s, %s, %s' % (vr(ACC + 4 * (v + w), 4), vr(G_ + 4 * w, 4), vr(F_ + 4 * v, 4), vr(ACC + 4 * (v + w), 4))
                for v in range(8) for w in range(8 - v)]
    for l in rd_list(0): g(l)
    for rr in range(4):
        g('s_waitcnt lgkmcnt(0)')
        m_ = mf_list(rr & 1)
        r_ = rd_list((rr + 1) & 1) if rr < 3 else []
        k = 0
        for i, l in enumerate(m_):
            g(l)
            while k < len(r_) and k < (i + 1) * 2:
                g(r_[k]); k += 1
    stamp(g, 6)
    g('s_barrier')
    g('v_lshrrev_b32 v14, 1, v2')
    g('v_and_b32 v15, 1, v2')
    g('v_lshlrev_b32 v4, 9, v14')
    g('v_lshl_add_u32 v4, v3, 5, v4')
    g('v_lshl_add_u32 v4, v15, 4, v4')
    g('s_lshl_b32 s58, s14, 13')
    g('s_add_u32 s58, s58, %d' % XC)
    g('v_add_u32 v4, s58, v4')
    for ct in range(8):
        g('ds_write_b128 v4, %s offset:%d' % (vr(ACC + 4 * ct, 4), 1024 * ct))
    g('s_waitcnt lgkmcnt(0)')
    g('s_barrier')
    g('v_lshlrev_b32 v4, 5, v0')
    g('v_add_u32 v4, %d, v4' % XC)
    for a_ in range(4):
        g('ds_read_b128 %s, v4 offset:%d' % (vr(48 + 8 * a_, 4), 8192 * a_))
        g('ds_read_b128 %s, v4 offset:%d' % (vr(52 + 8 * a_, 4), 8192 * a_ + 16))
    g('s_lshl_b32 s58, s2, 13')
    g('s_add_u32 s58, s58, %d' % WS_Y2)
    g('v_lshlrev_b32 v5, 5, v0')
    g('v_add_u32 v5, s58, v5')
    g('s_waitcnt lgkmcnt(0)')
    for i in range(8):
        g('v_add_f32 v%d, v%d, v%d' % (48 + i, 48 + i, 56 + i))
        g('v_add_f32 v%d, v%d, v%d' % (64 + i, 64 + i, 72 + i))
    for i in range(8):
        g('v_cvt_pk_bf16_f32 v%d, v%d, v%d' % (80 + i, 48 + i, 64 + i))
    g('buffer_store_dwordx4 v[80:83], v5, %s, 0 offen sc1' % sr(S_WS, 4))
    g('buffer_store_dwordx4 v[84:87], v5, %s, 0 offen offset:16 sc1' % sr(S_WS, 4))
    g('s_mov_b32 s58, 0x%x' % ((1 << 32) // 28 + 1))
    g('s_mul_hi_u32 s59, s2, s58')
    g('s_mul_i32 s60, s59, 28')
    g('s_sub_u32 s60, s2, s60')
    g('s_lshl_b32 s59, s59, 2')
    g('s_add_u32 s59, s59, s14')
    g('s_lshl_b32 s59, s59, 5')
    g('s_add_u32 s59, s59, s60')
    g('s_lshl_b32 s59, s59, 3')
    g('s_add_u32 s59, s59, %d' % WS_FY)
    g('v_mov_b32 v6, s59')
    g('s_waitcnt vmcnt(0)')
    stamp(g, 7)
    set_flag(g, 6, 8)
    stamp(g, 8)
    stamp(g, 9)
    stamp_flush(g)
    g('s_endpgm')
```

```python
from common import *
import os
import struct
def f2u(x): return struct.unpack('<I', struct.pack('<f', x))[0]
L2E = f2u(1.4426950408889634); LN2 = f2u(0.6931471805599453)
WK = 0; WV = 28672; WQ = 57344; WQ6 = 53248; RED = 0; KVX = 61440
XF = 144
S_W = 64
S_P = 68
S_UP = 72
S_L28 = 74
S_F28 = 76
S_TT = 78; S_H = 79; S_L2E = 80; S_LN2 = 81; S_TT64 = 82; S_CG = 83

def srd(g, s, ptr, nbytes):
    g('s_mov_b32 s%d, s%d' % (s, ptr)); g('s_mov_b32 s%d, s%d' % (s + 1, ptr + 1))
    g('s_mov_b32 s%d, %d' % (s + 2, nbytes)); g('s_mov_b32 s%d, 0x00020000' % (s + 3))

def softmax_stats(g, DP, T, want_c):
    MX, MN, SP, SM, A, B, TM, TN = T, T + 1, T + 2, T + 3, T + 4, T + 5, T + 6, T + 7
    EP = T + 8; EM = T + 24
    for i in range(12, 16):
        g('v_cndmask_b32 v%d, v%d, v%d, %s' % (DP + i, DP + i, DP + 11, sr(S_UP, 2)))
    g('v_max3_f32 v%d, v%d, v%d, v%d' % (MX, DP, DP + 1, DP + 2))
    g('v_min3_f32 v%d, v%d, v%d, v%d' % (MN, DP, DP + 1, DP + 2))
    for i in range(3, 15, 2):
        g('v_max3_f32 v%d, v%d, v%d, v%d' % (MX, MX, DP + i, DP + i + 1))
        g('v_min3_f32 v%d, v%d, v%d, v%d' % (MN, MN, DP + i, DP + i + 1))
    g('v_max_f32 v%d, v%d, v%d' % (MX, MX, DP + 15))
    g('v_min_f32 v%d, v%d, v%d' % (MN, MN, DP + 15))
    g('v_mov_b32 v%d, v%d' % (A, MX)); g('v_mov_b32 v%d, v%d' % (B, MX))
    g('v_mov_b32 v%d, v%d' % (TM, MN)); g('v_mov_b32 v%d, v%d' % (TN, MN))
    g('v_permlane32_swap_b32 v%d, v%d' % (A, B))
    g('v_permlane32_swap_b32 v%d, v%d' % (TM, TN))
    g('v_max_f32 v%d, v%d, v%d' % (MX, A, B))
    g('v_min_f32 v%d, v%d, v%d' % (MN, TM, TN))
    g('v_mul_f32 v%d, s%d, v%d' % (TM, S_L2E, MX))
    g('v_mul_f32 v%d, s%d, v%d' % (TN, S_L2E, MN))
    for i in range(16):
        g('v_fma_f32 v%d, v%d, s%d, -v%d' % (EP + i, DP + i, S_L2E, TM))
        g('v_fma_f32 v%d, -v%d, s%d, v%d' % (EM + i, DP + i, S_L2E, TN))
    for i in range(16):
        g('v_exp_f32 v%d, v%d' % (EP + i, EP + i))
        g('v_exp_f32 v%d, v%d' % (EM + i, EM + i))
    for i in range(12, 16):
        g('v_cndmask_b32 v%d, v%d, 0, %s' % (EP + i, EP + i, sr(S_UP, 2)))
        g('v_cndmask_b32 v%d, v%d, 0, %s' % (EM + i, EM + i, sr(S_UP, 2)))
    g('v_add_f32 v%d, v%d, v%d' % (SP, EP, EP + 1)); g('v_add_f32 v%d, v%d, v%d' % (SM, EM, EM + 1))
    g('v_add_f32 v%d, v%d, v%d' % (A, EP + 2, EP + 3)); g('v_add_f32 v%d, v%d, v%d' % (B, EM + 2, EM + 3))
    for i in range(4, 16, 2):
        g('v_add_f32 v%d, v%d, v%d' % (SP, SP, EP + i)); g('v_add_f32 v%d, v%d, v%d' % (SM, SM, EM + i))
        g('v_add_f32 v%d, v%d, v%d' % (A, A, EP + i + 1)); g('v_add_f32 v%d, v%d, v%d' % (B, B, EM + i + 1))
    g('v_add_f32 v%d, v%d, v%d' % (SP, SP, A)); g('v_add_f32 v%d, v%d, v%d' % (SM, SM, B))
    g('v_mov_b32 v%d, v%d' % (A, SP)); g('v_mov_b32 v%d, v%d' % (B, SP))
    g('v_mov_b32 v%d, v%d' % (TM, SM)); g('v_mov_b32 v%d, v%d' % (TN, SM))
    g('v_permlane32_swap_b32 v%d, v%d' % (A, B))
    g('v_permlane32_swap_b32 v%d, v%d' % (TM, TN))
    g('v_add_f32 v%d, v%d, v%d' % (SP, A, B))
    g('v_add_f32 v%d, v%d, v%d' % (SM, TM, TN))
    return MX, MN, SP, SM, EP, EM

def gen_A(g, stage=99):
    g.c('---- A type')
    g('s_setprio %s' % os.environ.get('AP1', '1'))
    g('s_sub_u32 s50, s2, %d' % NS)
    g('s_and_b32 s51, s50, 7')
    g('s_lshr_b32 s52, s50, 3')
    g('s_and_b32 s53, s51, 3')
    g('s_lshl_b32 s53, s53, 2')
    g('s_and_b32 s54, s52, 3')
    g('s_add_u32 s%d, s53, s54' % S_TT)
    g('s_lshr_b32 s53, s51, 2')
    g('s_lshl_b32 s53, s53, 3')
    g('s_lshr_b32 s54, s52, 2')
    g('s_add_u32 s%d, s53, s54' % S_H)
    g('s_and_b32 s%d, s52, 7' % S_CG)
    g('s_lshl_b32 s53, s51, 2')
    g('s_lshr_b32 s54, s52, 3')
    g('s_add_u32 s%d, s53, s54' % S_TT64)
    srd(g, S_W, P_WQKV, 448 * 2688)
    g('v_and_b32 v2, 31, v1')
    g('v_lshrrev_b32 v3, 5, v1')
    g('s_lshl_b32 s53, s%d, 7' % S_TT)
    g('s_lshl_b32 s54, s14, 5')
    g('s_add_u32 s53, s53, s54')
    g('v_and_b32 v4, 3, v1')
    g('v_bfe_u32 v5, v1, 2, 3')
    g('v_lshl_add_u32 v9, v4, 3, v5')
    g('v_add_u32 v5, s53, v5')
    g('v_mul_u32_u24 v5, 896, v5')
    g('v_lshl_add_u32 v5, v3, 6, v5')
    g('v_lshl_add_u32 v5, v4, 4, v5')
    g('v_add_u32 v4, s53, v9')
    g('v_add_u32 v140, %d, v5' % (8 * 896))
    g('v_add_u32 v141, %d, v5' % (16 * 896))
    g('v_add_u32 v142, %d, v5' % (24 * 896))
    g('v_lshrrev_b32 v6, 2, v1')
    g('v_and_b32 v7, 3, v1')
    g('v_mul_u32_u24 v8, 2688, v6')
    g('v_lshl_add_u32 v8, v7, 4, v8')
    g('s_mul_i32 s53, s%d, 56' % S_H)
    g('v_add_u32 v8, s53, v8')
    g('s_mul_i32 s55, s14, %d' % (16 * 2688))
    g('s_lshl_b32 s56, s14, 10')
    W0 = 64; W1 = 68
    XO = (5, 140, 141, 142)
    ROT = os.environ.get('ROT', '1') == '1'
    g('s_mul_i32 s63, s52, 37')
    g('s_lshr_b32 s63, s63, 8')
    g('s_mul_i32 s63, s63, 7')
    g('s_sub_u32 s63, s52, s63')
    if not ROT: g('s_mov_b32 s63, 0')
    g('s_mov_b32 s62, s63')
    srd(g, S_P, P_X, 2048 * 896)
    def adv():
        g('s_add_u32 s62, s62, 1')
        g('s_cmp_eq_u32 s62, 7')
        g('s_cselect_b32 s62, 0, s62')
    def issue_w(c):
        g('s_mul_i32 s58, s62, %d' % (64 * 2688))
        g('s_add_u32 s58, s58, s55')
        g('s_add_u32 s57, s58, 896')
        g('s_add_u32 m0, s56, %d' % (WK + c * 4096))
        g('s_add_u32 s58, s58, 1792')
        g('buffer_load_dwordx4 v8, %s, s57 offen lds' % sr(S_W, 4))
        g('s_add_u32 m0, s56, %d' % (WV + c * 4096))
        adv()
        g('buffer_load_dwordx4 v8, %s, s58 offen lds' % sr(S_W, 4))
    def issue_chunk(c):
        g('s_lshl_b32 s57, s62, 7')
        for i in range(4):
            g('buffer_load_dwordx4 %s, v%d, %s, s57 offen' % (vr(XF + 16 * c + 4 * i, 4), XO[i], sr(S_P, 4)))
    def issue_wq(c):
        if c == 0: g('s_mov_b32 s62, s63')
        g('s_mul_i32 s57, s62, %d' % (64 * 2688))
        g('s_add_u32 s57, s57, s55')
        g('s_add_u32 m0, s56, %d' % ((WQ + c * 4096) if c < 6 else WQ6))
        adv()
        g('buffer_load_dwordx4 v8, %s, s57 offen lds' % sr(S_W, 4))
    PD = int(os.environ.get('PD', '3'))
    for c in range(PD):
        issue_chunk(c); issue_w(c)
    def small_loads():
        srd(g, S_P, P_WPHI, 16 * 784 * 2)
        g('s_mul_i32 s53, s%d, 784' % S_H)
        g('v_mul_u32_u24 v9, 112, v3')
        g('v_add_u32 v9, v9, v2')
        g('v_add_u32 v9, s53, v9')
        g('v_lshlrev_b32 v9, 1, v9')
        g('v_cmp_lt_u32 vcc, 27, v2')
        g('s_mov_b64 %s, vcc' % sr(S_F28, 2))
        g('v_mov_b32 v10, 0x7ffff000')
        g('v_cndmask_b32 v9, v9, v10, vcc')
        W0 = 64; W1 = 68
        for tp in range(2):
            for j in range(8):
                d = 16 * tp + 8 * (j >> 2) + (j & 3)
                g('buffer_load_ushort v%d, v9, %s, 0 offen offset:%d' % (48 + 8 * tp + j, sr(S_P, 4), d * 56))
        srd(g, S_P + 16, P_GW, 896)
        g('v_lshrrev_b32 v10, 4, v1')
        g('v_and_b32 v14, 15, v1')
        g('s_lshl_b32 s53, s14, 4')
        g('v_add_u32 v14, s53, v14')
        g('v_lshl_add_u32 v143, v10, 6, v14')
        g('v_lshlrev_b32 v143, 1, v143')
        for i in range(2):
            g('v_add_u32 v15, s63, v10')
            if i: g('v_add_u32 v15, 4, v15')
            g('v_subrev_u32 v9, 7, v15')
            g('v_cmp_gt_u32 vcc, 7, v15')
            g('v_cndmask_b32 v15, v9, v15, vcc')
            g('v_lshl_add_u32 v15, v15, 6, v14')
            g('v_lshlrev_b32 v15, 1, v15')
            g('buffer_load_ushort v%d, v15, %s, 0 offen' % (12 + i, sr(S_P + 16, 4)))
        if os.environ.get('TLBW', '1') == '1':
            g('v_min_u32 v14, 5, v1')
            g('v_lshlrev_b32 v14, 21, v14')
            g('v_add_u32 v14, 0x1f0000, v14')
            g('buffer_load_dword v15, v14, %s, 0 offen' % sr(S_WS, 4))
            g('v_mov_b32 v14, 0')
            g('global_load_dword v15, v14, %s' % sr(P_OUT, 2))
            g('global_load_dword v15, v14, %s' % sr(P_WO, 2))
    NPRE = 42 + 16 + 2
    stamp(g, 1, 'p1')
    g('s_mov_b32 s%d, 0' % S_UP); g('s_mov_b32 s%d, -1' % (S_UP + 1))
    g('s_mov_b32 s%d, 0x10000000' % S_L28); g('s_mov_b32 s%d, 0x10000000' % (S_L28 + 1))
    g('s_mov_b32 s%d, 0x%x' % (S_L2E, L2E)); g('s_mov_b32 s%d, 0x%x' % (S_LN2, LN2))
    g('v_lshrrev_b32 v10, 4, v1')
    g('v_bfe_u32 v11, v1, 2, 2')
    g('v_lshl_add_u32 v11, v3, 5, v11')
    g('v_lshlrev_b32 v11, 6, v11')
    g('v_and_b32 v14, 1, v10')
    g('v_lshl_add_u32 v11, v14, 5, v11')
    g('v_lshl_add_u32 v11, v7, 3, v11')
    DK = 16; DV = 32; WF = 96
    def mf(c):
        for tq in range(4):
            t = 4 * c + tq
            g('v_mfma_f32_32x32x16_bf16 %s, %s, %s, %s' % (vr(DK, 16), vr(WF + 8 * tq, 4), vr(XF + 4 * t, 4), '0' if t == 0 else vr(DK, 16)))
            g('v_mfma_f32_32x32x16_bf16 %s, %s, %s, %s' % (vr(DV, 16), vr(XF + 4 * t, 4), vr(WF + 8 * tq + 4, 4), '0' if t == 0 else vr(DV, 16)))
    seq = []
    for c in range(PD): seq += [c] * 6
    WFB = (64, 96)
    TT = 128
    def waitx(c):
        last = max(i for i, x in enumerate(seq) if x == c)
        g('s_waitcnt vmcnt(%d)' % (len(seq) - 1 - last))
    def stA(c):
        R = [XF + 16 * c + 4 * i for i in range(4)]
        o = []
        d1 = 'quad_perm:[1,0,3,2] row_mask:0xf bank_mask:0xf'; d2 = 'quad_perm:[2,3,0,1] row_mask:0xf bank_mask:0xf'
        def setv(m): o.append('s_mov_b32 vcc_lo, 0x%x' % m); o.append('s_mov_b32 vcc_hi, 0x%x' % m)
        setv(0x55555555)
        for d in range(4): o.append('v_cndmask_b32_dpp v%d, v%d, v%d, vcc %s' % (TT + d, R[1] + d, R[0] + d, d1))
        for d in range(4): o.append('v_cndmask_b32_dpp v%d, v%d, v%d, vcc %s' % (TT + 4 + d, R[3] + d, R[2] + d, d1))
        setv(0xaaaaaaaa)
        for d in range(4): o.append('v_cndmask_b32_dpp v%d, v%d, v%d, vcc %s' % (R[1] + d, R[0] + d, R[1] + d, d1))
        for d in range(4): o.append('v_cndmask_b32_dpp v%d, v%d, v%d, vcc %s' % (R[3] + d, R[2] + d, R[3] + d, d1))
        setv(0x33333333)
        for d in range(4): o.append('v_cndmask_b32_dpp v%d, v%d, v%d, vcc %s' % (R[0] + d, TT + 4 + d, TT + d, d2))
        setv(0xcccccccc)
        for d in range(4): o.append('v_cndmask_b32_dpp v%d, v%d, v%d, vcc %s' % (R[2] + d, TT + d, TT + 4 + d, d2))
        for d in range(4): o.append('v_cndmask_b32_dpp v%d, v%d, v%d, vcc %s' % (TT + d, R[1] + d, R[3] + d, d2))
        setv(0x33333333)
        for d in range(4): o.append('v_cndmask_b32_dpp v%d, v%d, v%d, vcc %s' % (R[1] + d, R[3] + d, R[1] + d, d2))
        for d in range(4): o.append('v_mov_b32 v%d, v%d' % (R[3] + d, TT + d))
        return o
    def stB(c):
        out = []
        for tq in range(4):
            t = 4 * c + tq
            for sg, segb in ((0, WK), (1, WV)):
                for a_ in range(2):
                    out.append('ds_read_b64_tr_b16 %s, v11 offset:%d' % (vr(WFB[c & 1] + 8 * tq + 4 * sg + 2 * a_, 2), segb + 4096 * c + 512 * tq + 256 * a_))
        return out
    def stC(c):
        out = []
        W_ = WFB[c & 1]
        for tq in range(4):
            t = 4 * c + tq
            out.append('v_mfma_f32_32x32x16_bf16 %s, %s, %s, %s' % (vr(DK, 16), vr(W_ + 8 * tq, 4), vr(XF + 4 * t, 4), '0' if t == 0 else vr(DK, 16)))
            out.append('v_mfma_f32_32x32x16_bf16 %s, %s, %s, %s' % (vr(DV, 16), vr(XF + 4 * t, 4), vr(W_ + 8 * tq + 4, 4), '0' if t == 0 else vr(DV, 16)))
        return out
    def more(c):
        if c < 7:
            issue_chunk(c); issue_w(c); seq.extend([c] * 6)
        if c == 6:
            small_loads(); seq.extend([99] * (21 if os.environ.get('TLBW', '1') == '1' else 18))
    waitx(0)
    g('s_barrier')
    for l in stB(0): g(l)
    for l in stA(0): g(l)
    if PD == 7:
        small_loads(); seq.extend([99] * (21 if os.environ.get('TLBW', '1') == '1' else 18))
    for c in range(7):
        stamp(g, 2 + c, 'p1')
        ra = []; rb = []
        if c + 1 < 7:
            waitx(c + 1)
            g('s_barrier')
            ra = stA(c + 1); rb = stB(c + 1)
        g('s_waitcnt lgkmcnt(0)')
        na = (len(ra) + 7) // 8
        for i, l in enumerate(stC(c)):
            g(l)
            for r_ in rb[2 * i:2 * i + 2]: g(r_)
            for r_ in ra[na * i:na * i + na]: g(r_)
        if c + PD < 7: more(c + PD)
        if c >= 4:
            issue_wq(2 * (c - 4)); issue_wq(2 * (c - 4) + 1); seq.extend([98] * 2)
    stamp(g, 1)
    stamp(g, 9, 'p1')
    g('s_waitcnt vmcnt(6)')
    g('s_setprio %s' % os.environ.get('AP2', '2'))
    g('v_mov_b32 v94, 0')
    g('global_load_dwordx2 v[92:93], v94, %s sc0 sc1' % sr(P_DBG, 2))
    W1Z = 72; W1P = 76; W0N = 80; W1N = 84
    g('v_mov_b32 v14, 0x3f803f80')
    g('v_mov_b32 v15, 0x80008000')
    for i in range(8):
        g('v_lshl_or_b32 v%d, v%d, 16, v%d' % (W0 + i, 48 + 2 * i + 1, 48 + 2 * i))
    for i in range(8):
        g('v_cndmask_b32 v%d, v%d, 0, %s' % (W0 + i, W0 + i, sr(S_F28, 2)))
    for i in range(4):
        g('v_xor_b32 v%d, v15, v%d' % (W0N + i, W0 + i))
        g('v_xor_b32 v%d, v15, v%d' % (W1N + i, W1 + i))
    for i in range(2):
        for dst in (W1Z, W1P):
            g('v_mov_b32 v%d, v%d' % (dst + i, W1 + i))
    g('v_cndmask_b32 v%d, v%d, 0, %s' % (W1Z + 2, W1 + 2, sr(S_UP, 2)))
    g('v_cndmask_b32 v%d, v%d, 0, %s' % (W1Z + 3, W1 + 3, sr(S_UP, 2)))
    g('v_cndmask_b32 v%d, v%d, v14, %s' % (W1P + 2, W1 + 2, sr(S_UP, 2)))
    g('v_cndmask_b32 v%d, v%d, 0, %s' % (W1P + 3, W1 + 3, sr(S_UP, 2)))
    g('v_cndmask_b32 v%d, v%d, 0, %s' % (W1N + 2, W1N + 2, sr(S_UP, 2)))
    g('v_cndmask_b32 v%d, v%d, v14, %s' % (W1N + 3, W1N + 3, sr(S_UP, 2)))
    KB = 48; VB = 56; DP = 16; T = 96
    for i in range(8):
        g('v_cvt_pk_bf16_f32 v%d, v%d, v%d' % (KB + i, DK + 2 * i, DK + 2 * i + 1))
    for i in range(8):
        g('v_cvt_pk_bf16_f32 v%d, v%d, v%d' % (VB + i, DV + 2 * i, DV + 2 * i + 1))
    g('v_mfma_f32_32x32x16_bf16 %s, %s, %s, 0' % (vr(DP, 16), vr(W0, 4), vr(KB, 4)))
    g('v_mfma_f32_32x32x16_bf16 %s, %s, %s, %s' % (vr(DP, 16), vr(W1Z, 4), vr(KB + 4, 4), vr(DP, 16)))
    for i in range(8):
        g('v_cndmask_b32 v%d, v%d, v14, %s' % (VB + i, VB + i, sr(S_L28, 2)))
    MX, MN, SP, SM, EP, EM = softmax_stats(g, DP, T, True)
    A_, B_ = T + 4, T + 5
    g('v_log_f32 v%d, v%d' % (SP, SP)); g('v_log_f32 v%d, v%d' % (SM, SM))
    g('v_fma_f32 v%d, -v%d, s%d, -v%d' % (SP, SP, S_LN2, MX))
    g('v_fma_f32 v%d, -v%d, s%d, v%d' % (SM, SM, S_LN2, MN))
    for r_, tmp in ((SP, A_), (SM, B_)):
        g('v_cvt_pk_bf16_f32 v%d, v%d, v%d' % (tmp, r_, r_))
        g('v_lshlrev_b32 v%d, 16, v%d' % (tmp, tmp))
        g('v_sub_f32 v%d, v%d, v%d' % (tmp, r_, tmp))
        g('v_cvt_pk_bf16_f32 v%d, v%d, v%d' % (tmp, r_, tmp))
    g('v_cndmask_b32 v%d, v%d, v%d, %s' % (KB + 6, KB + 6, A_, sr(S_UP, 2)))
    g('v_cndmask_b32 v%d, v%d, v%d, %s' % (KB + 7, KB + 7, B_, sr(S_UP, 2)))
    DPP = 16; DPM = 32
    g('v_mfma_f32_32x32x16_bf16 %s, %s, %s, 0' % (vr(DPP, 16), vr(KB, 4), vr(W0, 4)))
    g('v_mfma_f32_32x32x16_bf16 %s, %s, %s, 0' % (vr(DPM, 16), vr(KB, 4), vr(W0N, 4)))
    g('v_mfma_f32_32x32x16_bf16 %s, %s, %s, %s' % (vr(DPP, 16), vr(KB + 4, 4), vr(W1P, 4), vr(DPP, 16)))
    g('v_mfma_f32_32x32x16_bf16 %s, %s, %s, %s' % (vr(DPM, 16), vr(KB + 4, 4), vr(W1N, 4), vr(DPM, 16)))
    for i in range(16):
        g('v_mul_f32 v%d, s%d, v%d' % (DPP + i, S_L2E, DPP + i))
    for i in range(16):
        g('v_exp_f32 v%d, v%d' % (DPP + i, DPP + i))
        g('v_mul_f32 v%d, s%d, v%d' % (DPM + i, S_L2E, DPM + i))
    for i in range(16):
        g('v_exp_f32 v%d, v%d' % (DPM + i, DPM + i))
    PH = 96
    for i in range(8):
        g('v_cvt_pk_bf16_f32 v%d, v%d, v%d' % (PH + i, DPP + 2 * i, DPP + 2 * i + 1))
    for i in range(8):
        g('v_cvt_pk_bf16_f32 v%d, v%d, v%d' % (PH + 8 + i, DPM + 2 * i, DPM + 2 * i + 1))
    KVP_ = 16; KVM = 32
    g('v_mfma_f32_32x32x16_bf16 %s, %s, %s, 0' % (vr(KVP_, 16), vr(PH, 4), vr(VB, 4)))
    g('v_mfma_f32_32x32x16_bf16 %s, %s, %s, 0' % (vr(KVM, 16), vr(PH + 8, 4), vr(VB, 4)))
    g('v_mfma_f32_32x32x16_bf16 %s, %s, %s, %s' % (vr(KVP_, 16), vr(PH + 4, 4), vr(VB + 4, 4), vr(KVP_, 16)))
    g('v_mfma_f32_32x32x16_bf16 %s, %s, %s, %s' % (vr(KVM, 16), vr(PH + 12, 4), vr(VB + 4, 4), vr(KVM, 16)))
    g('s_barrier')
    g('s_lshl_b32 s57, s14, 13')
    g('s_add_u32 s57, s57, %d' % RED)
    g('v_lshlrev_b32 v14, 4, v1')
    g('v_add_u32 v15, s57, v14')
    for gq in range(8):
        g('ds_write_b128 v15, %s offset:%d' % (vr(16 + 4 * gq, 4), 1024 * gq))
    g('s_waitcnt lgkmcnt(0)')
    g('s_barrier')
    g('s_lshl_b32 s57, s14, 11')
    g('s_add_u32 s57, s57, %d' % RED)
    g('v_add_u32 v15, s57, v14')
    for wv in range(4):
        for k in range(2):
            g('ds_read_b128 %s, v15 offset:%d' % (vr(96 + 8 * wv + 4 * k, 4), 8192 * wv + 1024 * k))
    g('s_lshl_b32 s57, s%d, 4' % S_H)
    g('s_add_u32 s57, s57, s%d' % S_TT)
    g('s_lshl_b32 s57, s57, 2')
    g('s_add_u32 s57, s57, s14')
    g('s_lshl_b32 s57, s57, 10')
    g('s_add_u32 s57, s57, %d' % WS_KVP)
    g('v_add_u32 v15, s57, v14')
    g('s_waitcnt lgkmcnt(0)')
    for i in range(8):
        g('v_add_f32 v%d, v%d, v%d' % (96 + i, 96 + i, 104 + i))
        g('v_add_f32 v%d, v%d, v%d' % (112 + i, 112 + i, 120 + i))
    for i in range(8):
        g('v_add_f32 v%d, v%d, v%d' % (96 + i, 96 + i, 112 + i))
    for i in range(4):
        g('v_cvt_pk_bf16_f32 v%d, v%d, v%d' % (104 + i, 96 + 2 * i, 97 + 2 * i))
    g('buffer_store_dwordx4 v[104:107], v15, %s, 0 offen sc0 sc1' % sr(S_WS, 4))
    issue_wq(6)
    get_nonce(g, 92, 94, 57, pre=True, cnt=1)
    g('s_lshl_b32 s57, s%d, 2' % S_H)
    g('s_add_u32 s57, s57, s14')
    g('s_lshl_b32 s57, s57, 4')
    g('s_add_u32 s58, s57, s%d' % S_TT)
    g('s_lshl_b32 s58, s58, 3')
    g('s_add_u32 s58, s58, %d' % WS_FK)
    g('v_mov_b32 v15, s58')
    set_flag(g, 15, 96)
    stamp(g, 2)
    g('s_lshl_b32 s%d, s57, 3' % 88)
    g('s_waitcnt vmcnt(1)')
    g('v_lshlrev_b32 v14, 5, v143')
    g('ds_write_b16 v14, v12 offset:%d' % (WQ + 56))
    g('v_add_u32 v15, %d, v14' % (256 * 64 + WQ + 56))
    g('v_add_u32 v10, %d, v14' % (256 * 64 - 384 * 64 + WQ6 + 56))
    g('v_cmp_gt_u32 vcc, 32, v1')
    g('v_cndmask_b32 v15, v10, v15, vcc')
    g('v_cmp_gt_u32 vcc, 48, v1')
    g('s_and_saveexec_b64 s[58:59], vcc')
    g('ds_write_b16 v15, v13')
    g('s_mov_b64 exec, s[58:59]')
    g('s_waitcnt lgkmcnt(0)')
    g('s_barrier')
    DQ = 16; WF = 88
    g('v_add_u32 v10, %d, v11' % WQ)
    for grp in range(4):
        for tq in range(7):
            t = 7 * grp + tq
            for a in range(2):
                g('ds_read_b64_tr_b16 %s, v%d offset:%d' % (vr(WF + (28 * (grp & 1)) + 4 * tq + 2 * a, 2), 10 if t < 24 else 11, (4096 * (t >> 2) if t < 24 else WQ6) + 512 * (t & 3) + 256 * a))
        if grp > 0:
            pg = grp - 1
            for tq in range(7):
                t = 7 * pg + tq
                if tq == 0: g('s_waitcnt lgkmcnt(14)')
                g('v_mfma_f32_32x32x16_bf16 %s, %s, %s, %s' % (vr(DQ, 16), vr(WF + 28 * (pg & 1) + 4 * tq, 4), vr(XF + 4 * t, 4), '0' if t == 0 else vr(DQ, 16)))
    g('s_waitcnt lgkmcnt(0)')
    for tq in range(7):
        t = 21 + tq
        g('v_mfma_f32_32x32x16_bf16 %s, %s, %s, %s' % (vr(DQ, 16), vr(WF + 28 + 4 * tq, 4), vr(XF + 4 * t, 4), vr(DQ, 16)))
    g('s_barrier')
    QB = 48
    g('v_mov_b32 v14, v%d' % (DQ + 12))
    for i in range(8):
        g('v_cvt_pk_bf16_f32 v%d, v%d, v%d' % (QB + i, DQ + 2 * i, DQ + 2 * i + 1))
    g('v_mfma_f32_32x32x16_bf16 %s, %s, %s, 0' % (vr(DP, 16), vr(W0, 4), vr(QB, 4)))
    g('v_mfma_f32_32x32x16_bf16 %s, %s, %s, %s' % (vr(DP, 16), vr(W1Z, 4), vr(QB + 4, 4), vr(DP, 16)))
    g('v_mul_f32 v14, s%d, v14' % S_L2E)
    g('v_exp_f32 v14, -v14')
    g('v_add_f32 v14, 1.0, v14')
    g('v_rcp_f32 v14, v14')
    Lg = g.newlabel('L_ng')
    g('s_cmp_lg_u32 s%d, 0' % S_H)
    g('s_cbranch_scc1 %s' % Lg)
    g('v_lshlrev_b32 v15, 2, v4')
    g('v_add_u32 v15, %d, v15' % WS_G)
    g('s_mov_b64 exec, %s' % sr(S_UP, 2))
    g('buffer_store_dword v14, v15, %s, 0 offen sc0 sc1' % sr(S_WS, 4))
    g('s_mov_b64 exec, -1')
    g.label(Lg)
    MX, MN, SP, SM, EP, EM = softmax_stats(g, DP, T, False)
    g('v_rcp_f32 v%d, v%d' % (SP, SP)); g('v_rcp_f32 v%d, v%d' % (SM, SM))
    for i in range(16):
        g('v_mul_f32 v%d, v%d, v%d' % (EP + i, EP + i, SP))
        g('v_mul_f32 v%d, v%d, v%d' % (EM + i, EM + i, SM))
    PQ = 48
    for i in range(8):
        g('v_cvt_pk_bf16_f32 v%d, v%d, v%d' % (PQ + i, EP + 2 * i, EP + 2 * i + 1))
        g('v_cvt_pk_bf16_f32 v%d, v%d, v%d' % (PQ + 8 + i, EM + 2 * i, EM + 2 * i + 1))
    SEL = 64
    g('v_lshrrev_b32 v8, 3, v2')
    g('v_bfe_u32 v9, v2, 2, 1')
    g('v_and_b32 v10, 3, v2')
    g('v_lshrrev_b32 v12, 1, v10')
    g('v_lshl_add_u32 v12, v8, 1, v12')
    g('v_and_b32 v13, 1, v10')
    g('v_mov_b32 v14, 0x3f80')
    g('v_mov_b32 v15, 0x3f800000')
    g('v_cmp_eq_u32 vcc, 1, v13')
    g('v_cndmask_b32 v13, v14, v15, vcc')
    g('v_cmp_eq_u32 vcc, v9, v3')
    g('v_cndmask_b32 v13, 0, v13, vcc')
    for i in range(4):
        g('v_cmp_eq_u32 vcc, %d, v12' % i)
        g('v_cndmask_b32 v%d, 0, v13, vcc' % (SEL + i))
    stamp(g, 3)
    g('v_and_b32 v8, 15, v1')
    g('v_lshlrev_b32 v8, 3, v8')
    g('s_add_u32 s57, s88, %d' % WS_FK)
    g('v_add_u32 v8, s57, v8')
    poll_flags(g, 8, None, 96, 57)
    stamp(g, 4)
    stamp(g, 1, 'p3')
    g('s_lshl_b32 s57, s%d, 6' % S_H)
    g('s_add_u32 s57, s57, s14')
    g('s_lshl_b32 s57, s57, 10')
    g('s_add_u32 s57, s57, %d' % WS_KVP)
    g('v_lshlrev_b32 v9, 4, v1')
    g('v_add_u32 v8, s57, v9')
    PL = 144
    PSC = os.environ.get('PSC', 'sc0 sc1')
    for j in range(16):
        g('s_mov_b32 s57, %d' % (j * 4096))
        g('buffer_load_dwordx4 %s, v8, %s, s57 offen %s' % (vr(PL + 4 * j, 4), sr(S_WS, 4), PSC))
    DS_ = 16
    stamp(g, 2, 'p3')
    for j in range(16):
        g('s_waitcnt vmcnt(%d)' % (15 - j))
        g('v_mfma_f32_32x32x16_bf16 %s, %s, %s, %s' % (vr(DS_, 16), vr(SEL, 4), vr(PL + 4 * j, 4), '0' if j == 0 else vr(DS_, 16)))
    for i in range(4):
        g('v_cvt_pk_bf16_f32 v%d, v%d, v%d' % (96 + i, DS_ + 2 * i, DS_ + 2 * i + 1))
    g('s_lshl_b32 s57, s14, 10')
    g('s_add_u32 s57, s57, %d' % KVX)
    g('v_add_u32 v8, s57, v9')
    stamp(g, 3, 'p3')
    g('ds_write_b128 v8, v[96:99]')
    g('s_waitcnt lgkmcnt(0)')
    g('s_barrier')
    stamp(g, 4, 'p3')
    g('v_add_u32 v8, %d, v9' % KVX)
    KF = 100
    for t in range(4):
        g('ds_read_b128 %s, v8 offset:%d' % (vr(KF + 4 * t, 4), 1024 * t))
    DO = 16
    for t in range(4):
        g('s_waitcnt lgkmcnt(%d)' % (3 - t))
        g('v_mfma_f32_32x32x16_bf16 %s, %s, %s, %s' % (vr(DO, 16), vr(KF + 4 * t, 4), vr(PQ + 4 * t, 4), '0' if t == 0 else vr(DO, 16)))
    g('v_mov_b32 v8, v%d' % (DO + 12)); g('v_mov_b32 v9, v%d' % (DO + 12))
    g('v_permlane32_swap_b32 v8, v9')
    g('v_add_f32 v9, 0x%x, v9' % f2u(1e-6))
    g('v_rcp_f32 v9, v9')
    for i in range(16):
        g('v_mul_f32 v%d, v%d, v9' % (DO + i, DO + i))
    for i in range(8):
        g('v_cvt_pk_bf16_f32 v%d, v%d, v%d' % (96 + i, DO + 2 * i, DO + 2 * i + 1))
    g('v_cndmask_b32 v102, v102, 0, %s' % sr(S_UP, 2))
    g('v_cndmask_b32 v103, v103, 0, %s' % sr(S_UP, 2))
    g('s_lshl_b32 s57, s%d, 2' % S_TT)
    g('s_add_u32 s57, s57, s14')
    g('s_lshl_b32 s57, s57, 15')
    g('s_lshl_b32 s58, s%d, 10' % S_H)
    g('s_add_u32 s57, s57, s58')
    g('s_add_u32 s57, s57, %d' % WS_O)
    g('v_lshrrev_b32 v8, 4, v2')
    g('v_lshlrev_b32 v8, 14, v8')
    g('v_lshl_add_u32 v8, v3, 8, v8')
    g('v_and_b32 v10, 15, v2')
    g('v_lshl_add_u32 v8, v10, 4, v8')
    g('v_add_u32 v8, s57, v8')
    g('buffer_store_dwordx4 v[96:99], v8, %s, 0 offen sc0 sc1' % sr(S_WS, 4))
    g('buffer_store_dwordx4 v[100:103], v8, %s, 0 offen offset:512 sc0 sc1' % sr(S_WS, 4))
    stamp(g, 5, 'p3')
    g('s_lshl_b32 s57, s%d, 2' % S_TT)
    g('s_add_u32 s57, s57, s14')
    g('s_lshl_b32 s57, s57, 4')
    g('s_add_u32 s57, s57, s%d' % S_H)
    g('s_lshl_b32 s57, s57, 3')
    g('s_add_u32 s57, s57, %d' % WS_FO)
    g('v_mov_b32 v15, s57')
    g('s_waitcnt vmcnt(0)')
    set_flag(g, 15, 96)
    stamp(g, 5)
    stamp(g, 6, 'p3')
    srd(g, S_P, P_WO, 448 * 896)
    g('v_lshrrev_b32 v6, 2, v1')
    g('v_and_b32 v7, 3, v1')
    g('v_mul_u32_u24 v9, 896, v6')
    g('v_lshl_add_u32 v9, v7, 4, v9')
    g('s_mul_i32 s53, s%d, 112' % S_CG)
    g('v_add_u32 v9, s53, v9')
    g('s_mul_i32 s55, s14, %d' % (16 * 896))
    for c in range(7):
        for sg in range(2):
            g('s_add_u32 s57, s55, %d' % (c * 64 * 896 + 56 * sg))
            g('s_add_u32 m0, s56, %d' % (28672 * sg + c * 4096))
            g('s_nop 0')
            g('buffer_load_dwordx4 v9, %s, s57 offen lds' % sr(S_P, 4))
    g('v_and_b32 v2, 15, v1')
    g('v_lshrrev_b32 v3, 4, v1')
    g('s_lshl_b32 s57, s%d, 6' % S_TT64)
    g('s_lshr_b32 s58, s14, 1')
    g('s_lshl_b32 s58, s58, 5')
    g('s_add_u32 s57, s57, s58')
    g('s_and_b32 s58, s14, 1')
    g('s_lshl_b32 s58, s58, 2')
    g('s_add_u32 s57, s57, s58')
    g('v_and_b32 v4, 3, v2')
    g('v_lshlrev_b32 v4, 3, v4')
    g('v_lshrrev_b32 v8, 2, v2')
    g('v_add3_u32 v4, v4, v8, s57')
    srd(g, S_P, P_X, 2048 * 896)
    srd(g, S_W, P_DSK, 896)
    g('s_mul_i32 s58, s%d, 112' % S_CG)
    g('v_lshlrev_b32 v5, 3, v3')
    g('v_add_u32 v5, s58, v5')
    g('v_mul_u32_u24 v6, 896, v4')
    g('v_add_u32 v6, v6, v5')
    XE = 96; DE = 104
    for m in range(4):
        mo = 56 * (m >> 1) + 32 * (m & 1)
        g('buffer_load_dwordx2 %s, v6, %s, 0 offen offset:%d' % (vr(XE + 2 * m, 2), sr(S_P, 4), mo))
        g('buffer_load_dwordx2 %s, v5, %s, 0 offen offset:%d' % (vr(DE + 2 * m, 2), sr(S_W, 4), mo))
    g('v_bfe_u32 v7, v1, 2, 2')
    g('v_lshrrev_b32 v8, 1, v3')
    g('v_lshl_add_u32 v7, v8, 4, v7')
    g('v_and_b32 v8, 1, v3')
    g('v_lshl_add_u32 v7, v8, 2, v7')
    g('v_lshlrev_b32 v7, 6, v7')
    g('v_and_b32 v8, 3, v1')
    g('v_lshl_add_u32 v7, v8, 3, v7')
    g('s_lshr_b32 s57, s%d, 1' % S_TT64)
    g('s_lshl_b32 s57, s57, 2')
    g('s_and_b32 s58, s%d, 1' % S_TT64)
    g('s_lshl_b32 s58, s58, 1')
    g('s_add_u32 s57, s57, s58')
    g('s_lshr_b32 s58, s14, 1')
    g('s_add_u32 s57, s57, s58')
    g('s_lshl_b32 s57, s57, 7')
    g('s_add_u32 s57, s57, %d' % WS_FO)
    g('v_lshlrev_b32 v8, 3, v2')
    g('v_add_u32 v8, s57, v8')
    g('s_lshl_b32 s57, s%d, 2' % S_CG)
    g('s_lshr_b32 s58, s%d, 3' % S_TT64)
    g('s_add_u32 s57, s57, s58')
    g('s_lshl_b32 s57, s57, 8')
    g('s_add_u32 s57, s57, %d' % WS_FY)
    g('v_and_b32 v10, 31, v1')
    g('v_min_u32 v10, 27, v10')
    g('v_lshlrev_b32 v10, 3, v10')
    g('v_add_u32 v10, s57, v10')
    if os.environ.get('COMB', '0') == '1': g('v_cndmask_b32 v8, v8, v10, %s' % sr(S_UP, 2))
    Lp = g.newlabel('L_pfo'); Lpd = g.newlabel('L_pfod')
    g('s_mov_b32 s57, 0')
    g.label(Lp)
    g('buffer_load_dwordx2 v[112:113], v8, %s, 0 offen sc0 sc1' % sr(S_WS, 4))
    g('s_waitcnt vmcnt(0)')
    g('v_cmp_eq_u64 vcc, %s, v[112:113]' % sr(S_NONCE, 2))
    g('s_cmp_eq_u32 vcc_lo, -1')
    g('s_cbranch_scc1 %s' % Lpd)
    g('s_add_u32 s57, s57, 1')
    g('s_cmp_ge_u32 s57, 200000')
    g('s_cbranch_scc1 %s' % Lpd)
    g('s_sleep 1')
    g('s_branch %s' % Lp)
    g.label(Lpd)
    if os.environ.get('COMB', '0') == '1': g('s_mov_b32 s89, vcc_hi')
    else: g('s_mov_b32 s89, 0')
    g('s_mul_i32 s57, s%d, %d' % (S_CG, 28 * 8192))
    g('s_add_u32 s57, s57, %d' % WS_Y2)
    g('v_lshlrev_b32 v12, 14, v3')
    g('v_lshl_add_u32 v12, v4, 2, v12')
    g('v_add_u32 v12, s57, v12')
    YE = 112
    def yloads():
        for m in range(4):
            for k in range(2):
                pr = 14 * (m >> 1) + 8 * (m & 1) + k
                g('s_mov_b32 s57, %d' % (pr * 8192))
                g('buffer_load_dword v%d, v12, %s, s57 offen sc0 sc1' % (YE + 2 * m + k, sr(S_WS, 4)))
    Ly = g.newlabel('L_ny')
    g('s_cmp_lg_u32 s89, -1')
    g('s_cbranch_scc1 %s' % Ly)
    yloads()
    g.label(Ly)
    stamp(g, 7, 'p3')
    stamp(g, 6)
    g('s_lshl_b32 s57, s%d, 2' % S_TT64)
    g('s_add_u32 s57, s57, s14')
    g('s_lshl_b32 s57, s57, 14')
    g('s_add_u32 s57, s57, %d' % WS_O)
    g('v_lshlrev_b32 v8, 4, v1')
    g('v_add_u32 v8, s57, v8')
    OF = 144
    for t in range(16):
        g('s_movk_i32 s57, %d' % (1024 * t))
        g('buffer_load_dwordx4 %s, v8, %s, s57 offen sc0 sc1' % (vr(OF + 4 * t, 4), sr(S_WS, 4)))
    g('v_lshlrev_b32 v9, 2, v4')
    g('v_add_u32 v9, %d, v9' % WS_G)
    g('buffer_load_dword v14, v9, %s, 0 offen sc0 sc1' % sr(S_WS, 4))
    g('s_barrier')
    stamp(g, 8, 'p3')
    DA = 16
    WFR = 32
    def wreads(t):
        for m in range(4):
            for a in range(2):
                g('ds_read_b64_tr_b16 %s, v7 offset:%d' % (vr(WFR + 16 * (t & 1) + 4 * m + 2 * a, 2), 28672 * (m >> 1) + (28 * t + 8 * a) * 64 + 32 * (m & 1)))
    wreads(0)
    for t in range(16):
        if t < 15:
            wreads(t + 1)
            g('s_waitcnt lgkmcnt(8)')
        else:
            g('s_waitcnt lgkmcnt(0)')
        g('s_waitcnt vmcnt(%d)' % (16 - t))
        for m in range(4):
            g('v_mfma_f32_16x16x32_bf16 %s, %s, %s, %s' % (vr(DA + 4 * m, 4), vr(WFR + 16 * (t & 1) + 4 * m, 4), vr(OF + 4 * t, 4), '0' if t == 0 else vr(DA + 4 * m, 4)))
    stamp(g, 7)
    stamp(g, 9, 'p3')
    Ly2 = g.newlabel('L_ny2')
    g('s_cmp_eq_u32 s89, -1')
    g('s_cbranch_scc1 %s' % Ly2)
    poll_flags(g, 10, None, 120, 57)
    yloads()
    g.label(Ly2)
    stamp(g, 8)
    srd(g, S_P, P_OUT, 2048 * 896)
    g('v_cmp_eq_u32 vcc, 3, v3')
    g('v_mov_b32 v9, 0x7ffff000')
    g('v_cndmask_b32 v9, v6, v9, vcc')
    g('v_sub_f32 v15, 1.0, v14') if False else None
    g('s_waitcnt vmcnt(0)')
    g('v_sub_f32 v15, 1.0, v14')
    for m in range(4):
        U = 64 + 16 * 0
        for k in range(2):
            g('v_lshlrev_b32 v%d, 16, v%d' % (U + 2 * k, XE + 2 * m + k))
            g('v_and_b32 v%d, 0xffff0000, v%d' % (U + 2 * k + 1, XE + 2 * m + k))
            g('v_lshlrev_b32 v%d, 16, v%d' % (U + 4 + 2 * k, DE + 2 * m + k))
            g('v_and_b32 v%d, 0xffff0000, v%d' % (U + 4 + 2 * k + 1, DE + 2 * m + k))
            g('v_lshlrev_b32 v%d, 16, v%d' % (U + 8 + 2 * k, YE + 2 * m + k))
            g('v_and_b32 v%d, 0xffff0000, v%d' % (U + 8 + 2 * k + 1, YE + 2 * m + k))
        for i in range(4):
            g('v_fma_f32 v%d, v%d, v%d, v%d' % (U + 8 + i, U + i, U + 4 + i, U + 8 + i))
            g('v_mul_f32 v%d, v15, v%d' % (U + 8 + i, U + 8 + i))
            g('v_fma_f32 v%d, v14, v%d, v%d' % (U + 8 + i, DA + 4 * m + i, U + 8 + i))
        g('v_cvt_pk_bf16_f32 v%d, v%d, v%d' % (80 + 2 * m, U + 8, U + 9))
        g('v_cvt_pk_bf16_f32 v%d, v%d, v%d' % (80 + 2 * m + 1, U + 10, U + 11))
        mo = 56 * (m >> 1) + 32 * (m & 1)
        g('buffer_store_dwordx2 %s, v%d, %s, 0 offen offset:%d' % (vr(80 + 2 * m, 2), 9 if (m & 1) else 6, sr(S_P, 4), mo))
    stamp(g, 9)
    if STSET[0] == 'hw':
        stamp(g, 9, 'hw')
        g('s_memtime s[90:91]')
        g('s_waitcnt lgkmcnt(0)')
        g('s_mov_b32 s96, s90')
    stamp_flush(g)
    g('s_endpgm')
```

```python
from common import *
import os
import struct
def f2u(x): return struct.unpack('<I', struct.pack('<f', x))[0]
LOG2E = 1.4426950408889634
L_HI = struct.unpack('<f', struct.pack('<f', LOG2E))[0]
L_LO = LOG2E - L_HI
STG = 8448
ROWS = 528
XC = 33792
CS = 5056
RB = 2688
S_LDS = XC + 8 * CS

def gen_S(g, dbg=False):
    g.label('L_S')
    g.c('---- S type: v0 tid, v1 lane, s14 wave')
    g('s_setprio %s' % os.environ.get('SPRIO', '3'))
    g('s_mul_hi_u32 s50, s2, 0x24924925')
    g('s_mul_i32 s51, s50, 7')
    g('s_sub_u32 s51, s2, s51')
    g('s_mul_i32 s52, s50, 57344')
    g('s_lshl_b32 s53, s51, 7')
    g('s_add_u32 s52, s52, s53')
    g('s_add_u32 s54, s%d, s52' % P_X)
    g('s_addc_u32 s55, s%d, 0' % (P_X + 1))
    g('v_lshrrev_b32 v2, 2, v0')
    g('v_and_b32 v3, 3, v0')
    g('v_mul_u32_u24 v4, 896, v2')
    g('v_lshl_add_u32 v4, v3, 5, v4')
    g('global_load_dwordx4 v[16:19], v4, s[54:55]')
    g('global_load_dwordx4 v[20:23], v4, s[54:55] offset:16')
    g('s_lshl_b32 s57, s2, 10')
    g('v_lshlrev_b32 v5, 2, v0')
    g('v_add_u32 v5, s57, v5')
    for i, p in enumerate((P_ARE, P_AIM, P_BRE, P_BIM, P_CRE, P_CIM)):
        g('global_load_dword v%d, v5, %s' % (32 + i, sr(p, 2)))
    g('s_lshl_b32 s57, s2, 2')
    g('s_load_dword s56, %s, s57' % sr(P_LDT, 2))
    g('v_mov_b32 v254, 0')
    g('global_load_dwordx2 v[252:253], v254, %s sc0 sc1' % sr(P_DBG, 2))
    if os.environ.get('CPF', '1') == '1':
        g('v_min_u32 v255, 5, v1')
        g('v_lshlrev_b32 v255, 21, v255')
        g('v_add_u32 v255, 0x1f0000, v255')
        g('buffer_load_dword v230, v255, %s, 0 offen' % sr(S_WS, 4))
    if os.environ.get('L2PF', '1') == '1':
        g('s_and_b32 s58, s2, 7')
        g('s_lshr_b32 s59, s2, 3')
        g('s_lshl_b32 s59, s59, 2')
        g('s_add_u32 s59, s59, s14')
        g('s_and_b32 s60, s58, 3')
        g('s_mul_i32 s60, s60, 458752')
        g('s_lshl_b32 s61, s59, 12')
        g('s_add_u32 s60, s60, s61')
        g('v_lshlrev_b32 v226, 4, v1')
        g('v_add_u32 v226, s60, v226')
        for i in range(4):
            g('global_load_dwordx4 v[228:231], v226, %s offset:%d' % (sr(P_X, 2), 1024 * i))
        g('s_lshr_b32 s60, s58, 2')
        g('s_mul_i32 s60, s60, 448')
        g('s_mul_i32 s61, s59, %d' % (4 * 2688))
        g('s_add_u32 s60, s60, s61')
        g('s_add_u32 s60, s60, 896')
        g('v_lshrrev_b32 v226, 5, v1')
        g('v_mul_u32_u24 v226, 896, v226')
        g('v_and_b32 v227, 31, v1')
        g('v_min_u32 v227, 27, v227')
        g('v_lshl_add_u32 v226, v227, 4, v226')
        g('v_add_u32 v226, s60, v226')
        for i in range(4):
            g('v_add_u32 v227, %d, v226' % (2688 * i))
            g('global_load_dwordx4 v[228:231], v227, %s' % sr(P_WQKV, 2))
    g('v_mul_u32_u24 v6, 144, v2')
    g('v_lshl_add_u32 v6, v3, 5, v6')
    g('v_add_u32 v6, %d, v6' % XC)
    g('v_lshrrev_b32 v2, 4, v1')
    g('v_and_b32 v3, 15, v1')
    g('v_lshrrev_b32 v7, 2, v3')
    g('v_lshl_add_u32 v7, v2, 3, v7')
    g('v_mul_u32_u24 v7, 144, v7')
    g('v_and_b32 v8, 3, v1')
    g('v_lshl_add_u32 v7, v8, 3, v7')
    g('s_lshl_b32 s58, s14, 5')
    g('s_add_u32 s58, s58, %d' % XC)
    g('v_add_u32 v7, s58, v7')
    g('s_lshl_b32 s58, s51, 6')
    g('s_lshl_b32 s59, s14, 4')
    g('s_add_u32 s58, s58, s59')
    g('v_add_u32 v8, s58, v3')
    g('s_movk_i32 s59, %d' % XT_ROW)
    g('v_mul_lo_u32 v8, v8, s59')
    g('s_lshl_b32 s58, s50, 7')
    g('s_add_u32 s58, s58, %d' % (WS_XT + 16))
    g('v_lshl_add_u32 v9, v2, 4, v8')
    g('v_add_u32 v9, s58, v9')
    EA = 244
    g('v_lshlrev_b32 v10, 3, v0')
    for i in range(8):
        g('v_add_u32 v%d, %d, v10' % (110 + i, 7 - i))
    for i in range(8):
        g('v_cvt_f32_u32 v%d, v%d' % (EA + i, 110 + i))
    for i in range(0, 8, 2):
        g('v_cvt_pk_bf16_f32 v%d, v%d, v%d' % (120 + i // 2, EA + i, EA + i + 1))
    g('v_cmp_gt_u32 vcc, 32, v0')
    for i in range(8):
        src = 120 + i // 2
        if i % 2 == 0:
            g('v_and_b32 v%d, 0xffff, v%d' % (EA + i, src))
        else:
            g('v_lshrrev_b32 v%d, 16, v%d' % (EA + i, src))
        g('v_subrev_u32 v%d, 17024, v%d' % (EA + i, EA + i))
        g('v_cndmask_b32 v%d, v%d, v%d, vcc' % (EA + i, EA + i, 110 + i))
        g('v_lshlrev_b32 v%d, 2, v%d' % (EA + i, EA + i))
    g('s_waitcnt vmcnt(%d)' % ((8 if os.environ.get('CPF', '1') == '1' else 7) + (8 if os.environ.get('L2PF', '1') == '1' else 0)))
    g('ds_write_b128 v6, v[16:19]')
    g('ds_write_b128 v6, v[20:23] offset:16')
    g('s_waitcnt lgkmcnt(0)')
    g('s_barrier')
    for m in range(2):
        for a in range(2):
            g('ds_read_b64_tr_b16 %s, v7 offset:%d' % (vr(24 + 4 * m + 2 * a, 2), (32 * m + 4 * a) * 144))
    g('s_waitcnt vmcnt(%d) lgkmcnt(0)' % ((2 if os.environ.get('CPF', '1') == '1' else 1) + (8 if os.environ.get('L2PF', '1') == '1' else 0)))
    g('buffer_store_dwordx4 v[24:27], v9, %s, 0 offen sc0 sc1' % sr(S_WS, 4))
    g('buffer_store_dwordx4 v[28:31], v9, %s, 0 offen offset:64 sc0 sc1' % sr(S_WS, 4))
    Lz = g.newlabel('L_nz')
    g('s_cmp_lg_u32 s50, 0')
    g('s_cbranch_scc1 %s' % Lz)
    for i in range(4):
        g('v_mov_b32 v%d, 0' % (12 + i))
    g('s_mov_b64 exec, 0xffff')
    g('buffer_store_dwordx4 v[12:15], v8, %s, 0 offen sc0 sc1' % sr(S_WS, 4))
    g('s_mov_b64 exec, -1')
    g.label(Lz)
    stamp(g, 1)
    if os.environ.get('SCUT') == '1':
        g('s_endpgm'); return
    def renonce():
        Lr = g.newlabel('L_rn')
        g('s_or_b32 s58, s2, s14')
        g('s_cmp_lg_u32 s58, 0')
        g('s_cbranch_scc1 %s' % Lr)
        g('v_mov_b32 v252, s%d' % S_NONCE)
        g('v_mov_b32 v253, s%d' % (S_NONCE + 1))
        g('global_store_dwordx2 v254, v[252:253], %s sc0 sc1' % sr(P_DBG, 2))
        g.label(Lr)
    def xt_flag():
        if os.environ.get('SCUT') == '3': return
        Lw = g.newlabel('L_w0'); Lw2 = g.newlabel('L_w0d')
        g('s_or_b32 s58, s2, s14')
        g('s_cmp_eq_u32 s58, 0')
        g('s_cbranch_scc1 %s' % Lw)
        get_nonce(g, 252, 254, 58, pre=True)
        g('s_branch %s' % Lw2)
        g.label(Lw)
        g('s_waitcnt vmcnt(0)')
        g.label(Lw2)
        g('s_lshl_b32 s58, s51, 2')
        g('s_add_u32 s58, s58, s14')
        g('s_lshl_b32 s58, s58, 5')
        g('s_add_u32 s58, s58, s50')
        g('s_lshl_b32 s58, s58, 3')
        g('s_add_u32 s58, s58, %d' % WS_FX)
        g('v_mov_b32 v11, s58')
        set_flag(g, 11, 252)
        renonce()
        g('s_setprio %s' % os.environ.get('SP2', '0'))
        stamp(g, 2)
    g.c('K-gen')
    g('s_waitcnt lgkmcnt(0)')
    g('s_lshl_b32 s58, s56, 16')
    g('s_and_b32 s59, s56, 0xffff0000')
    g('s_cmp_ge_u32 s14, 2')
    g('s_cselect_b32 s58, s59, s58')
    DT = 38
    g('v_mov_b32 v40, s58')
    g('v_mul_f32 v41, 0x%x, v40' % f2u(L_HI))
    g('s_mov_b32 s59, 0x%x' % f2u(L_HI))
    g('v_fma_f32 v42, v40, s59, -v41')
    g('v_mul_f32 v43, 0x%x, v40' % f2u(L_LO))
    g('v_add_f32 v42, v42, v43')
    g('v_exp_f32 v41, v41')
    g('v_mul_f32 v42, 0x%x, v42' % f2u(0.6931471805599453))
    g('v_fma_f32 v41, v41, v42, v41')
    g('v_cvt_pk_bf16_f32 v41, v41, v41')
    g('v_lshlrev_b32 v%d, 16, v41' % DT)
    base = {0: 40, 1: 70}
    R = {}
    for m in (0, 1):
        b = base[m]
        R[m] = dict(ar=b, ai=b + 1, B=b + 2, C=b + 4, c=b + 6, t0=b + 8, t1=b + 9, t2=b + 10, t3=b + 11,
                    E1=b + 12, E2=b + 14, E3=b + 16, E4=b + 18, E5=b + 20, E6=b + 22, E7=b + 24, E8=b + 26, L0=b + 28)
    pb = {0: 100, 1: 118}
    for m in (0, 1):
        b = pb[m]
        for i, k in enumerate((128, 256, 384, 512, 640, 768, 896, 1024, 2048)):
            R[m]['E%d' % k] = b + 2 * i
    tmp = {0: [136, 138, 140, 142], 1: [144, 146, 148, 150]}
    pk = [152, 154, 156, 158]; pkc = [0]
    BL = 160; AF = 192; D = [232, 236, 240]
    def unpack(dst, src, m):
        if m == 0: g('v_lshlrev_b32 v%d, 16, v%d' % (dst, src))
        else: g('v_and_b32 v%d, 0xffff0000, v%d' % (dst, src))
    for m in (0, 1):
        r = R[m]
        unpack(r['ar'], 32, m); unpack(r['ai'], 33, m)
        unpack(r['B'], 34, m); unpack(r['B'] + 1, 35, m)
        unpack(r['C'], 36, m); unpack(r['C'] + 1, 37, m)
    for m in (0, 1):
        r = R[m]
        g('v_mul_f32 v%d, v%d, v%d' % (r['ar'], r['ar'], DT))
        g('v_mul_f32 v%d, v%d, v%d' % (r['ai'], r['ai'], DT))
        g('v_mul_f32 v%d, v%d, v%d' % (r['B'], r['B'], DT))
        g('v_mul_f32 v%d, v%d, v%d' % (r['B'] + 1, r['B'] + 1, DT))
    for m in (0, 1):
        r = R[m]
        g('v_mul_f32 v%d, 0x%x, v%d' % (r['ar'], f2u(L_HI), r['ar']))
        g('v_mul_f32 v%d, 0x%x, v%d' % (r['ai'], f2u(0.15915494309189535), r['ai']))
        cmul(g, r['c'], r['C'], r['B'])
    for m in (0, 1):
        cmul2(g, R[m]['c'], R[m]['C'], R[m]['B'])
    def direct(name, k):
        for m in (0, 1):
            r = R[m]
            g('v_mul_f32 v%d, 0x%x, v%d' % (r['t0'], f2u(float(k)), r['ar']))
            g('v_mul_f32 v%d, 0x%x, v%d' % (r['t1'], f2u(float(k)), r['ai']))
        for m in (0, 1):
            r = R[m]
            g('v_exp_f32 v%d, v%d' % (r['t0'], r['t0']))
            g('v_fract_f32 v%d, v%d' % (r['t1'], r['t1']))
        for m in (0, 1):
            r = R[m]
            g('v_cos_f32 v%d, v%d' % (r['t2'], r['t1']))
            g('v_sin_f32 v%d, v%d' % (r['t3'], r['t1']))
        for m in (0, 1):
            r = R[m]
            g('v_pk_mul_f32 %s, %s, %s op_sel_hi:[1,0]' % (vr(r[name], 2), vr(r['t2'], 2), vr(r['t0'], 2)))
    direct('E8', 8); direct('E1', 1); direct('E128', 128)
    g('s_mul_i32 s62, s14, %d' % STG)
    g('v_lshlrev_b32 v12, 3, v1')
    g('v_add_u32 v12, s62, v12')
    g('v_mul_u32_u24 v13, %d, v3' % ROWS)
    g('v_and_b32 v14, 1, v2')
    g('v_lshl_add_u32 v13, v14, 8, v13')
    g('v_lshrrev_b32 v14, 1, v2')
    g('v_lshl_add_u32 v13, v14, 7, v13')
    g('v_add_u32 v13, s62, v13')
    def row(idx, regs, conj):
        t = pk[pkc[0] % 4]; pkc[0] += 1
        for m in (0, 1):
            rr = regs[m]
            if rr == 'one':
                g('v_mov_b32 v%d, 0x3f80' % (t + m))
            else:
                g('v_cvt_pk_bf16_f32 v%d, v%d, %sv%d' % (t + m, rr, '-' if conj else '', rr + 1))
        g('ds_write_b64 v12, %s offset:%d' % (vr(t, 2), idx * ROWS))
    tc = [0]
    def prow(idx, an, bn, conj=True):
        k = tc[0] % 4; tc[0] += 1
        for m in (0, 1): cmul(g, tmp[m][k], R[m][an], R[m][bn])
        for m in (0, 1): cmul2(g, tmp[m][k], R[m][an], R[m][bn])
        row(idx, {0: tmp[0][k], 1: tmp[1][k]}, conj)
    def nrow(idx, an, conj=True):
        row(idx, {0: R[0][an], 1: R[1][an]}, conj)
    nrow(0, 'c', False)
    cur = {0: R[0]['c'], 1: R[1]['c']}
    lt = {0: [R[0]['L0'], R[0]['B']], 1: [R[1]['L0'], R[1]['B']]}
    extra = [('E2', 'E1', 'E1'), ('E256', 'E128', 'E128'), ('E3', 'E2', 'E1'), ('E4', 'E2', 'E2'), ('E384', 'E256', 'E128'), ('E512', 'E256', 'E256'),
             ('E5', 'E4', 'E1'), ('E6', 'E4', 'E2'), ('E7', 'E4', 'E3'), ('E640', 'E512', 'E128'), ('E768', 'E512', 'E256'), ('E896', 'E512', 'E384'),
             ('E1024', 'E512', 'E512'), ('E2048', 'E1024', 'E1024')]
    for w in range(1, 16):
        nx = {m: lt[m][w % 2] for m in (0, 1)}
        for m in (0, 1): cmul(g, nx[m], cur[m], R[m]['E8'])
        if w - 1 < len(extra):
            dn, an, bn = extra[w - 1]
            for m in (0, 1): cmul(g, R[m][dn], R[m][an], R[m][bn])
        for m in (0, 1): cmul2(g, nx[m], cur[m], R[m]['E8'])
        if w - 1 < len(extra):
            for m in (0, 1): cmul2(g, R[m][dn], R[m][an], R[m][bn])
        row(w, nx, False)
        cur = nx
    def reads(dst):
        for t in range(8):
            g('ds_read_b128 %s, v13 offset:%d' % (vr(dst + 4 * t, 4), 16 * t))
    def mfmas(ti, waitn):
        g('s_waitcnt lgkmcnt(%d)' % waitn)
        for t in range(8):
            g('v_mfma_f32_16x16x32_bf16 %s, %s, %s, %s' % (vr(D[ti], 4), vr(AF + 4 * t, 4), vr(BL + 4 * t, 4), '0' if t == 0 else vr(D[ti], 4)))
    reads(BL)
    xt_flag()
    t0rows = [lambda: row(0, {0: 'one', 1: 'one'}, True)] + [(lambda r_=r_: nrow(r_, 'E%d' % r_)) for r_ in range(1, 8)] + \
             [lambda: nrow(8, 'E128')] + [(lambda r_=r_: prow(8 + r_, 'E128', 'E%d' % r_)) for r_ in range(1, 8)]
    t1rows = [lambda: nrow(0, 'E256')] + [(lambda i=i: prow(i, 'E256', 'E%d' % (2 * i))) for i in range(1, 4)] + \
             [lambda: nrow(4, 'E384')] + [(lambda i=i: prow(4 + i, 'E384', 'E%d' % (2 * i))) for i in range(1, 4)]
    for i, k in enumerate((512, 640, 768, 896)):
        t1rows.append(lambda i=i, k=k: nrow(8 + 2 * i, 'E%d' % k))
        t1rows.append(lambda i=i, k=k: prow(9 + 2 * i, 'E%d' % k, 'E4'))
    t2rows = [lambda: nrow(0, 'E1024')] + [(lambda i=i: prow(i, 'E1024', 'E%d' % (128 * i))) for i in range(1, 8)] + [lambda: nrow(8, 'E2048')]
    for f in t0rows: f()
    reads(AF)
    for f in t1rows[:12]: f()
    mfmas(0, 12)
    for f in t1rows[12:]: f()
    reads(AF)
    for f in t2rows: f()
    mfmas(1, 9)
    reads(AF)
    stamp(g, 3)
    if os.environ.get('SCUT') == '3':
        g('s_endpgm'); return
    renonce()
    g.c('poll XT')
    g('s_lshr_b32 s58, s2, 5')
    g('s_bfe_u32 s59, s2, 0x20003')
    g('s_lshl_b32 s58, s58, 2')
    g('s_add_u32 s58, s58, s59')
    g('s_lshl_b32 s58, s58, 8')
    g('s_add_u32 s58, s58, %d' % WS_FX)
    g('v_and_b32 v8, 31, v1')
    g('v_lshlrev_b32 v8, 3, v8')
    g('v_add_u32 v8, s58, v8')
    poll_flags(g, 8, None, 16, 58)
    stamp(g, 4)
    g('s_mul_i32 s58, s2, %d' % (2 * XT_ROW))
    g('s_add_u32 s58, s58, %d' % (WS_XT + 8))
    g('v_lshlrev_b32 v8, 4, v0')
    g('v_add_u32 v8, s58, v8')
    XR = 40
    for c2 in range(2):
        for k, off in enumerate((8, 4, 0)):
            g('buffer_load_dwordx4 %s, v8, %s, 0 offen offset:%d sc0 sc1' % (vr(XR + 12 * c2 + 4 * k, 4), sr(S_WS, 4), off + c2 * XT_ROW if False else off) if c2 == 0 else
              'buffer_load_dwordx4 %s, v9, %s, 0 offen offset:%d sc0 sc1' % (vr(XR + 12 * c2 + 4 * k, 4), sr(S_WS, 4), off))
        if c2 == 0:
            g('v_add_u32 v9, %d, v8' % XT_ROW)
    g('v_lshrrev_b32 v14, 1, v2')
    g('v_and_b32 v15, 1, v2')
    g('v_lshlrev_b32 v4, 9, v14')
    g('v_lshl_add_u32 v4, v3, 5, v4')
    g('v_lshl_add_u32 v4, v15, 4, v4')
    g('v_add_u32 v4, s62, v4')
    g('v_lshlrev_b32 v5, 8, v2')
    g('v_add_u32 v5, 1024, v5')
    g('v_add_u32 v5, s62, v5')
    g('v_lshl_add_u32 v6, v3, 4, v5')
    g('v_lshl_add_u32 v7, v3, 3, v5')
    g('v_cmp_gt_u32 vcc, 2, v2')
    g('v_cndmask_b32 v5, v7, v6, vcc')
    g('v_add_u32 v6, 8, v5')
    g('v_add_u32 v7, 128, v5')
    g('v_cndmask_b32 v6, v7, v6, vcc')
    g('v_lshlrev_b32 v7, 8, v2')
    g('v_lshl_add_u32 v7, v3, 2, v7')
    g('v_add_u32 v7, 2048, v7')
    g('v_add_u32 v7, s62, v7')
    mfmas(2, 0)
    g('ds_write_b128 v4, %s' % vr(D[0], 4))
    g('ds_write_b64 v5, %s' % vr(D[1], 2))
    g('ds_write_b64 v6, %s' % vr(D[1] + 2, 2))
    for r_ in range(4):
        g('ds_write_b32 v7, v%d offset:%d' % (D[2] + r_, 64 * r_))
    g('s_waitcnt lgkmcnt(0)')
    g('s_barrier')
    g.c('expansion')
    KR = 64
    for ch in range(2):
        for hf in range(2):
            for i in range(8):
                g('ds_read_b32 v%d, v%d offset:%d' % (KR + 16 * ch + 8 * hf + i, EA + i, (2 * ch + hf) * STG))
    g('v_lshlrev_b32 v10, 4, v0')
    g('v_sub_u32 v10, %d, v10' % (RB + 4080))
    for i in range(4):
        g('v_mov_b32 v%d, 0' % (96 + i))
    g('s_mov_b32 s58, 0x%x' % ((1 << 32) // 18 + 1))
    g('v_mul_hi_u32 v11, v0, s58')
    g('v_mul_u32_u24 v12, 18, v11')
    g('v_sub_u32 v12, v0, v12')
    g('v_mul_u32_u24 v11, %d, v11' % CS)
    g('v_lshl_add_u32 v11, v12, 4, v11')
    g('v_lshrrev_b32 v12, 4, v12')
    g('v_lshl_add_u32 v11, v12, 5, v11')
    g('v_add_u32 v11, %d, v11' % XC)
    g('v_subrev_u32 v12, 144, v0')
    g('v_and_b32 v13, 15, v12')
    g('v_lshrrev_b32 v12, 4, v12')
    g('v_mul_u32_u24 v12, %d, v12' % (2 * STG))
    g('v_lshl_add_u32 v12, v13, 4, v12')
    g('v_add_u32 v12, %d, v12' % (RB + 4096))
    g('v_cmp_gt_u32 vcc, 144, v0')
    g('v_cndmask_b32 v11, v12, v11, vcc')
    g('v_cmp_gt_u32 vcc, 176, v0')
    g('s_and_saveexec_b64 s[58:59], vcc')
    Lq = g.newlabel('L_zq')
    g('s_cbranch_execz %s' % Lq)
    g('ds_write_b128 v11, v[96:99]')
    g.label(Lq)
    g('s_mov_b64 exec, s[58:59]')
    g('v_lshlrev_b32 v11, 3, v0')
    g('v_add_u32 v11, 144, v11')
    g('v_lshrrev_b32 v12, 7, v11')
    g('v_lshlrev_b32 v11, 1, v11')
    g('v_lshl_add_u32 v11, v12, 5, v11')
    g('v_add_u32 v11, %d, v11' % XC)
    g('s_waitcnt lgkmcnt(0)')
    for ch in range(2):
        for i in range(8):
            g('v_add_f32 v%d, v%d, v%d' % (KR + 16 * ch + i, KR + 16 * ch + i, KR + 16 * ch + 8 + i))
        for i in range(0, 8, 2):
            g('v_cvt_pk_bf16_f32 v%d, v%d, v%d' % (100 + 4 * ch + i // 2, KR + 16 * ch + i, KR + 16 * ch + i + 1))
        g('ds_write_b128 v10, %s offset:%d' % (vr(100 + 4 * ch, 4), ch * 2 * STG))
    g('s_waitcnt vmcnt(0)')
    for ch in range(2):
        A = XR + 12 * ch; B = A + 4; C = A + 8
        c1 = 108 + 8 * ch; c3 = c1 + 4
        for k in range(4):
            g('v_alignbit_b32 v%d, v%d, v%d, 16' % (c1 + k, A + k, B + k))
            g('v_alignbit_b32 v%d, v%d, v%d, 16' % (c3 + k, B + k, C + k))
        g('ds_write_b128 v11, %s offset:%d' % (vr(A, 4), (4 * ch + 0) * CS))
        g('ds_write_b128 v11, %s offset:%d' % (vr(c1, 4), (4 * ch + 1) * CS))
        g('ds_write_b128 v11, %s offset:%d' % (vr(B, 4), (4 * ch + 2) * CS))
        g('ds_write_b128 v11, %s offset:%d' % (vr(c3, 4), (4 * ch + 3) * CS))
    g.c('conv')
    g('s_lshr_b32 s58, s14, 1')
    g('s_and_b32 s59, s14, 1')
    g('s_mul_i32 s60, s58, %d' % (2 * STG))
    g('s_lshl_b32 s61, s59, 8')
    g('s_sub_u32 s60, s60, s61')
    g('s_add_u32 s60, s60, %d' % (RB + 4272 - 3584))
    g('v_sub_u32 v4, v2, v3')
    g('v_lshlrev_b32 v4, 4, v4')
    g('v_add_u32 v4, s60, v4')
    g('v_lshrrev_b32 v5, 3, v3')
    g('v_lshlrev_b32 v5, 7, v5')
    g('v_lshl_add_u32 v5, v2, 3, v5')
    g('v_and_b32 v6, 4, v3')
    g('v_add_u32 v5, v5, v6')
    g('s_lshl_b32 s61, s59, 7')
    g('s_sub_u32 s61, 236, s61')
    g('v_add_u32 v5, s61, v5')
    g('v_and_b32 v6, 3, v3')
    g('v_sub_u32 v6, 3, v6')
    g('v_mul_u32_u24 v6, %d, v6' % CS)
    g('s_mul_i32 s61, s58, %d' % (4 * CS))
    g('s_add_u32 s61, s61, %d' % XC)
    g('v_add_u32 v6, s61, v6')
    g('s_waitcnt lgkmcnt(0)')
    g('s_barrier')
    stamp(g, 5)
    ACC = 16; F = 48; GG = 80
    for i in range(32):
        g('v_mov_b32 v%d, 0' % (ACC + i))
    SETS = [(48, 80), (112, 144)]
    def rd_list(st):
        F_, G_ = SETS[st]
        out = []
        out.append('v_lshrrev_b32 v7, 7, v5'); out.append('v_lshlrev_b32 v8, 1, v5'); out.append('v_lshl_add_u32 v7, v7, 5, v8'); out.append('v_add_u32 v7, v6, v7')
        out.append('v_add_u32 v8, 4, v5'); out.append('v_lshrrev_b32 v9, 7, v8'); out.append('v_lshlrev_b32 v8, 1, v8'); out.append('v_lshl_add_u32 v8, v9, 5, v8'); out.append('v_add_u32 v8, v6, v8')
        out.append('ds_read_b128 %s, v4 offset:%d' % (vr(F_, 4), 512 * 7))
        for w in range(8):
            out.append('ds_read_b64 %s, v7 offset:%d' % (vr(G_ + 4 * w, 2), 576 * w))
            out.append('ds_read_b64 %s, v8 offset:%d' % (vr(G_ + 4 * w + 2, 2), 576 * w))
        for v in range(1, 8):
            out.append('ds_read_b128 %s, v4 offset:%d' % (vr(F_ + 4 * v, 4), 512 * (7 - v)))
        out.append('v_subrev_u32 v4, 64, v4'); out.append('v_subrev_u32 v5, 32, v5')
        return out
    def mf_list(st):
        F_, G_ = SETS[st]
        return ['v_mfma_f32_16x16x32_bf16 %s, %s, %s, %s' % (vr(ACC + 4 * (v + w), 4), vr(G_ + 4 * w, 4), vr(F_ + 4 * v, 4), vr(ACC + 4 * (v + w), 4))
                for v in range(8) for w in range(8 - v)]
    for l in rd_list(0): g(l)
    for rr in range(4):
        g('s_waitcnt lgkmcnt(0)')
        m_ = mf_list(rr & 1)
        r_ = rd_list((rr + 1) & 1) if rr < 3 else []
        k = 0
        for i, l in enumerate(m_):
            g(l)
            while k < len(r_) and k < (i + 1) * 2:
                g(r_[k]); k += 1
    stamp(g, 6)
    g('s_barrier')
    g('v_lshrrev_b32 v14, 1, v2')
    g('v_and_b32 v15, 1, v2')
    g('v_lshlrev_b32 v4, 9, v14')
    g('v_lshl_add_u32 v4, v3, 5, v4')
    g('v_lshl_add_u32 v4, v15, 4, v4')
    g('s_lshl_b32 s58, s14, 13')
    g('s_add_u32 s58, s58, %d' % XC)
    g('v_add_u32 v4, s58, v4')
    for ct in range(8):
        g('ds_write_b128 v4, %s offset:%d' % (vr(ACC + 4 * ct, 4), 1024 * ct))
    g('s_waitcnt lgkmcnt(0)')
    g('s_barrier')
    g('v_lshlrev_b32 v4, 5, v0')
    g('v_add_u32 v4, %d, v4' % XC)
    for a_ in range(4):
        g('ds_read_b128 %s, v4 offset:%d' % (vr(48 + 8 * a_, 4), 8192 * a_))
        g('ds_read_b128 %s, v4 offset:%d' % (vr(52 + 8 * a_, 4), 8192 * a_ + 16))
    g('s_lshl_b32 s58, s2, 13')
    g('s_add_u32 s58, s58, %d' % WS_Y2)
    g('v_lshlrev_b32 v5, 5, v0')
    g('v_add_u32 v5, s58, v5')
    g('s_waitcnt lgkmcnt(0)')
    for i in range(8):
        g('v_add_f32 v%d, v%d, v%d' % (48 + i, 48 + i, 56 + i))
        g('v_add_f32 v%d, v%d, v%d' % (64 + i, 64 + i, 72 + i))
    for i in range(8):
        g('v_cvt_pk_bf16_f32 v%d, v%d, v%d' % (80 + i, 48 + i, 64 + i))
    g('buffer_store_dwordx4 v[80:83], v5, %s, 0 offen sc0 sc1' % sr(S_WS, 4))
    g('buffer_store_dwordx4 v[84:87], v5, %s, 0 offen offset:16 sc0 sc1' % sr(S_WS, 4))
    g('s_mov_b32 s58, 0x%x' % ((1 << 32) // 28 + 1))
    g('s_mul_hi_u32 s59, s2, s58')
    g('s_mul_i32 s60, s59, 28')
    g('s_sub_u32 s60, s2, s60')
    g('s_lshl_b32 s59, s59, 2')
    g('s_add_u32 s59, s59, s14')
    g('s_lshl_b32 s59, s59, 5')
    g('s_add_u32 s59, s59, s60')
    g('s_lshl_b32 s59, s59, 3')
    g('s_add_u32 s59, s59, %d' % WS_FY)
    g('v_mov_b32 v6, s59')
    g('s_waitcnt vmcnt(0)')
    stamp(g, 7)
    set_flag(g, 6, 8)
    stamp(g, 8)
    stamp(g, 9)
    stamp_flush(g)
    g('s_endpgm')
```

```python
from asmlib import *

KNAME = 'gated_mix__linear_kernel_hedgehog__ssm_conv_s4__prompt_kernel'
WS_XT = 0x000000; XT_ROW = 4128
WS_Y2 = 0x200000
WS_O = 0x400000
WS_KVP = 0x800000
WS_G = 0xA00000
WS_FX = 0xB00000
WS_FY = 0xB02000
WS_FK = 0xB04000
WS_FO = 0xB06000
WS_WO2 = 0x600000
WS_FW = 0xB08000
WS_DBG = 0x1000000
NS = 224; NA = 256
S_WS = 4
S_T = 8
S_NONCE = 12
S_WAVE = 14
P_X, P_WQKV, P_WPHI, P_WO, P_U, P_ARE, P_AIM, P_BRE, P_BIM, P_CRE, P_CIM, P_LDT, P_DSK, P_GW, P_OUT, P_DBG, P_WS = [16 + 2 * i for i in range(17)]

def poll_flags(g, voff, n_lanes_mask_note, vtmp, stmp, limit=200000):
    L = g.newlabel('L_poll'); D = g.newlabel('L_polld')
    g('s_mov_b32 s%d, 0' % stmp)
    g.label(L)
    g('buffer_load_dwordx2 %s, v%d, %s, 0 offen sc0 sc1' % (vr(vtmp, 2), voff, sr(S_WS, 4)))
    g('s_waitcnt vmcnt(0)')
    g('v_cmp_eq_u64 vcc, %s, %s' % (sr(S_NONCE, 2), vr(vtmp, 2)))
    g('s_cmp_eq_u64 vcc, exec')
    g('s_cbranch_scc1 %s' % D)
    g('s_add_u32 s%d, s%d, 1' % (stmp, stmp))
    g('s_cmp_ge_u32 s%d, %d' % (stmp, limit))
    g('s_cbranch_scc1 %s' % D)
    g('s_sleep 1')
    g('s_and_b32 vcc_lo, s%d, 63' % stmp)
    g('s_cmp_lg_u32 vcc_lo, 63')
    g('s_cbranch_scc1 %s' % L)
    g('buffer_inv sc0 sc1')
    g('s_waitcnt vmcnt(0)')
    g('s_branch %s' % L)
    g.label(D)

def get_nonce(g, vtmp, vzero, stmp, limit=200000, pre=False, cnt=0):
    L = g.newlabel('L_non'); D = g.newlabel('L_nond'); C = g.newlabel('L_nonc')
    g('s_mov_b32 s%d, 0' % stmp)
    if pre: g('s_branch %s' % C)
    g.label(L)
    g('global_load_dwordx2 %s, v%d, %s sc0 sc1' % (vr(vtmp, 2), vzero, sr(P_DBG, 2)))
    g('s_waitcnt vmcnt(0)')
    g.label(C)
    g('s_waitcnt vmcnt(%d)' % cnt)
    g('v_readfirstlane_b32 s%d, v%d' % (S_NONCE, vtmp))
    g('v_readfirstlane_b32 s%d, v%d' % (S_NONCE + 1, vtmp + 1))
    g('s_cmp_lg_u32 s%d, 0' % S_NONCE)
    g('s_cbranch_scc1 %s' % D)
    g('s_add_u32 s%d, s%d, 1' % (stmp, stmp))
    g('s_cmp_ge_u32 s%d, %d' % (stmp, limit))
    g('s_cbranch_scc1 %s' % D)
    g('s_sleep 1')
    g('s_and_b32 vcc_lo, s%d, 63' % stmp)
    g('s_cmp_lg_u32 vcc_lo, 63')
    g('s_cbranch_scc1 %s' % L)
    g('buffer_inv sc0 sc1')
    g('s_waitcnt vmcnt(0)')
    g('s_branch %s' % L)
    g.label(D)

def set_flag(g, voff, vtmp):
    g('v_mov_b32 v%d, s%d' % (vtmp, S_NONCE))
    g('v_mov_b32 v%d, s%d' % (vtmp + 1, S_NONCE + 1))
    g('s_mov_b64 exec, 1')
    g('buffer_store_dwordx2 %s, v%d, %s, 0 offen sc0 sc1' % (vr(vtmp, 2), voff, sr(S_WS, 4)))
    g('s_mov_b64 exec, -1')

def cmul(g, d, a, b):
    g('v_pk_mul_f32 %s, %s, %s op_sel:[0,0] op_sel_hi:[0,1]' % (vr(d, 2), vr(a, 2), vr(b, 2)))
def cmul2(g, d, a, b):
    g('v_pk_fma_f32 %s, %s, %s, %s op_sel:[1,1,0] op_sel_hi:[1,0,1] neg_lo:[1,0,0]' % (vr(d, 2), vr(a, 2), vr(b, 2), vr(d, 2)))

STAMPS = [False]
STSET = ['main']
def stamp(g, i, st='main'):
    if not STAMPS[0] or STSET[0] != st: return
    g('s_memrealtime s[90:91]')
    g('s_waitcnt lgkmcnt(0)')
    g('s_mov_b32 s%d, s90' % (92 + i))
def stamp_flush(g, n=10):
    if not STAMPS[0]: return
    g('s_lshl_b32 s90, s2, 2')
    g('s_add_u32 s90, s90, s14')
    g('s_lshl_b32 s90, s90, 6')
    g('s_add_u32 s90, s90, %d' % WS_DBG)
    g('v_mov_b32 v20, s90')
    g('s_mov_b64 exec, 1')
    for i in range(n):
        g('v_mov_b32 v21, s%d' % (92 + i))
        g('buffer_store_dword v21, v20, %s, 0 offen offset:%d' % (sr(S_WS, 4), 4 * i))
    g('s_mov_b64 exec, -1')
```

```python
from common import *
import os
import struct
def f2u(x): return struct.unpack('<I', struct.pack('<f', x))[0]
LOG2E = 1.4426950408889634
L_HI = struct.unpack('<f', struct.pack('<f', LOG2E))[0]
L_LO = LOG2E - L_HI
STG = 8448
ROWS = 528
XC = 33792
CS = 5056
RB = 2688
S_LDS = XC + 8 * CS

def gen_S(g, dbg=False):
    g.label('L_S')
    g.c('---- S type: v0 tid, v1 lane, s14 wave')
    g('s_setprio %s' % os.environ.get('SPRIO', '3'))
    g('s_mul_hi_u32 s50, s2, 0x24924925')
    g('s_mul_i32 s51, s50, 7')
    g('s_sub_u32 s51, s2, s51')
    g('s_mul_i32 s52, s50, 57344')
    g('s_lshl_b32 s53, s51, 7')
    g('s_add_u32 s52, s52, s53')
    g('s_add_u32 s54, s%d, s52' % P_X)
    g('s_addc_u32 s55, s%d, 0' % (P_X + 1))
    g('v_lshrrev_b32 v2, 2, v0')
    g('v_and_b32 v3, 3, v0')
    g('v_mul_u32_u24 v4, 896, v2')
    g('v_lshl_add_u32 v4, v3, 5, v4')
    g('global_load_dwordx4 v[16:19], v4, s[54:55]')
    g('global_load_dwordx4 v[20:23], v4, s[54:55] offset:16')
    g('s_lshl_b32 s57, s2, 10')
    g('v_lshlrev_b32 v5, 2, v0')
    g('v_add_u32 v5, s57, v5')
    for i, p in enumerate((P_ARE, P_AIM, P_BRE, P_BIM, P_CRE, P_CIM)):
        g('global_load_dword v%d, v5, %s' % (32 + i, sr(p, 2)))
    g('s_lshl_b32 s57, s2, 2')
    g('s_load_dword s56, %s, s57' % sr(P_LDT, 2))
    g('v_mov_b32 v254, 0')
    g('global_load_dwordx2 v[252:253], v254, %s sc0 sc1' % sr(P_DBG, 2))
    if os.environ.get('CPF', '1') == '1':
        g('v_min_u32 v255, 5, v1')
        g('v_lshlrev_b32 v255, 21, v255')
        g('v_add_u32 v255, 0x1f0000, v255')
        g('buffer_load_dword v230, v255, %s, 0 offen' % sr(S_WS, 4))
    if os.environ.get('L2PF', '1') == '1':
        g('s_and_b32 s58, s2, 7')
        g('s_lshr_b32 s59, s2, 3')
        g('s_lshl_b32 s59, s59, 2')
        g('s_add_u32 s59, s59, s14')
        g('s_and_b32 s60, s58, 3')
        g('s_mul_i32 s60, s60, 458752')
        g('s_lshl_b32 s61, s59, 12')
        g('s_add_u32 s60, s60, s61')
        g('v_lshlrev_b32 v226, 4, v1')
        g('v_add_u32 v226, s60, v226')
        for i in range(4):
            g('global_load_dwordx4 v[228:231], v226, %s offset:%d' % (sr(P_X, 2), 1024 * i))
        g('s_lshr_b32 s60, s58, 2')
        g('s_mul_i32 s60, s60, 448')
        g('s_mul_i32 s61, s59, %d' % (4 * 2688))
        g('s_add_u32 s60, s60, s61')
        g('s_add_u32 s60, s60, 896')
        g('v_lshrrev_b32 v226, 5, v1')
        g('v_mul_u32_u24 v226, 896, v226')
        g('v_and_b32 v227, 31, v1')
        g('v_min_u32 v227, 27, v227')
        g('v_lshl_add_u32 v226, v227, 4, v226')
        g('v_add_u32 v226, s60, v226')
        for i in range(4):
            g('v_add_u32 v227, %d, v226' % (2688 * i))
            g('global_load_dwordx4 v[228:231], v227, %s' % sr(P_WQKV, 2))
    g('v_mul_u32_u24 v6, 144, v2')
    g('v_lshl_add_u32 v6, v3, 5, v6')
    g('v_add_u32 v6, %d, v6' % XC)
    g('v_lshrrev_b32 v2, 4, v1')
    g('v_and_b32 v3, 15, v1')
    g('v_lshrrev_b32 v7, 2, v3')
    g('v_lshl_add_u32 v7, v2, 3, v7')
    g('v_mul_u32_u24 v7, 144, v7')
    g('v_and_b32 v8, 3, v1')
    g('v_lshl_add_u32 v7, v8, 3, v7')
    g('s_lshl_b32 s58, s14, 5')
    g('s_add_u32 s58, s58, %d' % XC)
    g('v_add_u32 v7, s58, v7')
    g('s_lshl_b32 s58, s51, 6')
    g('s_lshl_b32 s59, s14, 4')
    g('s_add_u32 s58, s58, s59')
    g('v_add_u32 v8, s58, v3')
    g('s_movk_i32 s59, %d' % XT_ROW)
    g('v_mul_lo_u32 v8, v8, s59')
    g('s_lshl_b32 s58, s50, 7')
    g('s_add_u32 s58, s58, %d' % (WS_XT + 16))
    g('v_lshl_add_u32 v9, v2, 4, v8')
    g('v_add_u32 v9, s58, v9')
    EA = 244
    g('v_lshlrev_b32 v10, 3, v0')
    for i in range(8):
        g('v_add_u32 v%d, %d, v10' % (110 + i, 7 - i))
    for i in range(8):
        g('v_cvt_f32_u32 v%d, v%d' % (EA + i, 110 + i))
    for i in range(0, 8, 2):
        g('v_cvt_pk_bf16_f32 v%d, v%d, v%d' % (120 + i // 2, EA + i, EA + i + 1))
    g('v_cmp_gt_u32 vcc, 32, v0')
    for i in range(8):
        src = 120 + i // 2
        if i % 2 == 0:
            g('v_and_b32 v%d, 0xffff, v%d' % (EA + i, src))
        else:
            g('v_lshrrev_b32 v%d, 16, v%d' % (EA + i, src))
        g('v_subrev_u32 v%d, 17024, v%d' % (EA + i, EA + i))
        g('v_cndmask_b32 v%d, v%d, v%d, vcc' % (EA + i, EA + i, 110 + i))
        g('v_lshlrev_b32 v%d, 2, v%d' % (EA + i, EA + i))
    g('s_waitcnt vmcnt(%d)' % ((8 if os.environ.get('CPF', '1') == '1' else 7) + (8 if os.environ.get('L2PF', '1') == '1' else 0)))
    g('ds_write_b128 v6, v[16:19]')
    g('ds_write_b128 v6, v[20:23] offset:16')
    g('s_waitcnt lgkmcnt(0)')
    g('s_barrier')
    for m in range(2):
        for a in range(2):
            g('ds_read_b64_tr_b16 %s, v7 offset:%d' % (vr(24 + 4 * m + 2 * a, 2), (32 * m + 4 * a) * 144))
    g('s_waitcnt vmcnt(%d) lgkmcnt(0)' % ((2 if os.environ.get('CPF', '1') == '1' else 1) + (8 if os.environ.get('L2PF', '1') == '1' else 0)))
    g('buffer_store_dwordx4 v[24:27], v9, %s, 0 offen sc0 sc1' % sr(S_WS, 4))
    g('buffer_store_dwordx4 v[28:31], v9, %s, 0 offen offset:64 sc0 sc1' % sr(S_WS, 4))
    Lz = g.newlabel('L_nz')
    g('s_cmp_lg_u32 s50, 0')
    g('s_cbranch_scc1 %s' % Lz)
    for i in range(4):
        g('v_mov_b32 v%d, 0' % (12 + i))
    g('s_mov_b64 exec, 0xffff')
    g('buffer_store_dwordx4 v[12:15], v8, %s, 0 offen sc0 sc1' % sr(S_WS, 4))
    g('s_mov_b64 exec, -1')
    g.label(Lz)
    stamp(g, 1)
    if os.environ.get('SCUT') == '1':
        g('s_endpgm'); return
    def renonce():
        Lr = g.newlabel('L_rn')
        g('s_or_b32 s58, s2, s14')
        g('s_cmp_lg_u32 s58, 0')
        g('s_cbranch_scc1 %s' % Lr)
        g('v_mov_b32 v252, s%d' % S_NONCE)
        g('v_mov_b32 v253, s%d' % (S_NONCE + 1))
        g('global_store_dwordx2 v254, v[252:253], %s sc0 sc1' % sr(P_DBG, 2))
        g.label(Lr)
    def xt_flag():
        if os.environ.get('SCUT') == '3': return
        get_nonce(g, 252, 254, 58, pre=True)
        g('s_lshl_b32 s58, s51, 2')
        g('s_add_u32 s58, s58, s14')
        g('s_lshl_b32 s58, s58, 5')
        g('s_add_u32 s58, s58, s50')
        g('s_lshl_b32 s58, s58, 3')
        g('s_add_u32 s58, s58, %d' % WS_FX)
        g('v_mov_b32 v11, s58')
        set_flag(g, 11, 252)
        g('s_setprio %s' % os.environ.get('SP2', '0'))
        stamp(g, 2)
    g.c('K-gen')
    g('s_waitcnt lgkmcnt(0)')
    g('s_lshl_b32 s58, s56, 16')
    g('s_and_b32 s59, s56, 0xffff0000')
    g('s_cmp_ge_u32 s14, 2')
    g('s_cselect_b32 s58, s59, s58')
    DT = 38
    g('v_mov_b32 v40, s58')
    g('v_mul_f32 v41, 0x%x, v40' % f2u(L_HI))
    g('s_mov_b32 s59, 0x%x' % f2u(L_HI))
    g('v_fma_f32 v42, v40, s59, -v41')
    g('v_mul_f32 v43, 0x%x, v40' % f2u(L_LO))
    g('v_add_f32 v42, v42, v43')
    g('v_exp_f32 v41, v41')
    g('v_mul_f32 v42, 0x%x, v42' % f2u(0.6931471805599453))
    g('v_fma_f32 v41, v41, v42, v41')
    g('v_cvt_pk_bf16_f32 v41, v41, v41')
    g('v_lshlrev_b32 v%d, 16, v41' % DT)
    base = {0: 40, 1: 70}
    R = {}
    for m in (0, 1):
        b = base[m]
        R[m] = dict(ar=b, ai=b + 1, B=b + 2, C=b + 4, c=b + 6, t0=b + 8, t1=b + 9, t2=b + 10, t3=b + 11,
                    E1=b + 12, E2=b + 14, E3=b + 16, E4=b + 18, E5=b + 20, E6=b + 22, E7=b + 24, E8=b + 26, L0=b + 28)
    pb = {0: 100, 1: 118}
    for m in (0, 1):
        b = pb[m]
        for i, k in enumerate((128, 256, 384, 512, 640, 768, 896, 1024, 2048)):
            R[m]['E%d' % k] = b + 2 * i
    tmp = {0: [136, 138, 140, 142], 1: [144, 146, 148, 150]}
    pk = [152, 154, 156, 158]; pkc = [0]
    BL = 160; AF = 192; D = [232, 236, 240]
    def unpack(dst, src, m):
        if m == 0: g('v_lshlrev_b32 v%d, 16, v%d' % (dst, src))
        else: g('v_and_b32 v%d, 0xffff0000, v%d' % (dst, src))
    for m in (0, 1):
        r = R[m]
        unpack(r['ar'], 32, m); unpack(r['ai'], 33, m)
        unpack(r['B'], 34, m); unpack(r['B'] + 1, 35, m)
        unpack(r['C'], 36, m); unpack(r['C'] + 1, 37, m)
    for m in (0, 1):
        r = R[m]
        g('v_mul_f32 v%d, v%d, v%d' % (r['ar'], r['ar'], DT))
        g('v_mul_f32 v%d, v%d, v%d' % (r['ai'], r['ai'], DT))
        g('v_mul_f32 v%d, v%d, v%d' % (r['B'], r['B'], DT))
        g('v_mul_f32 v%d, v%d, v%d' % (r['B'] + 1, r['B'] + 1, DT))
    for m in (0, 1):
        r = R[m]
        g('v_mul_f32 v%d, 0x%x, v%d' % (r['ar'], f2u(L_HI), r['ar']))
        g('v_mul_f32 v%d, 0x%x, v%d' % (r['ai'], f2u(0.15915494309189535), r['ai']))
        cmul(g, r['c'], r['C'], r['B'])
    for m in (0, 1):
        cmul2(g, R[m]['c'], R[m]['C'], R[m]['B'])
    def direct(name, k):
        for m in (0, 1):
            r = R[m]
            g('v_mul_f32 v%d, 0x%x, v%d' % (r['t0'], f2u(float(k)), r['ar']))
            g('v_mul_f32 v%d, 0x%x, v%d' % (r['t1'], f2u(float(k)), r['ai']))
        for m in (0, 1):
            r = R[m]
            g('v_exp_f32 v%d, v%d' % (r['t0'], r['t0']))
            g('v_fract_f32 v%d, v%d' % (r['t1'], r['t1']))
        for m in (0, 1):
            r = R[m]
            g('v_cos_f32 v%d, v%d' % (r['t2'], r['t1']))
            g('v_sin_f32 v%d, v%d' % (r['t3'], r['t1']))
        for m in (0, 1):
            r = R[m]
            g('v_pk_mul_f32 %s, %s, %s op_sel_hi:[1,0]' % (vr(r[name], 2), vr(r['t2'], 2), vr(r['t0'], 2)))
    direct('E8', 8); direct('E1', 1); direct('E128', 128)
    g('s_mul_i32 s62, s14, %d' % STG)
    g('v_lshlrev_b32 v12, 3, v1')
    g('v_add_u32 v12, s62, v12')
    g('v_mul_u32_u24 v13, %d, v3' % ROWS)
    g('v_and_b32 v14, 1, v2')
    g('v_lshl_add_u32 v13, v14, 8, v13')
    g('v_lshrrev_b32 v14, 1, v2')
    g('v_lshl_add_u32 v13, v14, 7, v13')
    g('v_add_u32 v13, s62, v13')
    def row(idx, regs, conj):
        t = pk[pkc[0] % 4]; pkc[0] += 1
        for m in (0, 1):
            rr = regs[m]
            if rr == 'one':
                g('v_mov_b32 v%d, 0x3f80' % (t + m))
            else:
                g('v_cvt_pk_bf16_f32 v%d, v%d, %sv%d' % (t + m, rr, '-' if conj else '', rr + 1))
        g('ds_write_b64 v12, %s offset:%d' % (vr(t, 2), idx * ROWS))
    tc = [0]
    def prow(idx, an, bn, conj=True):
        k = tc[0] % 4; tc[0] += 1
        for m in (0, 1): cmul(g, tmp[m][k], R[m][an], R[m][bn])
        for m in (0, 1): cmul2(g, tmp[m][k], R[m][an], R[m][bn])
        row(idx, {0: tmp[0][k], 1: tmp[1][k]}, conj)
    def nrow(idx, an, conj=True):
        row(idx, {0: R[0][an], 1: R[1][an]}, conj)
    nrow(0, 'c', False)
    cur = {0: R[0]['c'], 1: R[1]['c']}
    lt = {0: [R[0]['L0'], R[0]['B']], 1: [R[1]['L0'], R[1]['B']]}
    extra = [('E2', 'E1', 'E1'), ('E256', 'E128', 'E128'), ('E3', 'E2', 'E1'), ('E4', 'E2', 'E2'), ('E384', 'E256', 'E128'), ('E512', 'E256', 'E256'),
             ('E5', 'E4', 'E1'), ('E6', 'E4', 'E2'), ('E7', 'E4', 'E3'), ('E640', 'E512', 'E128'), ('E768', 'E512', 'E256'), ('E896', 'E512', 'E384'),
             ('E1024', 'E512', 'E512'), ('E2048', 'E1024', 'E1024')]
    for w in range(1, 16):
        nx = {m: lt[m][w % 2] for m in (0, 1)}
        for m in (0, 1): cmul(g, nx[m], cur[m], R[m]['E8'])
        if w - 1 < len(extra):
            dn, an, bn = extra[w - 1]
            for m in (0, 1): cmul(g, R[m][dn], R[m][an], R[m][bn])
        for m in (0, 1): cmul2(g, nx[m], cur[m], R[m]['E8'])
        if w - 1 < len(extra):
            for m in (0, 1): cmul2(g, R[m][dn], R[m][an], R[m][bn])
        row(w, nx, False)
        cur = nx
    def reads(dst):
        for t in range(8):
            g('ds_read_b128 %s, v13 offset:%d' % (vr(dst + 4 * t, 4), 16 * t))
    def mfmas(ti, waitn):
        g('s_waitcnt lgkmcnt(%d)' % waitn)
        for t in range(8):
            g('v_mfma_f32_16x16x32_bf16 %s, %s, %s, %s' % (vr(D[ti], 4), vr(AF + 4 * t, 4), vr(BL + 4 * t, 4), '0' if t == 0 else vr(D[ti], 4)))
    reads(BL)
    xt_flag()
    t0rows = [lambda: row(0, {0: 'one', 1: 'one'}, True)] + [(lambda r_=r_: nrow(r_, 'E%d' % r_)) for r_ in range(1, 8)] + \
             [lambda: nrow(8, 'E128')] + [(lambda r_=r_: prow(8 + r_, 'E128', 'E%d' % r_)) for r_ in range(1, 8)]
    t1rows = [lambda: nrow(0, 'E256')] + [(lambda i=i: prow(i, 'E256', 'E%d' % (2 * i))) for i in range(1, 4)] + \
             [lambda: nrow(4, 'E384')] + [(lambda i=i: prow(4 + i, 'E384', 'E%d' % (2 * i))) for i in range(1, 4)]
    for i, k in enumerate((512, 640, 768, 896)):
        t1rows.append(lambda i=i, k=k: nrow(8 + 2 * i, 'E%d' % k))
        t1rows.append(lambda i=i, k=k: prow(9 + 2 * i, 'E%d' % k, 'E4'))
    t2rows = [lambda: nrow(0, 'E1024')] + [(lambda i=i: prow(i, 'E1024', 'E%d' % (128 * i))) for i in range(1, 8)] + [lambda: nrow(8, 'E2048')]
    for f in t0rows: f()
    reads(AF)
    for f in t1rows[:12]: f()
    mfmas(0, 12)
    for f in t1rows[12:]: f()
    reads(AF)
    for f in t2rows: f()
    mfmas(1, 9)
    reads(AF)
    stamp(g, 3)
    if os.environ.get('SCUT') == '3':
        g('s_endpgm'); return
    g.c('poll XT')
    g('s_lshr_b32 s58, s2, 5')
    g('s_bfe_u32 s59, s2, 0x20003')
    g('s_lshl_b32 s58, s58, 2')
    g('s_add_u32 s58, s58, s59')
    g('s_lshl_b32 s58, s58, 8')
    g('s_add_u32 s58, s58, %d' % WS_FX)
    g('v_and_b32 v8, 31, v1')
    g('v_lshlrev_b32 v8, 3, v8')
    g('v_add_u32 v8, s58, v8')
    poll_flags(g, 8, None, 16, 58)
    stamp(g, 4)
    g('s_mul_i32 s58, s2, %d' % (2 * XT_ROW))
    g('s_add_u32 s58, s58, %d' % (WS_XT + 8))
    g('v_lshlrev_b32 v8, 4, v0')
    g('v_add_u32 v8, s58, v8')
    XR = 40
    for c2 in range(2):
        for k, off in enumerate((8, 4, 0)):
            g('buffer_load_dwordx4 %s, v8, %s, 0 offen offset:%d sc0 sc1' % (vr(XR + 12 * c2 + 4 * k, 4), sr(S_WS, 4), off + c2 * XT_ROW if False else off) if c2 == 0 else
              'buffer_load_dwordx4 %s, v9, %s, 0 offen offset:%d sc0 sc1' % (vr(XR + 12 * c2 + 4 * k, 4), sr(S_WS, 4), off))
        if c2 == 0:
            g('v_add_u32 v9, %d, v8' % XT_ROW)
    g('v_lshrrev_b32 v14, 1, v2')
    g('v_and_b32 v15, 1, v2')
    g('v_lshlrev_b32 v4, 9, v14')
    g('v_lshl_add_u32 v4, v3, 5, v4')
    g('v_lshl_add_u32 v4, v15, 4, v4')
    g('v_add_u32 v4, s62, v4')
    g('v_lshlrev_b32 v5, 8, v2')
    g('v_add_u32 v5, 1024, v5')
    g('v_add_u32 v5, s62, v5')
    g('v_lshl_add_u32 v6, v3, 4, v5')
    g('v_lshl_add_u32 v7, v3, 3, v5')
    g('v_cmp_gt_u32 vcc, 2, v2')
    g('v_cndmask_b32 v5, v7, v6, vcc')
    g('v_add_u32 v6, 8, v5')
    g('v_add_u32 v7, 128, v5')
    g('v_cndmask_b32 v6, v7, v6, vcc')
    g('v_lshlrev_b32 v7, 8, v2')
    g('v_lshl_add_u32 v7, v3, 2, v7')
    g('v_add_u32 v7, 2048, v7')
    g('v_add_u32 v7, s62, v7')
    mfmas(2, 0)
    g('ds_write_b128 v4, %s' % vr(D[0], 4))
    g('ds_write_b64 v5, %s' % vr(D[1], 2))
    g('ds_write_b64 v6, %s' % vr(D[1] + 2, 2))
    for r_ in range(4):
        g('ds_write_b32 v7, v%d offset:%d' % (D[2] + r_, 64 * r_))
    g('s_waitcnt lgkmcnt(0)')
    g('s_barrier')
    g.c('expansion')
    KR = 64
    for ch in range(2):
        for hf in range(2):
            for i in range(8):
                g('ds_read_b32 v%d, v%d offset:%d' % (KR + 16 * ch + 8 * hf + i, EA + i, (2 * ch + hf) * STG))
    g('v_lshlrev_b32 v10, 4, v0')
    g('v_sub_u32 v10, %d, v10' % (RB + 4080))
    for i in range(4):
        g('v_mov_b32 v%d, 0' % (96 + i))
    g('s_mov_b32 s58, 0x%x' % ((1 << 32) // 18 + 1))
    g('v_mul_hi_u32 v11, v0, s58')
    g('v_mul_u32_u24 v12, 18, v11')
    g('v_sub_u32 v12, v0, v12')
    g('v_mul_u32_u24 v11, %d, v11' % CS)
    g('v_lshl_add_u32 v11, v12, 4, v11')
    g('v_lshrrev_b32 v12, 4, v12')
    g('v_lshl_add_u32 v11, v12, 5, v11')
    g('v_add_u32 v11, %d, v11' % XC)
    g('v_subrev_u32 v12, 144, v0')
    g('v_and_b32 v13, 15, v12')
    g('v_lshrrev_b32 v12, 4, v12')
    g('v_mul_u32_u24 v12, %d, v12' % (2 * STG))
    g('v_lshl_add_u32 v12, v13, 4, v12')
    g('v_add_u32 v12, %d, v12' % (RB + 4096))
    g('v_cmp_gt_u32 vcc, 144, v0')
    g('v_cndmask_b32 v11, v12, v11, vcc')
    g('v_cmp_gt_u32 vcc, 176, v0')
    g('s_and_saveexec_b64 s[58:59], vcc')
    Lq = g.newlabel('L_zq')
    g('s_cbranch_execz %s' % Lq)
    g('ds_write_b128 v11, v[96:99]')
    g.label(Lq)
    g('s_mov_b64 exec, s[58:59]')
    g('v_lshlrev_b32 v11, 3, v0')
    g('v_add_u32 v11, 144, v11')
    g('v_lshrrev_b32 v12, 7, v11')
    g('v_lshlrev_b32 v11, 1, v11')
    g('v_lshl_add_u32 v11, v12, 5, v11')
    g('v_add_u32 v11, %d, v11' % XC)
    g('s_waitcnt lgkmcnt(0)')
    for ch in range(2):
        for i in range(8):
            g('v_add_f32 v%d, v%d, v%d' % (KR + 16 * ch + i, KR + 16 * ch + i, KR + 16 * ch + 8 + i))
        for i in range(0, 8, 2):
            g('v_cvt_pk_bf16_f32 v%d, v%d, v%d' % (100 + 4 * ch + i // 2, KR + 16 * ch + i, KR + 16 * ch + i + 1))
        g('ds_write_b128 v10, %s offset:%d' % (vr(100 + 4 * ch, 4), ch * 2 * STG))
    g('s_waitcnt vmcnt(0)')
    for ch in range(2):
        A = XR + 12 * ch; B = A + 4; C = A + 8
        c1 = 108 + 8 * ch; c3 = c1 + 4
        for k in range(4):
            g('v_alignbit_b32 v%d, v%d, v%d, 16' % (c1 + k, A + k, B + k))
            g('v_alignbit_b32 v%d, v%d, v%d, 16' % (c3 + k, B + k, C + k))
        g('ds_write_b128 v11, %s offset:%d' % (vr(A, 4), (4 * ch + 0) * CS))
        g('ds_write_b128 v11, %s offset:%d' % (vr(c1, 4), (4 * ch + 1) * CS))
        g('ds_write_b128 v11, %s offset:%d' % (vr(B, 4), (4 * ch + 2) * CS))
        g('ds_write_b128 v11, %s offset:%d' % (vr(c3, 4), (4 * ch + 3) * CS))
    g.c('conv')
    g('s_lshr_b32 s58, s14, 1')
    g('s_and_b32 s59, s14, 1')
    g('s_mul_i32 s60, s58, %d' % (2 * STG))
    g('s_lshl_b32 s61, s59, 8')
    g('s_sub_u32 s60, s60, s61')
    g('s_add_u32 s60, s60, %d' % (RB + 4272 - 3584))
    g('v_sub_u32 v4, v2, v3')
    g('v_lshlrev_b32 v4, 4, v4')
    g('v_add_u32 v4, s60, v4')
    g('v_lshrrev_b32 v5, 3, v3')
    g('v_lshlrev_b32 v5, 7, v5')
    g('v_lshl_add_u32 v5, v2, 3, v5')
    g('v_and_b32 v6, 4, v3')
    g('v_add_u32 v5, v5, v6')
    g('s_lshl_b32 s61, s59, 7')
    g('s_sub_u32 s61, 236, s61')
    g('v_add_u32 v5, s61, v5')
    g('v_and_b32 v6, 3, v3')
    g('v_sub_u32 v6, 3, v6')
    g('v_mul_u32_u24 v6, %d, v6' % CS)
    g('s_mul_i32 s61, s58, %d' % (4 * CS))
    g('s_add_u32 s61, s61, %d' % XC)
    g('v_add_u32 v6, s61, v6')
    g('s_waitcnt lgkmcnt(0)')
    g('s_barrier')
    stamp(g, 5)
    g('s_setprio %s' % os.environ.get('SPC', '0'))
    ACC = 16; F = 48; GG = 80
    for i in range(32):
        g('v_mov_b32 v%d, 0' % (ACC + i))
    SETS = [(48, 80), (112, 144)]
    def rd_list(st):
        F_, G_ = SETS[st]
        out = []
        out.append('v_lshrrev_b32 v7, 7, v5'); out.append('v_lshlrev_b32 v8, 1, v5'); out.append('v_lshl_add_u32 v7, v7, 5, v8'); out.append('v_add_u32 v7, v6, v7')
        out.append('v_add_u32 v8, 4, v5'); out.append('v_lshrrev_b32 v9, 7, v8'); out.append('v_lshlrev_b32 v8, 1, v8'); out.append('v_lshl_add_u32 v8, v9, 5, v8'); out.append('v_add_u32 v8, v6, v8')
        out.append('ds_read_b128 %s, v4 offset:%d' % (vr(F_, 4), 512 * 7))
        for w in range(8):
            out.append('ds_read_b64 %s, v7 offset:%d' % (vr(G_ + 4 * w, 2), 576 * w))
            out.append('ds_read_b64 %s, v8 offset:%d' % (vr(G_ + 4 * w + 2, 2), 576 * w))
        for v in range(1, 8):
            out.append('ds_read_b128 %s, v4 offset:%d' % (vr(F_ + 4 * v, 4), 512 * (7 - v)))
        out.append('v_subrev_u32 v4, 64, v4'); out.append('v_subrev_u32 v5, 32, v5')
        return out
    def mf_list(st):
        F_, G_ = SETS[st]
        return ['v_mfma_f32_16x16x32_bf16 %s, %s, %s, %s' % (vr(ACC + 4 * (v + w), 4), vr(G_ + 4 * w, 4), vr(F_ + 4 * v, 4), vr(ACC + 4 * (v + w), 4))
                for v in range(8) for w in range(8 - v)]
    for l in rd_list(0): g(l)
    for rr in range(4):
        g('s_waitcnt lgkmcnt(0)')
        m_ = mf_list(rr & 1)
        r_ = rd_list((rr + 1) & 1) if rr < 3 else []
        k = 0
        for i, l in enumerate(m_):
            g(l)
            while k < len(r_) and k < (i + 1) * 2:
                g(r_[k]); k += 1
    stamp(g, 6)
    g('s_setprio %s' % os.environ.get('SP3', '3'))
    g('s_barrier')
    g('v_lshrrev_b32 v14, 1, v2')
    g('v_and_b32 v15, 1, v2')
    g('v_lshlrev_b32 v4, 9, v14')
    g('v_lshl_add_u32 v4, v3, 5, v4')
    g('v_lshl_add_u32 v4, v15, 4, v4')
    g('s_lshl_b32 s58, s14, 13')
    g('s_add_u32 s58, s58, %d' % XC)
    g('v_add_u32 v4, s58, v4')
    for ct in range(8):
        g('ds_write_b128 v4, %s offset:%d' % (vr(ACC + 4 * ct, 4), 1024 * ct))
    g('s_waitcnt lgkmcnt(0)')
    g('s_barrier')
    g('v_lshlrev_b32 v4, 5, v0')
    g('v_add_u32 v4, %d, v4' % XC)
    for a_ in range(4):
        g('ds_read_b128 %s, v4 offset:%d' % (vr(48 + 8 * a_, 4), 8192 * a_))
        g('ds_read_b128 %s, v4 offset:%d' % (vr(52 + 8 * a_, 4), 8192 * a_ + 16))
    g('s_lshl_b32 s58, s2, 13')
    g('s_add_u32 s58, s58, %d' % WS_Y2)
    g('v_lshlrev_b32 v5, 5, v0')
    g('v_add_u32 v5, s58, v5')
    g('s_waitcnt lgkmcnt(0)')
    for i in range(8):
        g('v_add_f32 v%d, v%d, v%d' % (48 + i, 48 + i, 56 + i))
        g('v_add_f32 v%d, v%d, v%d' % (64 + i, 64 + i, 72 + i))
    for i in range(8):
        g('v_cvt_pk_bf16_f32 v%d, v%d, v%d' % (80 + i, 48 + i, 64 + i))
    g('buffer_store_dwordx4 v[80:83], v5, %s, 0 offen sc0 sc1' % sr(S_WS, 4))
    g('buffer_store_dwordx4 v[84:87], v5, %s, 0 offen offset:16 sc0 sc1' % sr(S_WS, 4))
    g('s_mov_b32 s58, 0x%x' % ((1 << 32) // 28 + 1))
    g('s_mul_hi_u32 s59, s2, s58')
    g('s_mul_i32 s60, s59, 28')
    g('s_sub_u32 s60, s2, s60')
    g('s_lshl_b32 s59, s59, 2')
    g('s_add_u32 s59, s59, s14')
    g('s_lshl_b32 s59, s59, 5')
    g('s_add_u32 s59, s59, s60')
    g('s_lshl_b32 s59, s59, 3')
    g('s_add_u32 s59, s59, %d' % WS_FY)
    g('v_mov_b32 v6, s59')
    g('s_waitcnt vmcnt(0)')
    stamp(g, 7)
    set_flag(g, 6, 8)
    stamp(g, 8)
    stamp(g, 9)
    stamp_flush(g, typ='S')
    g('s_endpgm')
```

```python
import sys
sys.path.insert(0, 'g')
from common import *
import gen_s
def build(with_a=True):
    g = G()
    g('s_load_dwordx16 s[16:31], s[0:1], 0')
    g('s_load_dwordx16 s[32:47], s[0:1], 64')
    g('s_load_dwordx2 s[48:49], s[0:1], 128')
    g('v_lshrrev_b32 v1, 6, v0')
    g('s_cmp_ge_u32 s2, %d' % (NS + NA))
    g('s_cbranch_scc1 L_exit')
    g('v_readfirstlane_b32 s14, v1')
    g('v_and_b32 v1, 63, v0')
    g('s_waitcnt lgkmcnt(0)')
    stamp(g, 0, 'main' if STSET[0] == 'dbg' else STSET[0])
    if STSET[0] == 'hw':
        g('s_getreg_b32 s93, hwreg(HW_REG_HW_ID)')
        g('s_getreg_b32 s94, hwreg(HW_REG_XCC_ID)')
        g('s_memtime s[90:91]')
        g('s_waitcnt lgkmcnt(0)')
        g('s_mov_b32 s95, s90')
    g('s_mov_b32 s4, s48')
    g('s_mov_b32 s5, s49')
    g('s_mov_b32 s6, 0x2000000')
    g('s_mov_b32 s7, 0x00020000')
    g('s_or_b32 s58, s2, s14')
    g('s_cmp_lg_u32 s58, 0')
    g('s_cbranch_scc1 L_nn')
    g('s_memrealtime s[60:61]')
    g('s_waitcnt lgkmcnt(0)')
    g('s_or_b32 s60, s60, 1')
    g('v_mov_b32 v4, s60')
    g('v_mov_b32 v5, s61')
    g('v_mov_b32 v6, 0')
    g('v_mov_b32 v7, 0')
    g('v_mov_b32 v8, 0')
    g('s_mov_b64 exec, 1')
    g('global_atomic_cmpswap_x2 v8, v[4:7], %s sc1' % sr(P_DBG, 2))
    g('s_mov_b64 exec, -1')
    g.label('L_nn')
    g('s_cmp_ge_u32 s2, %d' % NS)
    g('s_cbranch_scc1 L_A')
    if '--nos' in sys.argv:
        g('s_endpgm')
    else:
        gen_s.gen_S(g)
    g.label('L_A')
    if with_a:
        import gen_a
        gen_a.gen_A(g)
    g.label('L_exit')
    g('s_endpgm')
    g.label('L_end')
    body = '\n'.join(fix_hazards(g.lines))
    lds = 81920
    hdr = open('gated_mix__linear_kernel_hedgehog__ssm_conv_s4__prompt.s.ref').read().split('\n')
    com = [l for l in hdr if l.startswith(';') and '@launch' not in l]
    out = '\n'.join(com) + '\n; @launch grid=(%d,1,1) block=(256,1,1) lds=%d\n' % (NS + NA, lds)
    out += '''.amdgcn_target "amdgcn-amd-amdhsa--gfx950"
.text
.globl %s
.p2align 8
.type %s,@function
%s:
%s
.section .rodata,"a"
.p2align 6
.amdhsa_kernel %s
  .amdhsa_next_free_vgpr 256
  .amdhsa_next_free_sgpr 102
  .amdhsa_accum_offset 256
  .amdhsa_group_segment_fixed_size 0
  .amdhsa_kernarg_size 136
  .amdhsa_user_sgpr_count 2
  .amdhsa_user_sgpr_kernarg_segment_ptr 1
  .amdhsa_system_sgpr_workgroup_id_x 1
.end_amdhsa_kernel
''' % (KNAME, KNAME, KNAME, body, KNAME)
    return out
if __name__ == '__main__':
    with_a = '--noa' not in sys.argv
    STAMPS[0] = '--stamps' in sys.argv
    for a_ in sys.argv:
        if a_.startswith('--stset='): STSET[0] = a_.split('=')[1]
    out = build(with_a)
    fn = [a for a in sys.argv[1:] if not a.startswith('--')][0]
    open(fn, 'w').write(out)
    print('lines', out.count('\n'))
```

```python
from asmlib import *

KNAME = 'gated_mix__linear_kernel_hedgehog__ssm_conv_s4__prompt_kernel'
WS_XT = 0x000000; XT_ROW = 4128
WS_Y2 = 0x200000
WS_O = 0x400000
WS_KVP = 0x800000
WS_G = 0xA00000
WS_FX = 0xB00000
WS_FY = 0xB02000
WS_FK = 0xB04000
WS_FO = 0xB06000
WS_WO2 = 0x600000
WS_FW = 0xB08000
WS_DBG = 0x1000000
NS = 224; NA = 256
S_WS = 4
S_T = 8
S_NONCE = 12
S_WAVE = 14
P_X, P_WQKV, P_WPHI, P_WO, P_U, P_ARE, P_AIM, P_BRE, P_BIM, P_CRE, P_CIM, P_LDT, P_DSK, P_GW, P_OUT, P_DBG, P_WS = [16 + 2 * i for i in range(17)]

def poll_flags(g, voff, n_lanes_mask_note, vtmp, stmp, limit=200000):
    L = g.newlabel('L_poll'); D = g.newlabel('L_polld')
    g('s_mov_b32 s%d, 0' % stmp)
    g.label(L)
    g('buffer_load_dwordx2 %s, v%d, %s, 0 offen sc0 sc1' % (vr(vtmp, 2), voff, sr(S_WS, 4)))
    g('s_waitcnt vmcnt(0)')
    g('v_cmp_eq_u64 vcc, %s, %s' % (sr(S_NONCE, 2), vr(vtmp, 2)))
    g('s_cmp_eq_u64 vcc, exec')
    g('s_cbranch_scc1 %s' % D)
    g('s_add_u32 s%d, s%d, 1' % (stmp, stmp))
    g('s_cmp_ge_u32 s%d, %d' % (stmp, limit))
    g('s_cbranch_scc1 %s' % D)
    g('s_sleep 1')
    g('s_branch %s' % L)
    g.label(D)

def get_nonce(g, vtmp, vzero, stmp, limit=200000, pre=False, cnt=0):
    L = g.newlabel('L_non'); D = g.newlabel('L_nond'); C = g.newlabel('L_nonc')
    g('s_mov_b32 s%d, 0' % stmp)
    if pre: g('s_branch %s' % C)
    g.label(L)
    g('global_load_dwordx2 %s, v%d, %s sc0 sc1' % (vr(vtmp, 2), vzero, sr(P_DBG, 2)))
    g('s_waitcnt vmcnt(0)')
    g.label(C)
    g('s_waitcnt vmcnt(%d)' % cnt)
    g('v_readfirstlane_b32 s%d, v%d' % (S_NONCE, vtmp))
    g('v_readfirstlane_b32 s%d, v%d' % (S_NONCE + 1, vtmp + 1))
    g('s_cmp_lg_u32 s%d, 0' % S_NONCE)
    g('s_cbranch_scc1 %s' % D)
    g('s_add_u32 s%d, s%d, 1' % (stmp, stmp))
    g('s_cmp_ge_u32 s%d, %d' % (stmp, limit))
    g('s_cbranch_scc1 %s' % D)
    g('s_sleep 1')
    g('s_branch %s' % L)
    g.label(D)

def set_flag(g, voff, vtmp):
    g('v_mov_b32 v%d, s%d' % (vtmp, S_NONCE))
    g('v_mov_b32 v%d, s%d' % (vtmp + 1, S_NONCE + 1))
    g('s_mov_b64 exec, 1')
    g('buffer_store_dwordx2 %s, v%d, %s, 0 offen sc0 sc1' % (vr(vtmp, 2), voff, sr(S_WS, 4)))
    g('s_mov_b64 exec, -1')

def cmul(g, d, a, b):
    g('v_pk_mul_f32 %s, %s, %s op_sel:[0,0] op_sel_hi:[0,1]' % (vr(d, 2), vr(a, 2), vr(b, 2)))
def cmul2(g, d, a, b):
    g('v_pk_fma_f32 %s, %s, %s, %s op_sel:[1,1,0] op_sel_hi:[1,0,1] neg_lo:[1,0,0]' % (vr(d, 2), vr(a, 2), vr(b, 2), vr(d, 2)))

STAMPS = [False]
STSET = ['main']
def stamp(g, i, st='main'):
    if not STAMPS[0] or (STSET[0] != st and not (STSET[0] == 'dbg' and st == 'main')): return
    g('s_memrealtime s[90:91]')
    g('s_waitcnt lgkmcnt(0)')
    g('s_mov_b32 s%d, s90' % (92 + i))
def stamp_flush(g, n=10, typ='A'):
    if not STAMPS[0]: return
    if STSET[0] == 'dbg':
        g('s_mov_b64 exec, 1')
        items = [(i, 2 + i) for i in range(10)] if typ == 'A' else [(3, 12), (5, 13), (6, 14), (8, 15)]
        for i, slot in items:
            g('v_mov_b32 v20, %d' % (4 * slot))
            g('v_mov_b32 v21, s%d' % (92 + i))
            g('global_atomic_umax v20, v21, %s sc1' % sr(P_DBG, 2))
        g('s_mov_b64 exec, -1')
        return
    g('s_lshl_b32 s90, s2, 2')
    g('s_add_u32 s90, s90, s14')
    g('s_lshl_b32 s90, s90, 6')
    g('s_add_u32 s90, s90, %d' % WS_DBG)
    g('v_mov_b32 v20, s90')
    g('s_mov_b64 exec, 1')
    for i in range(n):
        g('v_mov_b32 v21, s%d' % (92 + i))
        g('buffer_store_dword v21, v20, %s, 0 offen offset:%d' % (sr(S_WS, 4), 4 * i))
    g('s_mov_b64 exec, -1')
```

```python
from common import *
import os
import struct
def f2u(x): return struct.unpack('<I', struct.pack('<f', x))[0]
L2E = f2u(1.4426950408889634); LN2 = f2u(0.6931471805599453)
WK = 0; WV = 28672; WQ = 57344; WQ6 = 53248; RED = 0; KVX = 61440
XF = 144
S_W = 64
S_P = 68
S_UP = 72
S_L28 = 74
S_F28 = 76
S_TT = 78; S_H = 79; S_L2E = 80; S_LN2 = 81; S_TT64 = 82; S_CG = 83

def srd(g, s, ptr, nbytes):
    g('s_mov_b32 s%d, s%d' % (s, ptr)); g('s_mov_b32 s%d, s%d' % (s + 1, ptr + 1))
    g('s_mov_b32 s%d, %d' % (s + 2, nbytes)); g('s_mov_b32 s%d, 0x00020000' % (s + 3))

def softmax_stats(g, DP, T, want_c):
    MX, MN, SP, SM, A, B, TM, TN = T, T + 1, T + 2, T + 3, T + 4, T + 5, T + 6, T + 7
    EP = T + 8; EM = T + 24
    for i in range(12, 16):
        g('v_cndmask_b32 v%d, v%d, v%d, %s' % (DP + i, DP + i, DP + 11, sr(S_UP, 2)))
    g('v_max3_f32 v%d, v%d, v%d, v%d' % (MX, DP, DP + 1, DP + 2))
    g('v_min3_f32 v%d, v%d, v%d, v%d' % (MN, DP, DP + 1, DP + 2))
    for i in range(3, 15, 2):
        g('v_max3_f32 v%d, v%d, v%d, v%d' % (MX, MX, DP + i, DP + i + 1))
        g('v_min3_f32 v%d, v%d, v%d, v%d' % (MN, MN, DP + i, DP + i + 1))
    g('v_max_f32 v%d, v%d, v%d' % (MX, MX, DP + 15))
    g('v_min_f32 v%d, v%d, v%d' % (MN, MN, DP + 15))
    g('v_mov_b32 v%d, v%d' % (A, MX)); g('v_mov_b32 v%d, v%d' % (B, MX))
    g('v_mov_b32 v%d, v%d' % (TM, MN)); g('v_mov_b32 v%d, v%d' % (TN, MN))
    g('v_permlane32_swap_b32 v%d, v%d' % (A, B))
    g('v_permlane32_swap_b32 v%d, v%d' % (TM, TN))
    g('v_max_f32 v%d, v%d, v%d' % (MX, A, B))
    g('v_min_f32 v%d, v%d, v%d' % (MN, TM, TN))
    g('v_mul_f32 v%d, s%d, v%d' % (TM, S_L2E, MX))
    g('v_mul_f32 v%d, s%d, v%d' % (TN, S_L2E, MN))
    for i in range(16):
        g('v_fma_f32 v%d, v%d, s%d, -v%d' % (EP + i, DP + i, S_L2E, TM))
        g('v_fma_f32 v%d, -v%d, s%d, v%d' % (EM + i, DP + i, S_L2E, TN))
    for i in range(16):
        g('v_exp_f32 v%d, v%d' % (EP + i, EP + i))
        g('v_exp_f32 v%d, v%d' % (EM + i, EM + i))
    for i in range(12, 16):
        g('v_cndmask_b32 v%d, v%d, 0, %s' % (EP + i, EP + i, sr(S_UP, 2)))
        g('v_cndmask_b32 v%d, v%d, 0, %s' % (EM + i, EM + i, sr(S_UP, 2)))
    g('v_add_f32 v%d, v%d, v%d' % (SP, EP, EP + 1)); g('v_add_f32 v%d, v%d, v%d' % (SM, EM, EM + 1))
    g('v_add_f32 v%d, v%d, v%d' % (A, EP + 2, EP + 3)); g('v_add_f32 v%d, v%d, v%d' % (B, EM + 2, EM + 3))
    for i in range(4, 16, 2):
        g('v_add_f32 v%d, v%d, v%d' % (SP, SP, EP + i)); g('v_add_f32 v%d, v%d, v%d' % (SM, SM, EM + i))
        g('v_add_f32 v%d, v%d, v%d' % (A, A, EP + i + 1)); g('v_add_f32 v%d, v%d, v%d' % (B, B, EM + i + 1))
    g('v_add_f32 v%d, v%d, v%d' % (SP, SP, A)); g('v_add_f32 v%d, v%d, v%d' % (SM, SM, B))
    g('v_mov_b32 v%d, v%d' % (A, SP)); g('v_mov_b32 v%d, v%d' % (B, SP))
    g('v_mov_b32 v%d, v%d' % (TM, SM)); g('v_mov_b32 v%d, v%d' % (TN, SM))
    g('v_permlane32_swap_b32 v%d, v%d' % (A, B))
    g('v_permlane32_swap_b32 v%d, v%d' % (TM, TN))
    g('v_add_f32 v%d, v%d, v%d' % (SP, A, B))
    g('v_add_f32 v%d, v%d, v%d' % (SM, TM, TN))
    return MX, MN, SP, SM, EP, EM

def gen_A(g, stage=99):
    g.c('---- A type')
    g('s_setprio %s' % os.environ.get('AP1', '1'))
    g('s_sub_u32 s50, s2, %d' % NS)
    g('s_and_b32 s51, s50, 7')
    g('s_lshr_b32 s52, s50, 3')
    g('s_and_b32 s53, s51, 3')
    g('s_lshl_b32 s53, s53, 2')
    g('s_and_b32 s54, s52, 3')
    g('s_add_u32 s%d, s53, s54' % S_TT)
    g('s_lshr_b32 s53, s51, 2')
    g('s_lshl_b32 s53, s53, 3')
    g('s_lshr_b32 s54, s52, 2')
    g('s_add_u32 s%d, s53, s54' % S_H)
    g('s_and_b32 s%d, s52, 7' % S_CG)
    g('s_lshl_b32 s53, s51, 2')
    g('s_lshr_b32 s54, s52, 3')
    g('s_add_u32 s%d, s53, s54' % S_TT64)
    srd(g, S_W, P_WQKV, 448 * 2688)
    g('v_and_b32 v2, 31, v1')
    g('v_lshrrev_b32 v3, 5, v1')
    g('s_lshl_b32 s53, s%d, 7' % S_TT)
    g('s_lshl_b32 s54, s14, 5')
    g('s_add_u32 s53, s53, s54')
    g('v_and_b32 v4, 3, v1')
    g('v_bfe_u32 v5, v1, 2, 3')
    g('v_lshl_add_u32 v9, v4, 3, v5')
    g('v_add_u32 v5, s53, v5')
    g('v_mul_u32_u24 v5, 896, v5')
    g('v_lshl_add_u32 v5, v3, 6, v5')
    g('v_lshl_add_u32 v5, v4, 4, v5')
    g('v_add_u32 v4, s53, v9')
    g('v_add_u32 v140, %d, v5' % (8 * 896))
    g('v_add_u32 v141, %d, v5' % (16 * 896))
    g('v_add_u32 v142, %d, v5' % (24 * 896))
    g('v_lshrrev_b32 v6, 2, v1')
    g('v_and_b32 v7, 3, v1')
    g('v_mul_u32_u24 v8, 2688, v6')
    g('v_lshl_add_u32 v8, v7, 4, v8')
    g('s_mul_i32 s53, s%d, 56' % S_H)
    g('v_add_u32 v8, s53, v8')
    g('s_mul_i32 s55, s14, %d' % (16 * 2688))
    g('s_lshl_b32 s56, s14, 10')
    W0 = 64; W1 = 68
    XO = (5, 140, 141, 142)
    ROT = os.environ.get('ROT', '1') == '1'
    g('s_mul_i32 s63, s52, 37')
    g('s_lshr_b32 s63, s63, 8')
    g('s_mul_i32 s63, s63, 7')
    g('s_sub_u32 s63, s52, s63')
    if not ROT: g('s_mov_b32 s63, 0')
    g('s_mov_b32 s62, s63')
    srd(g, S_P, P_X, 2048 * 896)
    def adv():
        g('s_add_u32 s62, s62, 1')
        g('s_cmp_eq_u32 s62, 7')
        g('s_cselect_b32 s62, 0, s62')
    def issue_w(c):
        g('s_mul_i32 s58, s62, %d' % (64 * 2688))
        g('s_add_u32 s58, s58, s55')
        g('s_add_u32 s57, s58, 896')
        g('s_add_u32 m0, s56, %d' % (WK + c * 4096))
        g('s_add_u32 s58, s58, 1792')
        g('buffer_load_dwordx4 v8, %s, s57 offen lds' % sr(S_W, 4))
        g('s_add_u32 m0, s56, %d' % (WV + c * 4096))
        adv()
        g('buffer_load_dwordx4 v8, %s, s58 offen lds' % sr(S_W, 4))
    def issue_chunk(c):
        g('s_lshl_b32 s57, s62, 7')
        for i in range(4):
            g('buffer_load_dwordx4 %s, v%d, %s, s57 offen' % (vr(XF + 16 * c + 4 * i, 4), XO[i], sr(S_P, 4)))
    def issue_wq(c):
        if c == 0: g('s_mov_b32 s62, s63')
        g('s_mul_i32 s57, s62, %d' % (64 * 2688))
        g('s_add_u32 s57, s57, s55')
        g('s_add_u32 m0, s56, %d' % ((WQ + c * 4096) if c < 6 else WQ6))
        adv()
        g('buffer_load_dwordx4 v8, %s, s57 offen lds' % sr(S_W, 4))
    PD = int(os.environ.get('PD', '3'))
    for c in range(PD):
        issue_chunk(c); issue_w(c)
    def small_loads():
        srd(g, S_P, P_WPHI, 16 * 784 * 2)
        g('s_mul_i32 s53, s%d, 784' % S_H)
        g('v_mul_u32_u24 v9, 112, v3')
        g('v_add_u32 v9, v9, v2')
        g('v_add_u32 v9, s53, v9')
        g('v_lshlrev_b32 v9, 1, v9')
        g('v_cmp_lt_u32 vcc, 27, v2')
        g('s_mov_b64 %s, vcc' % sr(S_F28, 2))
        g('v_mov_b32 v10, 0x7ffff000')
        g('v_cndmask_b32 v9, v9, v10, vcc')
        W0 = 64; W1 = 68
        for tp in range(2):
            for j in range(8):
                d = 16 * tp + 8 * (j >> 2) + (j & 3)
                g('buffer_load_ushort v%d, v9, %s, 0 offen offset:%d' % (48 + 8 * tp + j, sr(S_P, 4), d * 56))
        srd(g, S_P + 16, P_GW, 896)
        g('v_lshrrev_b32 v10, 4, v1')
        g('v_and_b32 v14, 15, v1')
        g('s_lshl_b32 s53, s14, 4')
        g('v_add_u32 v14, s53, v14')
        g('v_lshl_add_u32 v143, v10, 6, v14')
        g('v_lshlrev_b32 v143, 1, v143')
        for i in range(2):
            g('v_add_u32 v15, s63, v10')
            if i: g('v_add_u32 v15, 4, v15')
            g('v_subrev_u32 v9, 7, v15')
            g('v_cmp_gt_u32 vcc, 7, v15')
            g('v_cndmask_b32 v15, v9, v15, vcc')
            g('v_lshl_add_u32 v15, v15, 6, v14')
            g('v_lshlrev_b32 v15, 1, v15')
            g('buffer_load_ushort v%d, v15, %s, 0 offen' % (12 + i, sr(S_P + 16, 4)))
        if os.environ.get('TLBW', '1') == '1':
            g('v_min_u32 v14, 5, v1')
            g('v_lshlrev_b32 v14, 21, v14')
            g('v_add_u32 v14, 0x1f0000, v14')
            g('buffer_load_dword v15, v14, %s, 0 offen' % sr(S_WS, 4))
            g('v_mov_b32 v14, 0')
            g('global_load_dword v15, v14, %s' % sr(P_OUT, 2))
            g('global_load_dword v15, v14, %s' % sr(P_WO, 2))
    NPRE = 42 + 16 + 2
    stamp(g, 1, 'p1')
    g('s_mov_b32 s%d, 0' % S_UP); g('s_mov_b32 s%d, -1' % (S_UP + 1))
    g('s_mov_b32 s%d, 0x10000000' % S_L28); g('s_mov_b32 s%d, 0x10000000' % (S_L28 + 1))
    g('s_mov_b32 s%d, 0x%x' % (S_L2E, L2E)); g('s_mov_b32 s%d, 0x%x' % (S_LN2, LN2))
    g('v_lshrrev_b32 v10, 4, v1')
    g('v_bfe_u32 v11, v1, 2, 2')
    g('v_lshl_add_u32 v11, v3, 5, v11')
    g('v_lshlrev_b32 v11, 6, v11')
    g('v_and_b32 v14, 1, v10')
    g('v_lshl_add_u32 v11, v14, 5, v11')
    g('v_lshl_add_u32 v11, v7, 3, v11')
    DK = 16; DV = 32; WF = 96
    def mf(c):
        for tq in range(4):
            t = 4 * c + tq
            g('v_mfma_f32_32x32x16_bf16 %s, %s, %s, %s' % (vr(DK, 16), vr(WF + 8 * tq, 4), vr(XF + 4 * t, 4), '0' if t == 0 else vr(DK, 16)))
            g('v_mfma_f32_32x32x16_bf16 %s, %s, %s, %s' % (vr(DV, 16), vr(XF + 4 * t, 4), vr(WF + 8 * tq + 4, 4), '0' if t == 0 else vr(DV, 16)))
    seq = []
    for c in range(PD): seq += [c] * 6
    WFB = (64, 96)
    TT = 128
    def waitx(c):
        last = max(i for i, x in enumerate(seq) if x == c)
        g('s_waitcnt vmcnt(%d)' % (len(seq) - 1 - last))
    def stA(c):
        R = [XF + 16 * c + 4 * i for i in range(4)]
        o = []
        d1 = 'quad_perm:[1,0,3,2] row_mask:0xf bank_mask:0xf'; d2 = 'quad_perm:[2,3,0,1] row_mask:0xf bank_mask:0xf'
        def setv(m): o.append('s_mov_b32 vcc_lo, 0x%x' % m); o.append('s_mov_b32 vcc_hi, 0x%x' % m)
        setv(0x55555555)
        for d in range(4): o.append('v_cndmask_b32_dpp v%d, v%d, v%d, vcc %s' % (TT + d, R[1] + d, R[0] + d, d1))
        for d in range(4): o.append('v_cndmask_b32_dpp v%d, v%d, v%d, vcc %s' % (TT + 4 + d, R[3] + d, R[2] + d, d1))
        setv(0xaaaaaaaa)
        for d in range(4): o.append('v_cndmask_b32_dpp v%d, v%d, v%d, vcc %s' % (R[1] + d, R[0] + d, R[1] + d, d1))
        for d in range(4): o.append('v_cndmask_b32_dpp v%d, v%d, v%d, vcc %s' % (R[3] + d, R[2] + d, R[3] + d, d1))
        setv(0x33333333)
        for d in range(4): o.append('v_cndmask_b32_dpp v%d, v%d, v%d, vcc %s' % (R[0] + d, TT + 4 + d, TT + d, d2))
        setv(0xcccccccc)
        for d in range(4): o.append('v_cndmask_b32_dpp v%d, v%d, v%d, vcc %s' % (R[2] + d, TT + d, TT + 4 + d, d2))
        for d in range(4): o.append('v_cndmask_b32_dpp v%d, v%d, v%d, vcc %s' % (TT + d, R[1] + d, R[3] + d, d2))
        setv(0x33333333)
        for d in range(4): o.append('v_cndmask_b32_dpp v%d, v%d, v%d, vcc %s' % (R[1] + d, R[3] + d, R[1] + d, d2))
        for d in range(4): o.append('v_mov_b32 v%d, v%d' % (R[3] + d, TT + d))
        return o
    def stB(c):
        out = []
        for tq in range(4):
            t = 4 * c + tq
            for sg, segb in ((0, WK), (1, WV)):
                for a_ in range(2):
                    out.append('ds_read_b64_tr_b16 %s, v11 offset:%d' % (vr(WFB[c & 1] + 8 * tq + 4 * sg + 2 * a_, 2), segb + 4096 * c + 512 * tq + 256 * a_))
        return out
    def stC(c):
        out = []
        W_ = WFB[c & 1]
        for tq in range(4):
            t = 4 * c + tq
            out.append('v_mfma_f32_32x32x16_bf16 %s, %s, %s, %s' % (vr(DK, 16), vr(W_ + 8 * tq, 4), vr(XF + 4 * t, 4), '0' if t == 0 else vr(DK, 16)))
            out.append('v_mfma_f32_32x32x16_bf16 %s, %s, %s, %s' % (vr(DV, 16), vr(XF + 4 * t, 4), vr(W_ + 8 * tq + 4, 4), '0' if t == 0 else vr(DV, 16)))
        return out
    def more(c):
        if c < 7:
            issue_chunk(c); issue_w(c); seq.extend([c] * 6)
        if c == 6:
            small_loads(); seq.extend([99] * (21 if os.environ.get('TLBW', '1') == '1' else 18))
    waitx(0)
    g('s_barrier')
    for l in stB(0): g(l)
    for l in stA(0): g(l)
    if PD == 7:
        small_loads(); seq.extend([99] * (21 if os.environ.get('TLBW', '1') == '1' else 18))
    for c in range(7):
        stamp(g, 2 + c, 'p1')
        ra = []; rb = []
        if c + 1 < 7:
            waitx(c + 1)
            g('s_barrier')
            ra = stA(c + 1); rb = stB(c + 1)
        g('s_waitcnt lgkmcnt(0)')
        na = (len(ra) + 7) // 8
        for i, l in enumerate(stC(c)):
            g(l)
            for r_ in rb[2 * i:2 * i + 2]: g(r_)
            for r_ in ra[na * i:na * i + na]: g(r_)
        if c + PD < 7: more(c + PD)
        if c >= 4:
            issue_wq(2 * (c - 4)); issue_wq(2 * (c - 4) + 1); seq.extend([98] * 2)
    stamp(g, 1)
    stamp(g, 9, 'p1')
    g('s_waitcnt vmcnt(6)')
    g('s_setprio %s' % os.environ.get('AP2', '2'))
    g('v_mov_b32 v94, 0')
    g('global_load_dwordx2 v[92:93], v94, %s sc0 sc1' % sr(P_DBG, 2))
    W1Z = 72; W1P = 76; W0N = 80; W1N = 84
    g('v_mov_b32 v14, 0x3f803f80')
    g('v_mov_b32 v15, 0x80008000')
    for i in range(8):
        g('v_lshl_or_b32 v%d, v%d, 16, v%d' % (W0 + i, 48 + 2 * i + 1, 48 + 2 * i))
    for i in range(8):
        g('v_cndmask_b32 v%d, v%d, 0, %s' % (W0 + i, W0 + i, sr(S_F28, 2)))
    for i in range(4):
        g('v_xor_b32 v%d, v15, v%d' % (W0N + i, W0 + i))
        g('v_xor_b32 v%d, v15, v%d' % (W1N + i, W1 + i))
    for i in range(2):
        for dst in (W1Z, W1P):
            g('v_mov_b32 v%d, v%d' % (dst + i, W1 + i))
    g('v_cndmask_b32 v%d, v%d, 0, %s' % (W1Z + 2, W1 + 2, sr(S_UP, 2)))
    g('v_cndmask_b32 v%d, v%d, 0, %s' % (W1Z + 3, W1 + 3, sr(S_UP, 2)))
    g('v_cndmask_b32 v%d, v%d, v14, %s' % (W1P + 2, W1 + 2, sr(S_UP, 2)))
    g('v_cndmask_b32 v%d, v%d, 0, %s' % (W1P + 3, W1 + 3, sr(S_UP, 2)))
    g('v_cndmask_b32 v%d, v%d, 0, %s' % (W1N + 2, W1N + 2, sr(S_UP, 2)))
    g('v_cndmask_b32 v%d, v%d, v14, %s' % (W1N + 3, W1N + 3, sr(S_UP, 2)))
    KB = 48; VB = 56; DP = 16; T = 96
    for i in range(8):
        g('v_cvt_pk_bf16_f32 v%d, v%d, v%d' % (KB + i, DK + 2 * i, DK + 2 * i + 1))
    for i in range(8):
        g('v_cvt_pk_bf16_f32 v%d, v%d, v%d' % (VB + i, DV + 2 * i, DV + 2 * i + 1))
    g('v_mfma_f32_32x32x16_bf16 %s, %s, %s, 0' % (vr(DP, 16), vr(W0, 4), vr(KB, 4)))
    g('v_mfma_f32_32x32x16_bf16 %s, %s, %s, %s' % (vr(DP, 16), vr(W1Z, 4), vr(KB + 4, 4), vr(DP, 16)))
    for i in range(8):
        g('v_cndmask_b32 v%d, v%d, v14, %s' % (VB + i, VB + i, sr(S_L28, 2)))
    MX, MN, SP, SM, EP, EM = softmax_stats(g, DP, T, True)
    A_, B_ = T + 4, T + 5
    g('v_log_f32 v%d, v%d' % (SP, SP)); g('v_log_f32 v%d, v%d' % (SM, SM))
    g('v_fma_f32 v%d, -v%d, s%d, -v%d' % (SP, SP, S_LN2, MX))
    g('v_fma_f32 v%d, -v%d, s%d, v%d' % (SM, SM, S_LN2, MN))
    for r_, tmp in ((SP, A_), (SM, B_)):
        g('v_cvt_pk_bf16_f32 v%d, v%d, v%d' % (tmp, r_, r_))
        g('v_lshlrev_b32 v%d, 16, v%d' % (tmp, tmp))
        g('v_sub_f32 v%d, v%d, v%d' % (tmp, r_, tmp))
        g('v_cvt_pk_bf16_f32 v%d, v%d, v%d' % (tmp, r_, tmp))
    g('v_cndmask_b32 v%d, v%d, v%d, %s' % (KB + 6, KB + 6, A_, sr(S_UP, 2)))
    g('v_cndmask_b32 v%d, v%d, v%d, %s' % (KB + 7, KB + 7, B_, sr(S_UP, 2)))
    DPP = 16; DPM = 32
    g('v_mfma_f32_32x32x16_bf16 %s, %s, %s, 0' % (vr(DPP, 16), vr(KB, 4), vr(W0, 4)))
    g('v_mfma_f32_32x32x16_bf16 %s, %s, %s, 0' % (vr(DPM, 16), vr(KB, 4), vr(W0N, 4)))
    g('v_mfma_f32_32x32x16_bf16 %s, %s, %s, %s' % (vr(DPP, 16), vr(KB + 4, 4), vr(W1P, 4), vr(DPP, 16)))
    g('v_mfma_f32_32x32x16_bf16 %s, %s, %s, %s' % (vr(DPM, 16), vr(KB + 4, 4), vr(W1N, 4), vr(DPM, 16)))
    for i in range(16):
        g('v_mul_f32 v%d, s%d, v%d' % (DPP + i, S_L2E, DPP + i))
    for i in range(16):
        g('v_exp_f32 v%d, v%d' % (DPP + i, DPP + i))
        g('v_mul_f32 v%d, s%d, v%d' % (DPM + i, S_L2E, DPM + i))
    for i in range(16):
        g('v_exp_f32 v%d, v%d' % (DPM + i, DPM + i))
    PH = 96
    for i in range(8):
        g('v_cvt_pk_bf16_f32 v%d, v%d, v%d' % (PH + i, DPP + 2 * i, DPP + 2 * i + 1))
    for i in range(8):
        g('v_cvt_pk_bf16_f32 v%d, v%d, v%d' % (PH + 8 + i, DPM + 2 * i, DPM + 2 * i + 1))
    KVP_ = 16; KVM = 32
    g('v_mfma_f32_32x32x16_bf16 %s, %s, %s, 0' % (vr(KVP_, 16), vr(PH, 4), vr(VB, 4)))
    g('v_mfma_f32_32x32x16_bf16 %s, %s, %s, 0' % (vr(KVM, 16), vr(PH + 8, 4), vr(VB, 4)))
    g('v_mfma_f32_32x32x16_bf16 %s, %s, %s, %s' % (vr(KVP_, 16), vr(PH + 4, 4), vr(VB + 4, 4), vr(KVP_, 16)))
    g('v_mfma_f32_32x32x16_bf16 %s, %s, %s, %s' % (vr(KVM, 16), vr(PH + 12, 4), vr(VB + 4, 4), vr(KVM, 16)))
    g('s_barrier')
    g('s_lshl_b32 s57, s14, 13')
    g('s_add_u32 s57, s57, %d' % RED)
    g('v_lshlrev_b32 v14, 4, v1')
    g('v_add_u32 v15, s57, v14')
    for gq in range(8):
        g('ds_write_b128 v15, %s offset:%d' % (vr(16 + 4 * gq, 4), 1024 * gq))
    g('s_waitcnt lgkmcnt(0)')
    g('s_barrier')
    g('s_lshl_b32 s57, s14, 11')
    g('s_add_u32 s57, s57, %d' % RED)
    g('v_add_u32 v15, s57, v14')
    for wv in range(4):
        for k in range(2):
            g('ds_read_b128 %s, v15 offset:%d' % (vr(96 + 8 * wv + 4 * k, 4), 8192 * wv + 1024 * k))
    g('s_lshl_b32 s57, s%d, 4' % S_H)
    g('s_add_u32 s57, s57, s%d' % S_TT)
    g('s_lshl_b32 s57, s57, 2')
    g('s_add_u32 s57, s57, s14')
    g('s_lshl_b32 s57, s57, 10')
    g('s_add_u32 s57, s57, %d' % WS_KVP)
    g('v_add_u32 v15, s57, v14')
    g('s_waitcnt lgkmcnt(0)')
    for i in range(8):
        g('v_add_f32 v%d, v%d, v%d' % (96 + i, 96 + i, 104 + i))
        g('v_add_f32 v%d, v%d, v%d' % (112 + i, 112 + i, 120 + i))
    for i in range(8):
        g('v_add_f32 v%d, v%d, v%d' % (96 + i, 96 + i, 112 + i))
    for i in range(4):
        g('v_cvt_pk_bf16_f32 v%d, v%d, v%d' % (104 + i, 96 + 2 * i, 97 + 2 * i))
    g('buffer_store_dwordx4 v[104:107], v15, %s, 0 offen sc0 sc1' % sr(S_WS, 4))
    issue_wq(6)
    get_nonce(g, 92, 94, 57, pre=True, cnt=1)
    g('s_lshl_b32 s57, s%d, 2' % S_H)
    g('s_add_u32 s57, s57, s14')
    g('s_lshl_b32 s57, s57, 4')
    g('s_add_u32 s58, s57, s%d' % S_TT)
    g('s_lshl_b32 s58, s58, 3')
    g('s_add_u32 s58, s58, %d' % WS_FK)
    g('v_mov_b32 v15, s58')
    set_flag(g, 15, 96)
    stamp(g, 2)
    g('s_lshl_b32 s%d, s57, 3' % 88)
    g('s_waitcnt vmcnt(1)')
    g('v_lshlrev_b32 v14, 5, v143')
    g('ds_write_b16 v14, v12 offset:%d' % (WQ + 56))
    g('v_add_u32 v15, %d, v14' % (256 * 64 + WQ + 56))
    g('v_add_u32 v10, %d, v14' % (256 * 64 - 384 * 64 + WQ6 + 56))
    g('v_cmp_gt_u32 vcc, 32, v1')
    g('v_cndmask_b32 v15, v10, v15, vcc')
    g('v_cmp_gt_u32 vcc, 48, v1')
    g('s_and_saveexec_b64 s[58:59], vcc')
    g('ds_write_b16 v15, v13')
    g('s_mov_b64 exec, s[58:59]')
    g('s_waitcnt lgkmcnt(0)')
    g('s_barrier')
    DQ = 16; WF = 88
    g('v_add_u32 v10, %d, v11' % WQ)
    for grp in range(4):
        for tq in range(7):
            t = 7 * grp + tq
            for a in range(2):
                g('ds_read_b64_tr_b16 %s, v%d offset:%d' % (vr(WF + (28 * (grp & 1)) + 4 * tq + 2 * a, 2), 10 if t < 24 else 11, (4096 * (t >> 2) if t < 24 else WQ6) + 512 * (t & 3) + 256 * a))
        if grp > 0:
            pg = grp - 1
            for tq in range(7):
                t = 7 * pg + tq
                if tq == 0: g('s_waitcnt lgkmcnt(14)')
                g('v_mfma_f32_32x32x16_bf16 %s, %s, %s, %s' % (vr(DQ, 16), vr(WF + 28 * (pg & 1) + 4 * tq, 4), vr(XF + 4 * t, 4), '0' if t == 0 else vr(DQ, 16)))
    g('s_waitcnt lgkmcnt(0)')
    for tq in range(7):
        t = 21 + tq
        g('v_mfma_f32_32x32x16_bf16 %s, %s, %s, %s' % (vr(DQ, 16), vr(WF + 28 + 4 * tq, 4), vr(XF + 4 * t, 4), vr(DQ, 16)))
    g('s_barrier')
    QB = 48
    g('v_mov_b32 v14, v%d' % (DQ + 12))
    for i in range(8):
        g('v_cvt_pk_bf16_f32 v%d, v%d, v%d' % (QB + i, DQ + 2 * i, DQ + 2 * i + 1))
    g('v_mfma_f32_32x32x16_bf16 %s, %s, %s, 0' % (vr(DP, 16), vr(W0, 4), vr(QB, 4)))
    g('v_mfma_f32_32x32x16_bf16 %s, %s, %s, %s' % (vr(DP, 16), vr(W1Z, 4), vr(QB + 4, 4), vr(DP, 16)))
    g('v_mul_f32 v14, s%d, v14' % S_L2E)
    g('v_exp_f32 v14, -v14')
    g('v_add_f32 v14, 1.0, v14')
    g('v_rcp_f32 v14, v14')
    Lg = g.newlabel('L_ng')
    g('s_cmp_lg_u32 s%d, 0' % S_H)
    g('s_cbranch_scc1 %s' % Lg)
    g('v_lshlrev_b32 v15, 2, v4')
    g('v_add_u32 v15, %d, v15' % WS_G)
    g('s_mov_b64 exec, %s' % sr(S_UP, 2))
    g('buffer_store_dword v14, v15, %s, 0 offen sc0 sc1' % sr(S_WS, 4))
    g('s_mov_b64 exec, -1')
    g.label(Lg)
    MX, MN, SP, SM, EP, EM = softmax_stats(g, DP, T, False)
    g('v_rcp_f32 v%d, v%d' % (SP, SP)); g('v_rcp_f32 v%d, v%d' % (SM, SM))
    for i in range(16):
        g('v_mul_f32 v%d, v%d, v%d' % (EP + i, EP + i, SP))
        g('v_mul_f32 v%d, v%d, v%d' % (EM + i, EM + i, SM))
    PQ = 48
    for i in range(8):
        g('v_cvt_pk_bf16_f32 v%d, v%d, v%d' % (PQ + i, EP + 2 * i, EP + 2 * i + 1))
        g('v_cvt_pk_bf16_f32 v%d, v%d, v%d' % (PQ + 8 + i, EM + 2 * i, EM + 2 * i + 1))
    SEL = 64
    g('v_lshrrev_b32 v8, 3, v2')
    g('v_bfe_u32 v9, v2, 2, 1')
    g('v_and_b32 v10, 3, v2')
    g('v_lshrrev_b32 v12, 1, v10')
    g('v_lshl_add_u32 v12, v8, 1, v12')
    g('v_and_b32 v13, 1, v10')
    g('v_mov_b32 v14, 0x3f80')
    g('v_mov_b32 v15, 0x3f800000')
    g('v_cmp_eq_u32 vcc, 1, v13')
    g('v_cndmask_b32 v13, v14, v15, vcc')
    g('v_cmp_eq_u32 vcc, v9, v3')
    g('v_cndmask_b32 v13, 0, v13, vcc')
    for i in range(4):
        g('v_cmp_eq_u32 vcc, %d, v12' % i)
        g('v_cndmask_b32 v%d, 0, v13, vcc' % (SEL + i))
    stamp(g, 3)
    g('v_and_b32 v8, 15, v1')
    g('v_lshlrev_b32 v8, 3, v8')
    g('s_add_u32 s57, s88, %d' % WS_FK)
    g('v_add_u32 v8, s57, v8')
    poll_flags(g, 8, None, 96, 57)
    stamp(g, 4)
    stamp(g, 1, 'p3')
    g('s_lshl_b32 s57, s%d, 6' % S_H)
    g('s_add_u32 s57, s57, s14')
    g('s_lshl_b32 s57, s57, 10')
    g('s_add_u32 s57, s57, %d' % WS_KVP)
    g('v_lshlrev_b32 v9, 4, v1')
    g('v_add_u32 v8, s57, v9')
    PL = 144
    PSC = os.environ.get('PSC', 'sc0 sc1')
    for j in range(16):
        g('s_mov_b32 s57, %d' % (j * 4096))
        g('buffer_load_dwordx4 %s, v8, %s, s57 offen %s' % (vr(PL + 4 * j, 4), sr(S_WS, 4), PSC))
    DS_ = 16
    stamp(g, 2, 'p3')
    for j in range(16):
        g('s_waitcnt vmcnt(%d)' % (15 - j))
        g('v_mfma_f32_32x32x16_bf16 %s, %s, %s, %s' % (vr(DS_, 16), vr(SEL, 4), vr(PL + 4 * j, 4), '0' if j == 0 else vr(DS_, 16)))
    for i in range(4):
        g('v_cvt_pk_bf16_f32 v%d, v%d, v%d' % (96 + i, DS_ + 2 * i, DS_ + 2 * i + 1))
    g('s_lshl_b32 s57, s14, 10')
    g('s_add_u32 s57, s57, %d' % KVX)
    g('v_add_u32 v8, s57, v9')
    stamp(g, 3, 'p3')
    g('ds_write_b128 v8, v[96:99]')
    g('s_waitcnt lgkmcnt(0)')
    g('s_barrier')
    stamp(g, 4, 'p3')
    g('v_add_u32 v8, %d, v9' % KVX)
    KF = 100
    for t in range(4):
        g('ds_read_b128 %s, v8 offset:%d' % (vr(KF + 4 * t, 4), 1024 * t))
    DO = 16
    for t in range(4):
        g('s_waitcnt lgkmcnt(%d)' % (3 - t))
        g('v_mfma_f32_32x32x16_bf16 %s, %s, %s, %s' % (vr(DO, 16), vr(KF + 4 * t, 4), vr(PQ + 4 * t, 4), '0' if t == 0 else vr(DO, 16)))
    g('v_mov_b32 v8, v%d' % (DO + 12)); g('v_mov_b32 v9, v%d' % (DO + 12))
    g('v_permlane32_swap_b32 v8, v9')
    g('v_add_f32 v9, 0x%x, v9' % f2u(1e-6))
    g('v_rcp_f32 v9, v9')
    for i in range(16):
        g('v_mul_f32 v%d, v%d, v9' % (DO + i, DO + i))
    for i in range(8):
        g('v_cvt_pk_bf16_f32 v%d, v%d, v%d' % (96 + i, DO + 2 * i, DO + 2 * i + 1))
    g('v_cndmask_b32 v102, v102, 0, %s' % sr(S_UP, 2))
    g('v_cndmask_b32 v103, v103, 0, %s' % sr(S_UP, 2))
    g('s_lshl_b32 s57, s%d, 2' % S_TT)
    g('s_add_u32 s57, s57, s14')
    g('s_lshl_b32 s57, s57, 15')
    g('s_lshl_b32 s58, s%d, 10' % S_H)
    g('s_add_u32 s57, s57, s58')
    g('s_add_u32 s57, s57, %d' % WS_O)
    g('v_lshrrev_b32 v8, 4, v2')
    g('v_lshlrev_b32 v8, 14, v8')
    g('v_lshl_add_u32 v8, v3, 8, v8')
    g('v_and_b32 v10, 15, v2')
    g('v_lshl_add_u32 v8, v10, 4, v8')
    g('v_add_u32 v8, s57, v8')
    g('buffer_store_dwordx4 v[96:99], v8, %s, 0 offen sc0 sc1' % sr(S_WS, 4))
    g('buffer_store_dwordx4 v[100:103], v8, %s, 0 offen offset:512 sc0 sc1' % sr(S_WS, 4))
    stamp(g, 5, 'p3')
    g('s_lshl_b32 s57, s%d, 2' % S_TT)
    g('s_add_u32 s57, s57, s14')
    g('s_lshl_b32 s57, s57, 4')
    g('s_add_u32 s57, s57, s%d' % S_H)
    g('s_lshl_b32 s57, s57, 3')
    g('s_add_u32 s57, s57, %d' % WS_FO)
    g('v_mov_b32 v15, s57')
    g('s_waitcnt vmcnt(0)')
    set_flag(g, 15, 96)
    stamp(g, 5)
    stamp(g, 6, 'p3')
    srd(g, S_P, P_WO, 448 * 896)
    g('v_lshrrev_b32 v6, 2, v1')
    g('v_and_b32 v7, 3, v1')
    g('v_mul_u32_u24 v9, 896, v6')
    g('v_lshl_add_u32 v9, v7, 4, v9')
    g('s_mul_i32 s53, s%d, 112' % S_CG)
    g('v_add_u32 v9, s53, v9')
    g('s_mul_i32 s55, s14, %d' % (16 * 896))
    for c in range(7):
        for sg in range(2):
            g('s_add_u32 s57, s55, %d' % (c * 64 * 896 + 56 * sg))
            g('s_add_u32 m0, s56, %d' % (28672 * sg + c * 4096))
            g('s_nop 0')
            g('buffer_load_dwordx4 v9, %s, s57 offen lds' % sr(S_P, 4))
    g('v_and_b32 v2, 15, v1')
    g('v_lshrrev_b32 v3, 4, v1')
    g('s_lshl_b32 s57, s%d, 6' % S_TT64)
    g('s_lshr_b32 s58, s14, 1')
    g('s_lshl_b32 s58, s58, 5')
    g('s_add_u32 s57, s57, s58')
    g('s_and_b32 s58, s14, 1')
    g('s_lshl_b32 s58, s58, 2')
    g('s_add_u32 s57, s57, s58')
    g('v_and_b32 v4, 3, v2')
    g('v_lshlrev_b32 v4, 3, v4')
    g('v_lshrrev_b32 v8, 2, v2')
    g('v_add3_u32 v4, v4, v8, s57')
    srd(g, S_P, P_X, 2048 * 896)
    srd(g, S_W, P_DSK, 896)
    g('s_mul_i32 s58, s%d, 112' % S_CG)
    g('v_lshlrev_b32 v5, 3, v3')
    g('v_add_u32 v5, s58, v5')
    g('v_mul_u32_u24 v6, 896, v4')
    g('v_add_u32 v6, v6, v5')
    XE = 96; DE = 104
    for m in range(4):
        mo = 56 * (m >> 1) + 32 * (m & 1)
        g('buffer_load_dwordx2 %s, v6, %s, 0 offen offset:%d' % (vr(XE + 2 * m, 2), sr(S_P, 4), mo))
        g('buffer_load_dwordx2 %s, v5, %s, 0 offen offset:%d' % (vr(DE + 2 * m, 2), sr(S_W, 4), mo))
    g('v_bfe_u32 v7, v1, 2, 2')
    g('v_lshrrev_b32 v8, 1, v3')
    g('v_lshl_add_u32 v7, v8, 4, v7')
    g('v_and_b32 v8, 1, v3')
    g('v_lshl_add_u32 v7, v8, 2, v7')
    g('v_lshlrev_b32 v7, 6, v7')
    g('v_and_b32 v8, 3, v1')
    g('v_lshl_add_u32 v7, v8, 3, v7')
    g('s_lshr_b32 s57, s%d, 1' % S_TT64)
    g('s_lshl_b32 s57, s57, 2')
    g('s_and_b32 s58, s%d, 1' % S_TT64)
    g('s_lshl_b32 s58, s58, 1')
    g('s_add_u32 s57, s57, s58')
    g('s_lshr_b32 s58, s14, 1')
    g('s_add_u32 s57, s57, s58')
    g('s_lshl_b32 s57, s57, 7')
    g('s_add_u32 s57, s57, %d' % WS_FO)
    g('v_lshlrev_b32 v8, 3, v2')
    g('v_add_u32 v8, s57, v8')
    g('s_lshl_b32 s57, s%d, 2' % S_CG)
    g('s_lshr_b32 s58, s%d, 3' % S_TT64)
    g('s_add_u32 s57, s57, s58')
    g('s_lshl_b32 s57, s57, 8')
    g('s_add_u32 s57, s57, %d' % WS_FY)
    g('v_and_b32 v10, 31, v1')
    g('v_min_u32 v10, 27, v10')
    g('v_lshlrev_b32 v10, 3, v10')
    g('v_add_u32 v10, s57, v10')
    if os.environ.get('COMB', '0') == '1': g('v_cndmask_b32 v8, v8, v10, %s' % sr(S_UP, 2))
    Lp = g.newlabel('L_pfo'); Lpd = g.newlabel('L_pfod')
    g('s_mov_b32 s57, 0')
    g.label(Lp)
    g('buffer_load_dwordx2 v[112:113], v8, %s, 0 offen sc0 sc1' % sr(S_WS, 4))
    g('s_waitcnt vmcnt(0)')
    g('v_cmp_eq_u64 vcc, %s, v[112:113]' % sr(S_NONCE, 2))
    g('s_cmp_eq_u32 vcc_lo, -1')
    g('s_cbranch_scc1 %s' % Lpd)
    g('s_add_u32 s57, s57, 1')
    g('s_cmp_ge_u32 s57, 200000')
    g('s_cbranch_scc1 %s' % Lpd)
    g('s_sleep 1')
    g('s_branch %s' % Lp)
    g.label(Lpd)
    if os.environ.get('COMB', '0') == '1': g('s_mov_b32 s89, vcc_hi')
    else: g('s_mov_b32 s89, 0')
    g('s_mul_i32 s57, s%d, %d' % (S_CG, 28 * 8192))
    g('s_add_u32 s57, s57, %d' % WS_Y2)
    g('v_lshlrev_b32 v12, 14, v3')
    g('v_lshl_add_u32 v12, v4, 2, v12')
    g('v_add_u32 v12, s57, v12')
    YE = 112
    def yloads():
        for m in range(4):
            for k in range(2):
                pr = 14 * (m >> 1) + 8 * (m & 1) + k
                g('s_mov_b32 s57, %d' % (pr * 8192))
                g('buffer_load_dword v%d, v12, %s, s57 offen sc0 sc1' % (YE + 2 * m + k, sr(S_WS, 4)))
    Ly = g.newlabel('L_ny')
    g('s_cmp_lg_u32 s89, -1')
    g('s_cbranch_scc1 %s' % Ly)
    yloads()
    g.label(Ly)
    stamp(g, 7, 'p3')
    stamp(g, 6)
    g('s_lshl_b32 s57, s%d, 2' % S_TT64)
    g('s_add_u32 s57, s57, s14')
    g('s_lshl_b32 s57, s57, 14')
    g('s_add_u32 s57, s57, %d' % WS_O)
    g('v_lshlrev_b32 v8, 4, v1')
    g('v_add_u32 v8, s57, v8')
    OF = 144
    for t in range(16):
        g('s_movk_i32 s57, %d' % (1024 * t))
        g('buffer_load_dwordx4 %s, v8, %s, s57 offen sc0 sc1' % (vr(OF + 4 * t, 4), sr(S_WS, 4)))
    g('v_lshlrev_b32 v9, 2, v4')
    g('v_add_u32 v9, %d, v9' % WS_G)
    g('buffer_load_dword v14, v9, %s, 0 offen sc0 sc1' % sr(S_WS, 4))
    g('buffer_load_dwordx2 v[120:121], v10, %s, 0 offen sc0 sc1' % sr(S_WS, 4))
    g('s_barrier')
    stamp(g, 8, 'p3')
    DA = 16
    WFR = 32
    def wreads(t):
        for m in range(4):
            for a in range(2):
                g('ds_read_b64_tr_b16 %s, v7 offset:%d' % (vr(WFR + 16 * (t & 1) + 4 * m + 2 * a, 2), 28672 * (m >> 1) + (28 * t + 8 * a) * 64 + 32 * (m & 1)))
    wreads(0)
    for t in range(16):
        if t < 15:
            wreads(t + 1)
            g('s_waitcnt lgkmcnt(8)')
        else:
            g('s_waitcnt lgkmcnt(0)')
        YT = int(os.environ.get('YT', '12'))
        if t < YT:
            g('s_waitcnt vmcnt(%d)' % (17 - t))
        elif t == YT:
            g('s_waitcnt vmcnt(0)')
            Lyc = g.newlabel('L_yc')
            g('v_cmp_eq_u64 vcc, %s, v[120:121]' % sr(S_NONCE, 2))
            g('s_cmp_lg_u64 vcc, exec')
            g('s_cbranch_scc1 %s' % Lyc)
            g('s_mov_b32 s89, -1')
            yloads()
            g.label(Lyc)
        for m in range(4):
            g('v_mfma_f32_16x16x32_bf16 %s, %s, %s, %s' % (vr(DA + 4 * m, 4), vr(WFR + 16 * (t & 1) + 4 * m, 4), vr(OF + 4 * t, 4), '0' if t == 0 else vr(DA + 4 * m, 4)))
    stamp(g, 7)
    stamp(g, 9, 'p3')
    Ly2 = g.newlabel('L_ny2')
    g('s_cmp_eq_u32 s89, -1')
    g('s_cbranch_scc1 %s' % Ly2)
    poll_flags(g, 10, None, 120, 57)
    yloads()
    g.label(Ly2)
    stamp(g, 8)
    srd(g, S_P, P_OUT, 2048 * 896)
    g('v_cmp_eq_u32 vcc, 3, v3')
    g('v_mov_b32 v9, 0x7ffff000')
    g('v_cndmask_b32 v9, v6, v9, vcc')
    g('v_sub_f32 v15, 1.0, v14') if False else None
    g('s_waitcnt vmcnt(0)')
    g('v_sub_f32 v15, 1.0, v14')
    for m in range(4):
        U = 64 + 16 * 0
        for k in range(2):
            g('v_lshlrev_b32 v%d, 16, v%d' % (U + 2 * k, XE + 2 * m + k))
            g('v_and_b32 v%d, 0xffff0000, v%d' % (U + 2 * k + 1, XE + 2 * m + k))
            g('v_lshlrev_b32 v%d, 16, v%d' % (U + 4 + 2 * k, DE + 2 * m + k))
            g('v_and_b32 v%d, 0xffff0000, v%d' % (U + 4 + 2 * k + 1, DE + 2 * m + k))
            g('v_lshlrev_b32 v%d, 16, v%d' % (U + 8 + 2 * k, YE + 2 * m + k))
            g('v_and_b32 v%d, 0xffff0000, v%d' % (U + 8 + 2 * k + 1, YE + 2 * m + k))
        for i in range(4):
            g('v_fma_f32 v%d, v%d, v%d, v%d' % (U + 8 + i, U + i, U + 4 + i, U + 8 + i))
            g('v_mul_f32 v%d, v15, v%d' % (U + 8 + i, U + 8 + i))
            g('v_fma_f32 v%d, v14, v%d, v%d' % (U + 8 + i, DA + 4 * m + i, U + 8 + i))
        g('v_cvt_pk_bf16_f32 v%d, v%d, v%d' % (80 + 2 * m, U + 8, U + 9))
        g('v_cvt_pk_bf16_f32 v%d, v%d, v%d' % (80 + 2 * m + 1, U + 10, U + 11))
        mo = 56 * (m >> 1) + 32 * (m & 1)
        g('buffer_store_dwordx2 %s, v%d, %s, 0 offen offset:%d' % (vr(80 + 2 * m, 2), 9 if (m & 1) else 6, sr(S_P, 4), mo))
    stamp(g, 9)
    if STSET[0] == 'hw':
        stamp(g, 9, 'hw')
        g('s_memtime s[90:91]')
        g('s_waitcnt lgkmcnt(0)')
        g('s_mov_b32 s96, s90')
    stamp_flush(g)
    g('s_endpgm')
```

```python
from common import *
import os
import struct
def f2u(x): return struct.unpack('<I', struct.pack('<f', x))[0]
L2E = f2u(1.4426950408889634); LN2 = f2u(0.6931471805599453)
WK = 0; WV = 28672; WQ = 57344; WQ6 = 53248; RED = 0; KVX = 61440
XF = 144
S_W = 64
S_P = 68
S_UP = 72
S_L28 = 74
S_F28 = 76
S_TT = 78; S_H = 79; S_L2E = 80; S_LN2 = 81; S_TT64 = 82; S_CG = 83

def srd(g, s, ptr, nbytes):
    g('s_mov_b32 s%d, s%d' % (s, ptr)); g('s_mov_b32 s%d, s%d' % (s + 1, ptr + 1))
    g('s_mov_b32 s%d, %d' % (s + 2, nbytes)); g('s_mov_b32 s%d, 0x00020000' % (s + 3))

def softmax_stats(g, DP, T, want_c):
    MX, MN, SP, SM, A, B, TM, TN = T, T + 1, T + 2, T + 3, T + 4, T + 5, T + 6, T + 7
    EP = T + 8; EM = T + 24
    for i in range(12, 16):
        g('v_cndmask_b32 v%d, v%d, v%d, %s' % (DP + i, DP + i, DP + 11, sr(S_UP, 2)))
    g('v_max3_f32 v%d, v%d, v%d, v%d' % (MX, DP, DP + 1, DP + 2))
    g('v_min3_f32 v%d, v%d, v%d, v%d' % (MN, DP, DP + 1, DP + 2))
    for i in range(3, 15, 2):
        g('v_max3_f32 v%d, v%d, v%d, v%d' % (MX, MX, DP + i, DP + i + 1))
        g('v_min3_f32 v%d, v%d, v%d, v%d' % (MN, MN, DP + i, DP + i + 1))
    g('v_max_f32 v%d, v%d, v%d' % (MX, MX, DP + 15))
    g('v_min_f32 v%d, v%d, v%d' % (MN, MN, DP + 15))
    g('v_mov_b32 v%d, v%d' % (A, MX)); g('v_mov_b32 v%d, v%d' % (B, MX))
    g('v_mov_b32 v%d, v%d' % (TM, MN)); g('v_mov_b32 v%d, v%d' % (TN, MN))
    g('v_permlane32_swap_b32 v%d, v%d' % (A, B))
    g('v_permlane32_swap_b32 v%d, v%d' % (TM, TN))
    g('v_max_f32 v%d, v%d, v%d' % (MX, A, B))
    g('v_min_f32 v%d, v%d, v%d' % (MN, TM, TN))
    g('v_mul_f32 v%d, s%d, v%d' % (TM, S_L2E, MX))
    g('v_mul_f32 v%d, s%d, v%d' % (TN, S_L2E, MN))
    for i in range(16):
        g('v_fma_f32 v%d, v%d, s%d, -v%d' % (EP + i, DP + i, S_L2E, TM))
        g('v_fma_f32 v%d, -v%d, s%d, v%d' % (EM + i, DP + i, S_L2E, TN))
    for i in range(16):
        g('v_exp_f32 v%d, v%d' % (EP + i, EP + i))
        g('v_exp_f32 v%d, v%d' % (EM + i, EM + i))
    for i in range(12, 16):
        g('v_cndmask_b32 v%d, v%d, 0, %s' % (EP + i, EP + i, sr(S_UP, 2)))
        g('v_cndmask_b32 v%d, v%d, 0, %s' % (EM + i, EM + i, sr(S_UP, 2)))
    g('v_add_f32 v%d, v%d, v%d' % (SP, EP, EP + 1)); g('v_add_f32 v%d, v%d, v%d' % (SM, EM, EM + 1))
    g('v_add_f32 v%d, v%d, v%d' % (A, EP + 2, EP + 3)); g('v_add_f32 v%d, v%d, v%d' % (B, EM + 2, EM + 3))
    for i in range(4, 16, 2):
        g('v_add_f32 v%d, v%d, v%d' % (SP, SP, EP + i)); g('v_add_f32 v%d, v%d, v%d' % (SM, SM, EM + i))
        g('v_add_f32 v%d, v%d, v%d' % (A, A, EP + i + 1)); g('v_add_f32 v%d, v%d, v%d' % (B, B, EM + i + 1))
    g('v_add_f32 v%d, v%d, v%d' % (SP, SP, A)); g('v_add_f32 v%d, v%d, v%d' % (SM, SM, B))
    g('v_mov_b32 v%d, v%d' % (A, SP)); g('v_mov_b32 v%d, v%d' % (B, SP))
    g('v_mov_b32 v%d, v%d' % (TM, SM)); g('v_mov_b32 v%d, v%d' % (TN, SM))
    g('v_permlane32_swap_b32 v%d, v%d' % (A, B))
    g('v_permlane32_swap_b32 v%d, v%d' % (TM, TN))
    g('v_add_f32 v%d, v%d, v%d' % (SP, A, B))
    g('v_add_f32 v%d, v%d, v%d' % (SM, TM, TN))
    return MX, MN, SP, SM, EP, EM

def gen_A(g, stage=99):
    g.c('---- A type')
    g('s_setprio %s' % os.environ.get('AP1', '1'))
    g('s_sub_u32 s50, s2, %d' % NS)
    g('s_and_b32 s51, s50, 7')
    g('s_lshr_b32 s52, s50, 3')
    g('s_and_b32 s53, s51, 3')
    g('s_lshl_b32 s53, s53, 2')
    g('s_and_b32 s54, s52, 3')
    g('s_add_u32 s%d, s53, s54' % S_TT)
    g('s_lshr_b32 s53, s51, 2')
    g('s_lshl_b32 s53, s53, 3')
    g('s_lshr_b32 s54, s52, 2')
    g('s_add_u32 s%d, s53, s54' % S_H)
    g('s_mul_i32 s53, s52, 37')
    g('s_lshr_b32 s53, s53, 8')
    g('s_mul_i32 s54, s53, 7')
    g('s_sub_u32 s%d, s52, s54' % S_CG)
    g('s_lshl_b32 s54, s51, 2')
    g('s_add_u32 s%d, s54, s53' % S_TT64)
    g('s_cmp_ge_u32 s52, 28')
    g('s_cselect_b32 s%d, 99, s%d' % (S_TT64, S_TT64))
    srd(g, S_W, P_WQKV, 448 * 2688)
    g('v_and_b32 v2, 31, v1')
    g('v_lshrrev_b32 v3, 5, v1')
    g('s_lshl_b32 s53, s%d, 7' % S_TT)
    g('s_lshl_b32 s54, s14, 5')
    g('s_add_u32 s53, s53, s54')
    g('v_and_b32 v4, 3, v1')
    g('v_bfe_u32 v5, v1, 2, 3')
    g('v_lshl_add_u32 v9, v4, 3, v5')
    g('v_add_u32 v5, s53, v5')
    g('v_mul_u32_u24 v5, 896, v5')
    g('v_lshl_add_u32 v5, v3, 6, v5')
    g('v_lshl_add_u32 v5, v4, 4, v5')
    g('v_add_u32 v4, s53, v9')
    g('v_add_u32 v140, %d, v5' % (8 * 896))
    g('v_add_u32 v141, %d, v5' % (16 * 896))
    g('v_add_u32 v142, %d, v5' % (24 * 896))
    g('v_lshrrev_b32 v6, 2, v1')
    g('v_and_b32 v7, 3, v1')
    g('v_mul_u32_u24 v8, 2688, v6')
    g('v_lshl_add_u32 v8, v7, 4, v8')
    g('s_mul_i32 s53, s%d, 56' % S_H)
    g('v_add_u32 v8, s53, v8')
    g('s_mul_i32 s55, s14, %d' % (16 * 2688))
    g('s_lshl_b32 s56, s14, 10')
    W0 = 64; W1 = 68
    XO = (5, 140, 141, 142)
    ROT = os.environ.get('ROT', '1') == '1'
    g('s_mul_i32 s63, s52, 37')
    g('s_lshr_b32 s63, s63, 8')
    g('s_mul_i32 s63, s63, 7')
    g('s_sub_u32 s63, s52, s63')
    if not ROT: g('s_mov_b32 s63, 0')
    g('s_mov_b32 s62, s63')
    srd(g, S_P, P_X, 2048 * 896)
    def adv():
        g('s_add_u32 s62, s62, 1')
        g('s_cmp_eq_u32 s62, 7')
        g('s_cselect_b32 s62, 0, s62')
    def issue_w(c):
        g('s_mul_i32 s58, s62, %d' % (64 * 2688))
        g('s_add_u32 s58, s58, s55')
        g('s_add_u32 s57, s58, 896')
        g('s_add_u32 m0, s56, %d' % (WK + c * 4096))
        g('s_add_u32 s58, s58, 1792')
        g('buffer_load_dwordx4 v8, %s, s57 offen lds' % sr(S_W, 4))
        g('s_add_u32 m0, s56, %d' % (WV + c * 4096))
        adv()
        g('buffer_load_dwordx4 v8, %s, s58 offen lds' % sr(S_W, 4))
    def issue_chunk(c):
        g('s_lshl_b32 s57, s62, 7')
        for i in range(4):
            g('buffer_load_dwordx4 %s, v%d, %s, s57 offen' % (vr(XF + 16 * c + 4 * i, 4), XO[i], sr(S_P, 4)))
    def issue_wq(c):
        if c == 0: g('s_mov_b32 s62, s63')
        g('s_mul_i32 s57, s62, %d' % (64 * 2688))
        g('s_add_u32 s57, s57, s55')
        g('s_add_u32 m0, s56, %d' % ((WQ + c * 4096) if c < 6 else WQ6))
        adv()
        g('buffer_load_dwordx4 v8, %s, s57 offen lds' % sr(S_W, 4))
    PD = int(os.environ.get('PD', '3'))
    for c in range(PD):
        issue_chunk(c); issue_w(c)
    def small_loads():
        srd(g, S_P, P_WPHI, 16 * 784 * 2)
        g('s_mul_i32 s53, s%d, 784' % S_H)
        g('v_mul_u32_u24 v9, 112, v3')
        g('v_add_u32 v9, v9, v2')
        g('v_add_u32 v9, s53, v9')
        g('v_lshlrev_b32 v9, 1, v9')
        g('v_cmp_lt_u32 vcc, 27, v2')
        g('s_mov_b64 %s, vcc' % sr(S_F28, 2))
        g('v_mov_b32 v10, 0x7ffff000')
        g('v_cndmask_b32 v9, v9, v10, vcc')
        W0 = 64; W1 = 68
        for tp in range(2):
            for j in range(8):
                d = 16 * tp + 8 * (j >> 2) + (j & 3)
                g('buffer_load_ushort v%d, v9, %s, 0 offen offset:%d' % (48 + 8 * tp + j, sr(S_P, 4), d * 56))
        srd(g, S_P + 16, P_GW, 896)
        g('v_lshrrev_b32 v10, 4, v1')
        g('v_and_b32 v14, 15, v1')
        g('s_lshl_b32 s53, s14, 4')
        g('v_add_u32 v14, s53, v14')
        g('v_lshl_add_u32 v143, v10, 6, v14')
        g('v_lshlrev_b32 v143, 1, v143')
        for i in range(2):
            g('v_add_u32 v15, s63, v10')
            if i: g('v_add_u32 v15, 4, v15')
            g('v_subrev_u32 v9, 7, v15')
            g('v_cmp_gt_u32 vcc, 7, v15')
            g('v_cndmask_b32 v15, v9, v15, vcc')
            g('v_lshl_add_u32 v15, v15, 6, v14')
            g('v_lshlrev_b32 v15, 1, v15')
            g('buffer_load_ushort v%d, v15, %s, 0 offen' % (12 + i, sr(S_P + 16, 4)))
        if os.environ.get('TLBW', '1') == '1':
            g('v_min_u32 v14, 5, v1')
            g('v_lshlrev_b32 v14, 21, v14')
            g('v_add_u32 v14, 0x1f0000, v14')
            g('buffer_load_dword v15, v14, %s, 0 offen' % sr(S_WS, 4))
            g('v_mov_b32 v14, 0')
            g('global_load_dword v15, v14, %s' % sr(P_OUT, 2))
            g('global_load_dword v15, v14, %s' % sr(P_WO, 2))
    NPRE = 42 + 16 + 2
    stamp(g, 1, 'p1')
    g('s_mov_b32 s%d, 0' % S_UP); g('s_mov_b32 s%d, -1' % (S_UP + 1))
    g('s_mov_b32 s%d, 0x10000000' % S_L28); g('s_mov_b32 s%d, 0x10000000' % (S_L28 + 1))
    g('s_mov_b32 s%d, 0x%x' % (S_L2E, L2E)); g('s_mov_b32 s%d, 0x%x' % (S_LN2, LN2))
    g('v_lshrrev_b32 v10, 4, v1')
    g('v_bfe_u32 v11, v1, 2, 2')
    g('v_lshl_add_u32 v11, v3, 5, v11')
    g('v_lshlrev_b32 v11, 6, v11')
    g('v_and_b32 v14, 1, v10')
    g('v_lshl_add_u32 v11, v14, 5, v11')
    g('v_lshl_add_u32 v11, v7, 3, v11')
    DK = 16; DV = 32; WF = 96
    def mf(c):
        for tq in range(4):
            t = 4 * c + tq
            g('v_mfma_f32_32x32x16_bf16 %s, %s, %s, %s' % (vr(DK, 16), vr(WF + 8 * tq, 4), vr(XF + 4 * t, 4), '0' if t == 0 else vr(DK, 16)))
            g('v_mfma_f32_32x32x16_bf16 %s, %s, %s, %s' % (vr(DV, 16), vr(XF + 4 * t, 4), vr(WF + 8 * tq + 4, 4), '0' if t == 0 else vr(DV, 16)))
    seq = []
    for c in range(PD): seq += [c] * 6
    WFB = (64, 96)
    TT = 128
    def waitx(c):
        last = max(i for i, x in enumerate(seq) if x == c)
        g('s_waitcnt vmcnt(%d)' % (len(seq) - 1 - last))
    def stA(c):
        R = [XF + 16 * c + 4 * i for i in range(4)]
        o = []
        d1 = 'quad_perm:[1,0,3,2] row_mask:0xf bank_mask:0xf'; d2 = 'quad_perm:[2,3,0,1] row_mask:0xf bank_mask:0xf'
        def setv(m): o.append('s_mov_b32 vcc_lo, 0x%x' % m); o.append('s_mov_b32 vcc_hi, 0x%x' % m)
        setv(0x55555555)
        for d in range(4): o.append('v_cndmask_b32_dpp v%d, v%d, v%d, vcc %s' % (TT + d, R[1] + d, R[0] + d, d1))
        for d in range(4): o.append('v_cndmask_b32_dpp v%d, v%d, v%d, vcc %s' % (TT + 4 + d, R[3] + d, R[2] + d, d1))
        setv(0xaaaaaaaa)
        for d in range(4): o.append('v_cndmask_b32_dpp v%d, v%d, v%d, vcc %s' % (R[1] + d, R[0] + d, R[1] + d, d1))
        for d in range(4): o.append('v_cndmask_b32_dpp v%d, v%d, v%d, vcc %s' % (R[3] + d, R[2] + d, R[3] + d, d1))
        setv(0x33333333)
        for d in range(4): o.append('v_cndmask_b32_dpp v%d, v%d, v%d, vcc %s' % (R[0] + d, TT + 4 + d, TT + d, d2))
        setv(0xcccccccc)
        for d in range(4): o.append('v_cndmask_b32_dpp v%d, v%d, v%d, vcc %s' % (R[2] + d, TT + d, TT + 4 + d, d2))
        for d in range(4): o.append('v_cndmask_b32_dpp v%d, v%d, v%d, vcc %s' % (TT + d, R[1] + d, R[3] + d, d2))
        setv(0x33333333)
        for d in range(4): o.append('v_cndmask_b32_dpp v%d, v%d, v%d, vcc %s' % (R[1] + d, R[3] + d, R[1] + d, d2))
        for d in range(4): o.append('v_mov_b32 v%d, v%d' % (R[3] + d, TT + d))
        return o
    def stB(c):
        out = []
        for tq in range(4):
            t = 4 * c + tq
            for sg, segb in ((0, WK), (1, WV)):
                for a_ in range(2):
                    out.append('ds_read_b64_tr_b16 %s, v11 offset:%d' % (vr(WFB[c & 1] + 8 * tq + 4 * sg + 2 * a_, 2), segb + 4096 * c + 512 * tq + 256 * a_))
        return out
    def stC(c):
        out = []
        W_ = WFB[c & 1]
        for tq in range(4):
            t = 4 * c + tq
            out.append('v_mfma_f32_32x32x16_bf16 %s, %s, %s, %s' % (vr(DK, 16), vr(W_ + 8 * tq, 4), vr(XF + 4 * t, 4), '0' if t == 0 else vr(DK, 16)))
            out.append('v_mfma_f32_32x32x16_bf16 %s, %s, %s, %s' % (vr(DV, 16), vr(XF + 4 * t, 4), vr(W_ + 8 * tq + 4, 4), '0' if t == 0 else vr(DV, 16)))
        return out
    def more(c):
        if c < 7:
            issue_chunk(c); issue_w(c); seq.extend([c] * 6)
        if c == 6:
            small_loads(); seq.extend([99] * (21 if os.environ.get('TLBW', '1') == '1' else 18))
    waitx(0)
    g('s_barrier')
    for l in stB(0): g(l)
    for l in stA(0): g(l)
    if PD == 7:
        small_loads(); seq.extend([99] * (21 if os.environ.get('TLBW', '1') == '1' else 18))
    for c in range(7):
        stamp(g, 2 + c, 'p1')
        ra = []; rb = []
        if c + 1 < 7:
            waitx(c + 1)
            g('s_barrier')
            ra = stA(c + 1); rb = stB(c + 1)
        g('s_waitcnt lgkmcnt(0)')
        na = (len(ra) + 7) // 8
        for i, l in enumerate(stC(c)):
            g(l)
            for r_ in rb[2 * i:2 * i + 2]: g(r_)
            for r_ in ra[na * i:na * i + na]: g(r_)
        if c + PD < 7: more(c + PD)
        if c >= 4:
            issue_wq(2 * (c - 4)); issue_wq(2 * (c - 4) + 1); seq.extend([98] * 2)
    stamp(g, 1)
    stamp(g, 9, 'p1')
    g('s_waitcnt vmcnt(6)')
    g('s_setprio %s' % os.environ.get('AP2', '2'))
    g('v_mov_b32 v94, 0')
    g('global_load_dwordx2 v[92:93], v94, %s sc0 sc1' % sr(P_DBG, 2))
    W1Z = 72; W1P = 76; W0N = 80; W1N = 84
    g('v_mov_b32 v14, 0x3f803f80')
    g('v_mov_b32 v15, 0x80008000')
    for i in range(8):
        g('v_lshl_or_b32 v%d, v%d, 16, v%d' % (W0 + i, 48 + 2 * i + 1, 48 + 2 * i))
    for i in range(8):
        g('v_cndmask_b32 v%d, v%d, 0, %s' % (W0 + i, W0 + i, sr(S_F28, 2)))
    for i in range(4):
        g('v_xor_b32 v%d, v15, v%d' % (W0N + i, W0 + i))
        g('v_xor_b32 v%d, v15, v%d' % (W1N + i, W1 + i))
    for i in range(2):
        for dst in (W1Z, W1P):
            g('v_mov_b32 v%d, v%d' % (dst + i, W1 + i))
    g('v_cndmask_b32 v%d, v%d, 0, %s' % (W1Z + 2, W1 + 2, sr(S_UP, 2)))
    g('v_cndmask_b32 v%d, v%d, 0, %s' % (W1Z + 3, W1 + 3, sr(S_UP, 2)))
    g('v_cndmask_b32 v%d, v%d, v14, %s' % (W1P + 2, W1 + 2, sr(S_UP, 2)))
    g('v_cndmask_b32 v%d, v%d, 0, %s' % (W1P + 3, W1 + 3, sr(S_UP, 2)))
    g('v_cndmask_b32 v%d, v%d, 0, %s' % (W1N + 2, W1N + 2, sr(S_UP, 2)))
    g('v_cndmask_b32 v%d, v%d, v14, %s' % (W1N + 3, W1N + 3, sr(S_UP, 2)))
    KB = 48; VB = 56; DP = 16; T = 96
    for i in range(8):
        g('v_cvt_pk_bf16_f32 v%d, v%d, v%d' % (KB + i, DK + 2 * i, DK + 2 * i + 1))
    for i in range(8):
        g('v_cvt_pk_bf16_f32 v%d, v%d, v%d' % (VB + i, DV + 2 * i, DV + 2 * i + 1))
    g('v_mfma_f32_32x32x16_bf16 %s, %s, %s, 0' % (vr(DP, 16), vr(W0, 4), vr(KB, 4)))
    g('v_mfma_f32_32x32x16_bf16 %s, %s, %s, %s' % (vr(DP, 16), vr(W1Z, 4), vr(KB + 4, 4), vr(DP, 16)))
    for i in range(8):
        g('v_cndmask_b32 v%d, v%d, v14, %s' % (VB + i, VB + i, sr(S_L28, 2)))
    MX, MN, SP, SM, EP, EM = softmax_stats(g, DP, T, True)
    A_, B_ = T + 4, T + 5
    g('v_log_f32 v%d, v%d' % (SP, SP)); g('v_log_f32 v%d, v%d' % (SM, SM))
    g('v_fma_f32 v%d, -v%d, s%d, -v%d' % (SP, SP, S_LN2, MX))
    g('v_fma_f32 v%d, -v%d, s%d, v%d' % (SM, SM, S_LN2, MN))
    for r_, tmp in ((SP, A_), (SM, B_)):
        g('v_cvt_pk_bf16_f32 v%d, v%d, v%d' % (tmp, r_, r_))
        g('v_lshlrev_b32 v%d, 16, v%d' % (tmp, tmp))
        g('v_sub_f32 v%d, v%d, v%d' % (tmp, r_, tmp))
        g('v_cvt_pk_bf16_f32 v%d, v%d, v%d' % (tmp, r_, tmp))
    g('v_cndmask_b32 v%d, v%d, v%d, %s' % (KB + 6, KB + 6, A_, sr(S_UP, 2)))
    g('v_cndmask_b32 v%d, v%d, v%d, %s' % (KB + 7, KB + 7, B_, sr(S_UP, 2)))
    DPP = 16; DPM = 32
    g('v_mfma_f32_32x32x16_bf16 %s, %s, %s, 0' % (vr(DPP, 16), vr(KB, 4), vr(W0, 4)))
    g('v_mfma_f32_32x32x16_bf16 %s, %s, %s, 0' % (vr(DPM, 16), vr(KB, 4), vr(W0N, 4)))
    g('v_mfma_f32_32x32x16_bf16 %s, %s, %s, %s' % (vr(DPP, 16), vr(KB + 4, 4), vr(W1P, 4), vr(DPP, 16)))
    g('v_mfma_f32_32x32x16_bf16 %s, %s, %s, %s' % (vr(DPM, 16), vr(KB + 4, 4), vr(W1N, 4), vr(DPM, 16)))
    for i in range(16):
        g('v_mul_f32 v%d, s%d, v%d' % (DPP + i, S_L2E, DPP + i))
    for i in range(16):
        g('v_exp_f32 v%d, v%d' % (DPP + i, DPP + i))
        g('v_mul_f32 v%d, s%d, v%d' % (DPM + i, S_L2E, DPM + i))
    for i in range(16):
        g('v_exp_f32 v%d, v%d' % (DPM + i, DPM + i))
    PH = 96
    for i in range(8):
        g('v_cvt_pk_bf16_f32 v%d, v%d, v%d' % (PH + i, DPP + 2 * i, DPP + 2 * i + 1))
    for i in range(8):
        g('v_cvt_pk_bf16_f32 v%d, v%d, v%d' % (PH + 8 + i, DPM + 2 * i, DPM + 2 * i + 1))
    KVP_ = 16; KVM = 32
    g('v_mfma_f32_32x32x16_bf16 %s, %s, %s, 0' % (vr(KVP_, 16), vr(PH, 4), vr(VB, 4)))
    g('v_mfma_f32_32x32x16_bf16 %s, %s, %s, 0' % (vr(KVM, 16), vr(PH + 8, 4), vr(VB, 4)))
    g('v_mfma_f32_32x32x16_bf16 %s, %s, %s, %s' % (vr(KVP_, 16), vr(PH + 4, 4), vr(VB + 4, 4), vr(KVP_, 16)))
    g('v_mfma_f32_32x32x16_bf16 %s, %s, %s, %s' % (vr(KVM, 16), vr(PH + 12, 4), vr(VB + 4, 4), vr(KVM, 16)))
    g('s_barrier')
    g('s_lshl_b32 s57, s14, 13')
    g('s_add_u32 s57, s57, %d' % RED)
    g('v_lshlrev_b32 v14, 4, v1')
    g('v_add_u32 v15, s57, v14')
    for gq in range(8):
        g('ds_write_b128 v15, %s offset:%d' % (vr(16 + 4 * gq, 4), 1024 * gq))
    g('s_waitcnt lgkmcnt(0)')
    g('s_barrier')
    g('s_lshl_b32 s57, s14, 11')
    g('s_add_u32 s57, s57, %d' % RED)
    g('v_add_u32 v15, s57, v14')
    for wv in range(4):
        for k in range(2):
            g('ds_read_b128 %s, v15 offset:%d' % (vr(96 + 8 * wv + 4 * k, 4), 8192 * wv + 1024 * k))
    g('s_lshl_b32 s57, s%d, 4' % S_H)
    g('s_add_u32 s57, s57, s%d' % S_TT)
    g('s_lshl_b32 s57, s57, 2')
    g('s_add_u32 s57, s57, s14')
    g('s_lshl_b32 s57, s57, 10')
    g('s_add_u32 s57, s57, %d' % WS_KVP)
    g('v_add_u32 v15, s57, v14')
    g('s_waitcnt lgkmcnt(0)')
    for i in range(8):
        g('v_add_f32 v%d, v%d, v%d' % (96 + i, 96 + i, 104 + i))
        g('v_add_f32 v%d, v%d, v%d' % (112 + i, 112 + i, 120 + i))
    for i in range(8):
        g('v_add_f32 v%d, v%d, v%d' % (96 + i, 96 + i, 112 + i))
    for i in range(4):
        g('v_cvt_pk_bf16_f32 v%d, v%d, v%d' % (104 + i, 96 + 2 * i, 97 + 2 * i))
    g('buffer_store_dwordx4 v[104:107], v15, %s, 0 offen sc0 sc1' % sr(S_WS, 4))
    issue_wq(6)
    get_nonce(g, 92, 94, 57, pre=True, cnt=1)
    g('s_lshl_b32 s57, s%d, 2' % S_H)
    g('s_add_u32 s57, s57, s14')
    g('s_lshl_b32 s57, s57, 4')
    g('s_add_u32 s58, s57, s%d' % S_TT)
    g('s_lshl_b32 s58, s58, 3')
    g('s_add_u32 s58, s58, %d' % WS_FK)
    g('v_mov_b32 v15, s58')
    set_flag(g, 15, 96)
    stamp(g, 2)
    g('s_lshl_b32 s%d, s57, 3' % 88)
    g('s_waitcnt vmcnt(1)')
    g('v_lshlrev_b32 v14, 5, v143')
    g('ds_write_b16 v14, v12 offset:%d' % (WQ + 56))
    g('v_add_u32 v15, %d, v14' % (256 * 64 + WQ + 56))
    g('v_add_u32 v10, %d, v14' % (256 * 64 - 384 * 64 + WQ6 + 56))
    g('v_cmp_gt_u32 vcc, 32, v1')
    g('v_cndmask_b32 v15, v10, v15, vcc')
    g('v_cmp_gt_u32 vcc, 48, v1')
    g('s_and_saveexec_b64 s[58:59], vcc')
    g('ds_write_b16 v15, v13')
    g('s_mov_b64 exec, s[58:59]')
    g('s_waitcnt lgkmcnt(0)')
    g('s_barrier')
    DQ = 16; WF = 88
    g('v_add_u32 v10, %d, v11' % WQ)
    for grp in range(4):
        for tq in range(7):
            t = 7 * grp + tq
            for a in range(2):
                g('ds_read_b64_tr_b16 %s, v%d offset:%d' % (vr(WF + (28 * (grp & 1)) + 4 * tq + 2 * a, 2), 10 if t < 24 else 11, (4096 * (t >> 2) if t < 24 else WQ6) + 512 * (t & 3) + 256 * a))
        if grp > 0:
            pg = grp - 1
            for tq in range(7):
                t = 7 * pg + tq
                if tq == 0: g('s_waitcnt lgkmcnt(14)')
                g('v_mfma_f32_32x32x16_bf16 %s, %s, %s, %s' % (vr(DQ, 16), vr(WF + 28 * (pg & 1) + 4 * tq, 4), vr(XF + 4 * t, 4), '0' if t == 0 else vr(DQ, 16)))
    g('s_waitcnt lgkmcnt(0)')
    for tq in range(7):
        t = 21 + tq
        g('v_mfma_f32_32x32x16_bf16 %s, %s, %s, %s' % (vr(DQ, 16), vr(WF + 28 + 4 * tq, 4), vr(XF + 4 * t, 4), vr(DQ, 16)))
    g('s_barrier')
    QB = 48
    g('v_mov_b32 v14, v%d' % (DQ + 12))
    for i in range(8):
        g('v_cvt_pk_bf16_f32 v%d, v%d, v%d' % (QB + i, DQ + 2 * i, DQ + 2 * i + 1))
    g('v_mfma_f32_32x32x16_bf16 %s, %s, %s, 0' % (vr(DP, 16), vr(W0, 4), vr(QB, 4)))
    g('v_mfma_f32_32x32x16_bf16 %s, %s, %s, %s' % (vr(DP, 16), vr(W1Z, 4), vr(QB + 4, 4), vr(DP, 16)))
    g('v_mul_f32 v14, s%d, v14' % S_L2E)
    g('v_exp_f32 v14, -v14')
    g('v_add_f32 v14, 1.0, v14')
    g('v_rcp_f32 v14, v14')
    Lg = g.newlabel('L_ng')
    g('s_cmp_lg_u32 s%d, 0' % S_H)
    g('s_cbranch_scc1 %s' % Lg)
    g('v_lshlrev_b32 v15, 2, v4')
    g('v_add_u32 v15, %d, v15' % WS_G)
    g('s_mov_b64 exec, %s' % sr(S_UP, 2))
    g('buffer_store_dword v14, v15, %s, 0 offen sc0 sc1' % sr(S_WS, 4))
    g('s_mov_b64 exec, -1')
    g.label(Lg)
    MX, MN, SP, SM, EP, EM = softmax_stats(g, DP, T, False)
    g('v_rcp_f32 v%d, v%d' % (SP, SP)); g('v_rcp_f32 v%d, v%d' % (SM, SM))
    for i in range(16):
        g('v_mul_f32 v%d, v%d, v%d' % (EP + i, EP + i, SP))
        g('v_mul_f32 v%d, v%d, v%d' % (EM + i, EM + i, SM))
    PQ = 48
    for i in range(8):
        g('v_cvt_pk_bf16_f32 v%d, v%d, v%d' % (PQ + i, EP + 2 * i, EP + 2 * i + 1))
        g('v_cvt_pk_bf16_f32 v%d, v%d, v%d' % (PQ + 8 + i, EM + 2 * i, EM + 2 * i + 1))
    SEL = 64
    g('v_lshrrev_b32 v8, 3, v2')
    g('v_bfe_u32 v9, v2, 2, 1')
    g('v_and_b32 v10, 3, v2')
    g('v_lshrrev_b32 v12, 1, v10')
    g('v_lshl_add_u32 v12, v8, 1, v12')
    g('v_and_b32 v13, 1, v10')
    g('v_mov_b32 v14, 0x3f80')
    g('v_mov_b32 v15, 0x3f800000')
    g('v_cmp_eq_u32 vcc, 1, v13')
    g('v_cndmask_b32 v13, v14, v15, vcc')
    g('v_cmp_eq_u32 vcc, v9, v3')
    g('v_cndmask_b32 v13, 0, v13, vcc')
    for i in range(4):
        g('v_cmp_eq_u32 vcc, %d, v12' % i)
        g('v_cndmask_b32 v%d, 0, v13, vcc' % (SEL + i))
    stamp(g, 3)
    g('v_and_b32 v8, 15, v1')
    g('v_lshlrev_b32 v8, 3, v8')
    g('s_add_u32 s57, s88, %d' % WS_FK)
    g('v_add_u32 v8, s57, v8')
    poll_flags(g, 8, None, 96, 57)
    stamp(g, 4)
    stamp(g, 1, 'p3')
    g('s_lshl_b32 s57, s%d, 6' % S_H)
    g('s_add_u32 s57, s57, s14')
    g('s_lshl_b32 s57, s57, 10')
    g('s_add_u32 s57, s57, %d' % WS_KVP)
    g('v_lshlrev_b32 v9, 4, v1')
    g('v_add_u32 v8, s57, v9')
    PL = 144
    PSC = os.environ.get('PSC', 'sc0 sc1')
    for j in range(16):
        g('s_mov_b32 s57, %d' % (j * 4096))
        g('buffer_load_dwordx4 %s, v8, %s, s57 offen %s' % (vr(PL + 4 * j, 4), sr(S_WS, 4), PSC))
    DS_ = 16
    stamp(g, 2, 'p3')
    for j in range(16):
        g('s_waitcnt vmcnt(%d)' % (15 - j))
        g('v_mfma_f32_32x32x16_bf16 %s, %s, %s, %s' % (vr(DS_, 16), vr(SEL, 4), vr(PL + 4 * j, 4), '0' if j == 0 else vr(DS_, 16)))
    for i in range(4):
        g('v_cvt_pk_bf16_f32 v%d, v%d, v%d' % (96 + i, DS_ + 2 * i, DS_ + 2 * i + 1))
    g('s_lshl_b32 s57, s14, 10')
    g('s_add_u32 s57, s57, %d' % KVX)
    g('v_add_u32 v8, s57, v9')
    stamp(g, 3, 'p3')
    g('ds_write_b128 v8, v[96:99]')
    g('s_waitcnt lgkmcnt(0)')
    g('s_barrier')
    stamp(g, 4, 'p3')
    g('v_add_u32 v8, %d, v9' % KVX)
    KF = 100
    for t in range(4):
        g('ds_read_b128 %s, v8 offset:%d' % (vr(KF + 4 * t, 4), 1024 * t))
    DO = 16
    for t in range(4):
        g('s_waitcnt lgkmcnt(%d)' % (3 - t))
        g('v_mfma_f32_32x32x16_bf16 %s, %s, %s, %s' % (vr(DO, 16), vr(KF + 4 * t, 4), vr(PQ + 4 * t, 4), '0' if t == 0 else vr(DO, 16)))
    g('v_mov_b32 v8, v%d' % (DO + 12)); g('v_mov_b32 v9, v%d' % (DO + 12))
    g('v_permlane32_swap_b32 v8, v9')
    g('v_add_f32 v9, 0x%x, v9' % f2u(1e-6))
    g('v_rcp_f32 v9, v9')
    for i in range(16):
        g('v_mul_f32 v%d, v%d, v9' % (DO + i, DO + i))
    for i in range(8):
        g('v_cvt_pk_bf16_f32 v%d, v%d, v%d' % (96 + i, DO + 2 * i, DO + 2 * i + 1))
    g('v_cndmask_b32 v102, v102, 0, %s' % sr(S_UP, 2))
    g('v_cndmask_b32 v103, v103, 0, %s' % sr(S_UP, 2))
    g('s_lshl_b32 s57, s%d, 2' % S_TT)
    g('s_add_u32 s57, s57, s14')
    g('s_lshl_b32 s57, s57, 15')
    g('s_lshl_b32 s58, s%d, 10' % S_H)
    g('s_add_u32 s57, s57, s58')
    g('s_add_u32 s57, s57, %d' % WS_O)
    g('v_lshrrev_b32 v8, 4, v2')
    g('v_lshlrev_b32 v8, 14, v8')
    g('v_lshl_add_u32 v8, v3, 8, v8')
    g('v_and_b32 v10, 15, v2')
    g('v_lshl_add_u32 v8, v10, 4, v8')
    g('v_add_u32 v8, s57, v8')
    g('buffer_store_dwordx4 v[96:99], v8, %s, 0 offen sc0 sc1' % sr(S_WS, 4))
    g('buffer_store_dwordx4 v[100:103], v8, %s, 0 offen offset:512 sc0 sc1' % sr(S_WS, 4))
    stamp(g, 5, 'p3')
    g('s_lshl_b32 s57, s%d, 2' % S_TT)
    g('s_add_u32 s57, s57, s14')
    g('s_lshl_b32 s57, s57, 4')
    g('s_add_u32 s57, s57, s%d' % S_H)
    g('s_lshl_b32 s57, s57, 3')
    g('s_add_u32 s57, s57, %d' % WS_FO)
    g('v_mov_b32 v15, s57')
    g('s_waitcnt vmcnt(0)')
    set_flag(g, 15, 96)
    stamp(g, 5)
    stamp(g, 6, 'p3')
    Lgo = g.newlabel('L_p4')
    g('s_cmp_lt_u32 s%d, 32' % S_TT64)
    g('s_cbranch_scc1 %s' % Lgo)
    for i_ in range(6, 10): stamp(g, i_)
    stamp_flush(g)
    g('s_endpgm')
    g.label(Lgo)
    srd(g, S_P, P_WO, 448 * 896)
    g('v_lshrrev_b32 v6, 2, v1')
    g('v_and_b32 v7, 3, v1')
    g('v_mul_u32_u24 v9, 896, v6')
    g('v_lshl_add_u32 v9, v7, 4, v9')
    g('s_lshl_b32 s53, s%d, 7' % S_CG)
    g('v_add_u32 v9, s53, v9')
    g('s_mul_i32 s55, s14, %d' % (16 * 896))
    for c in range(7):
        for sg in range(2):
            g('s_add_u32 s57, s55, %d' % (c * 64 * 896 + 64 * sg))
            g('s_add_u32 m0, s56, %d' % (28672 * sg + c * 4096))
            g('s_nop 0')
            g('buffer_load_dwordx4 v9, %s, s57 offen lds' % sr(S_P, 4))
    g('v_and_b32 v2, 15, v1')
    g('v_lshrrev_b32 v3, 4, v1')
    g('s_lshl_b32 s57, s%d, 6' % S_TT64)
    g('s_lshr_b32 s58, s14, 1')
    g('s_lshl_b32 s58, s58, 5')
    g('s_add_u32 s57, s57, s58')
    g('s_and_b32 s58, s14, 1')
    g('s_lshl_b32 s58, s58, 2')
    g('s_add_u32 s57, s57, s58')
    g('v_and_b32 v4, 3, v2')
    g('v_lshlrev_b32 v4, 3, v4')
    g('v_lshrrev_b32 v8, 2, v2')
    g('v_add3_u32 v4, v4, v8, s57')
    srd(g, S_P, P_X, 2048 * 896)
    srd(g, S_W, P_DSK, 896)
    g('s_lshl_b32 s58, s%d, 7' % S_CG)
    g('v_lshlrev_b32 v5, 3, v3')
    g('v_add_u32 v5, s58, v5')
    g('v_mul_u32_u24 v6, 896, v4')
    g('v_add_u32 v6, v6, v5')
    XE = 96; DE = 104
    for m in range(4):
        mo = 32 * m
        g('buffer_load_dwordx2 %s, v6, %s, 0 offen offset:%d' % (vr(XE + 2 * m, 2), sr(S_P, 4), mo))
        g('buffer_load_dwordx2 %s, v5, %s, 0 offen offset:%d' % (vr(DE + 2 * m, 2), sr(S_W, 4), mo))
    g('v_bfe_u32 v7, v1, 2, 2')
    g('v_lshrrev_b32 v8, 1, v3')
    g('v_lshl_add_u32 v7, v8, 4, v7')
    g('v_and_b32 v8, 1, v3')
    g('v_lshl_add_u32 v7, v8, 2, v7')
    g('v_lshlrev_b32 v7, 6, v7')
    g('v_and_b32 v8, 3, v1')
    g('v_lshl_add_u32 v7, v8, 3, v7')
    g('s_lshr_b32 s57, s%d, 1' % S_TT64)
    g('s_lshl_b32 s57, s57, 2')
    g('s_and_b32 s58, s%d, 1' % S_TT64)
    g('s_lshl_b32 s58, s58, 1')
    g('s_add_u32 s57, s57, s58')
    g('s_lshr_b32 s58, s14, 1')
    g('s_add_u32 s57, s57, s58')
    g('s_lshl_b32 s57, s57, 7')
    g('s_add_u32 s57, s57, %d' % WS_FO)
    g('v_lshlrev_b32 v8, 3, v2')
    g('v_add_u32 v8, s57, v8')
    g('s_lshl_b32 s57, s%d, 2' % S_CG)
    g('s_lshr_b32 s58, s%d, 3' % S_TT64)
    g('s_add_u32 s57, s57, s58')
    g('s_lshl_b32 s57, s57, 8')
    g('s_add_u32 s57, s57, %d' % WS_FY)
    g('v_and_b32 v10, 31, v1')
    g('v_lshlrev_b32 v10, 3, v10')
    g('v_add_u32 v10, s57, v10')
    if os.environ.get('COMB', '0') == '1': g('v_cndmask_b32 v8, v8, v10, %s' % sr(S_UP, 2))
    Lp = g.newlabel('L_pfo'); Lpd = g.newlabel('L_pfod')
    g('s_mov_b32 s57, 0')
    g.label(Lp)
    g('buffer_load_dwordx2 v[112:113], v8, %s, 0 offen sc0 sc1' % sr(S_WS, 4))
    g('s_waitcnt vmcnt(0)')
    g('v_cmp_eq_u64 vcc, %s, v[112:113]' % sr(S_NONCE, 2))
    g('s_cmp_eq_u32 vcc_lo, -1')
    g('s_cbranch_scc1 %s' % Lpd)
    g('s_add_u32 s57, s57, 1')
    g('s_cmp_ge_u32 s57, 200000')
    g('s_cbranch_scc1 %s' % Lpd)
    g('s_sleep 1')
    g('s_branch %s' % Lp)
    g.label(Lpd)
    if os.environ.get('COMB', '0') == '1': g('s_mov_b32 s89, vcc_hi')
    else: g('s_mov_b32 s89, 0')
    g('s_lshl_b32 s57, s%d, 18' % S_CG)
    g('s_add_u32 s57, s57, %d' % WS_Y2)
    g('v_lshlrev_b32 v12, 14, v3')
    g('v_lshl_add_u32 v12, v4, 2, v12')
    g('v_add_u32 v12, s57, v12')
    YE = 112
    def yloads():
        for m in range(4):
            for k in range(2):
                pr = 8 * m + k
                g('s_mov_b32 s57, %d' % (pr * 8192))
                g('buffer_load_dword v%d, v12, %s, s57 offen sc0 sc1' % (YE + 2 * m + k, sr(S_WS, 4)))
    Ly = g.newlabel('L_ny')
    g('s_cmp_lg_u32 s89, -1')
    g('s_cbranch_scc1 %s' % Ly)
    yloads()
    g.label(Ly)
    stamp(g, 7, 'p3')
    stamp(g, 6)
    g('s_lshl_b32 s57, s%d, 2' % S_TT64)
    g('s_add_u32 s57, s57, s14')
    g('s_lshl_b32 s57, s57, 14')
    g('s_add_u32 s57, s57, %d' % WS_O)
    g('v_lshlrev_b32 v8, 4, v1')
    g('v_add_u32 v8, s57, v8')
    OF = 144
    for t in range(16):
        g('s_movk_i32 s57, %d' % (1024 * t))
        g('buffer_load_dwordx4 %s, v8, %s, s57 offen sc0 sc1' % (vr(OF + 4 * t, 4), sr(S_WS, 4)))
    g('v_lshlrev_b32 v9, 2, v4')
    g('v_add_u32 v9, %d, v9' % WS_G)
    g('buffer_load_dword v14, v9, %s, 0 offen sc0 sc1' % sr(S_WS, 4))
    g('buffer_load_dwordx2 v[120:121], v10, %s, 0 offen sc0 sc1' % sr(S_WS, 4))
    g('s_barrier')
    stamp(g, 8, 'p3')
    DA = 16
    WFR = 32
    def wreads(t):
        for m in range(4):
            for a in range(2):
                g('ds_read_b64_tr_b16 %s, v7 offset:%d' % (vr(WFR + 16 * (t & 1) + 4 * m + 2 * a, 2), 28672 * (m >> 1) + (28 * t + 8 * a) * 64 + 32 * (m & 1)))
    wreads(0)
    for t in range(16):
        if t < 15:
            wreads(t + 1)
            g('s_waitcnt lgkmcnt(8)')
        else:
            g('s_waitcnt lgkmcnt(0)')
        YT = int(os.environ.get('YT', '12'))
        if t < YT:
            g('s_waitcnt vmcnt(%d)' % (17 - t))
        elif t == YT:
            g('s_waitcnt vmcnt(0)')
            Lyc = g.newlabel('L_yc')
            g('v_cmp_eq_u64 vcc, %s, v[120:121]' % sr(S_NONCE, 2))
            g('s_cmp_lg_u64 vcc, exec')
            g('s_cbranch_scc1 %s' % Lyc)
            g('s_mov_b32 s89, -1')
            yloads()
            g.label(Lyc)
        for m in range(4):
            g('v_mfma_f32_16x16x32_bf16 %s, %s, %s, %s' % (vr(DA + 4 * m, 4), vr(WFR + 16 * (t & 1) + 4 * m, 4), vr(OF + 4 * t, 4), '0' if t == 0 else vr(DA + 4 * m, 4)))
    stamp(g, 7)
    stamp(g, 9, 'p3')
    Ly2 = g.newlabel('L_ny2')
    g('s_cmp_eq_u32 s89, -1')
    g('s_cbranch_scc1 %s' % Ly2)
    poll_flags(g, 10, None, 120, 57)
    yloads()
    g.label(Ly2)
    stamp(g, 8)
    srd(g, S_P, P_OUT, 2048 * 896)
    g('v_sub_f32 v15, 1.0, v14') if False else None
    g('s_waitcnt vmcnt(0)')
    g('v_sub_f32 v15, 1.0, v14')
    for m in range(4):
        U = 64 + 16 * 0
        for k in range(2):
            g('v_lshlrev_b32 v%d, 16, v%d' % (U + 2 * k, XE + 2 * m + k))
            g('v_and_b32 v%d, 0xffff0000, v%d' % (U + 2 * k + 1, XE + 2 * m + k))
            g('v_lshlrev_b32 v%d, 16, v%d' % (U + 4 + 2 * k, DE + 2 * m + k))
            g('v_and_b32 v%d, 0xffff0000, v%d' % (U + 4 + 2 * k + 1, DE + 2 * m + k))
            g('v_lshlrev_b32 v%d, 16, v%d' % (U + 8 + 2 * k, YE + 2 * m + k))
            g('v_and_b32 v%d, 0xffff0000, v%d' % (U + 8 + 2 * k + 1, YE + 2 * m + k))
        for i in range(4):
            g('v_fma_f32 v%d, v%d, v%d, v%d' % (U + 8 + i, U + i, U + 4 + i, U + 8 + i))
            g('v_mul_f32 v%d, v15, v%d' % (U + 8 + i, U + 8 + i))
            g('v_fma_f32 v%d, v14, v%d, v%d' % (U + 8 + i, DA + 4 * m + i, U + 8 + i))
        g('v_cvt_pk_bf16_f32 v%d, v%d, v%d' % (80 + 2 * m, U + 8, U + 9))
        g('v_cvt_pk_bf16_f32 v%d, v%d, v%d' % (80 + 2 * m + 1, U + 10, U + 11))
        mo = 32 * m
        g('buffer_store_dwordx2 %s, v%d, %s, 0 offen offset:%d' % (vr(80 + 2 * m, 2), 6, sr(S_P, 4), mo))
    stamp(g, 9)
    if STSET[0] == 'hw':
        stamp(g, 9, 'hw')
        g('s_memtime s[90:91]')
        g('s_waitcnt lgkmcnt(0)')
        g('s_mov_b32 s96, s90')
    stamp_flush(g)
    g('s_endpgm')
```

```python
from common import *
import os
import struct
def f2u(x): return struct.unpack('<I', struct.pack('<f', x))[0]
LOG2E = 1.4426950408889634
L_HI = struct.unpack('<f', struct.pack('<f', LOG2E))[0]
L_LO = LOG2E - L_HI
STG = 8448
ROWS = 528
XC = 33792
CS = 5056
RB = 2688
S_LDS = XC + 8 * CS

def gen_S(g, dbg=False):
    g.label('L_S')
    g.c('---- S type: v0 tid, v1 lane, s14 wave')
    g('s_setprio %s' % os.environ.get('SPRIO', '3'))
    g('s_mul_hi_u32 s50, s2, 0x24924925')
    g('s_mul_i32 s51, s50, 7')
    g('s_sub_u32 s51, s2, s51')
    g('s_mul_i32 s52, s50, 57344')
    g('s_lshl_b32 s53, s51, 7')
    g('s_add_u32 s52, s52, s53')
    g('s_add_u32 s54, s%d, s52' % P_X)
    g('s_addc_u32 s55, s%d, 0' % (P_X + 1))
    g('v_lshrrev_b32 v2, 2, v0')
    g('v_and_b32 v3, 3, v0')
    g('v_mul_u32_u24 v4, 896, v2')
    g('v_lshl_add_u32 v4, v3, 5, v4')
    g('global_load_dwordx4 v[16:19], v4, s[54:55]')
    g('global_load_dwordx4 v[20:23], v4, s[54:55] offset:16')
    g('s_lshl_b32 s57, s2, 10')
    g('v_lshlrev_b32 v5, 2, v0')
    g('v_add_u32 v5, s57, v5')
    for i, p in enumerate((P_ARE, P_AIM, P_BRE, P_BIM, P_CRE, P_CIM)):
        g('global_load_dword v%d, v5, %s' % (32 + i, sr(p, 2)))
    g('s_lshl_b32 s57, s2, 2')
    g('s_load_dword s56, %s, s57' % sr(P_LDT, 2))
    g('v_mov_b32 v254, 0')
    g('global_load_dwordx2 v[252:253], v254, %s sc0 sc1' % sr(P_DBG, 2))
    if os.environ.get('CPF', '1') == '1':
        g('v_min_u32 v255, 5, v1')
        g('v_lshlrev_b32 v255, 21, v255')
        g('v_add_u32 v255, 0x1f0000, v255')
        g('buffer_load_dword v230, v255, %s, 0 offen' % sr(S_WS, 4))
    if os.environ.get('L2PF', '1') == '1':
        g('s_and_b32 s58, s2, 7')
        g('s_lshr_b32 s59, s2, 3')
        g('s_lshl_b32 s59, s59, 2')
        g('s_add_u32 s59, s59, s14')
        g('s_and_b32 s60, s58, 3')
        g('s_mul_i32 s60, s60, 458752')
        g('s_lshl_b32 s61, s59, 12')
        g('s_add_u32 s60, s60, s61')
        g('v_lshlrev_b32 v226, 4, v1')
        g('v_add_u32 v226, s60, v226')
        for i in range(4):
            g('global_load_dwordx4 v[228:231], v226, %s offset:%d' % (sr(P_X, 2), 1024 * i))
        g('s_lshr_b32 s60, s58, 2')
        g('s_mul_i32 s60, s60, 448')
        g('s_mul_i32 s61, s59, %d' % (4 * 2688))
        g('s_add_u32 s60, s60, s61')
        g('s_add_u32 s60, s60, 896')
        g('v_lshrrev_b32 v226, 5, v1')
        g('v_mul_u32_u24 v226, 896, v226')
        g('v_and_b32 v227, 31, v1')
        g('v_min_u32 v227, 27, v227')
        g('v_lshl_add_u32 v226, v227, 4, v226')
        g('v_add_u32 v226, s60, v226')
        for i in range(4):
            g('v_add_u32 v227, %d, v226' % (2688 * i))
            g('global_load_dwordx4 v[228:231], v227, %s' % sr(P_WQKV, 2))
    g('v_mul_u32_u24 v6, 144, v2')
    g('v_lshl_add_u32 v6, v3, 5, v6')
    g('v_add_u32 v6, %d, v6' % XC)
    g('v_lshrrev_b32 v2, 4, v1')
    g('v_and_b32 v3, 15, v1')
    g('v_lshrrev_b32 v7, 2, v3')
    g('v_lshl_add_u32 v7, v2, 3, v7')
    g('v_mul_u32_u24 v7, 144, v7')
    g('v_and_b32 v8, 3, v1')
    g('v_lshl_add_u32 v7, v8, 3, v7')
    g('s_lshl_b32 s58, s14, 5')
    g('s_add_u32 s58, s58, %d' % XC)
    g('v_add_u32 v7, s58, v7')
    g('s_lshl_b32 s58, s51, 6')
    g('s_lshl_b32 s59, s14, 4')
    g('s_add_u32 s58, s58, s59')
    g('v_add_u32 v8, s58, v3')
    g('s_movk_i32 s59, %d' % XT_ROW)
    g('v_mul_lo_u32 v8, v8, s59')
    g('s_lshl_b32 s58, s50, 7')
    g('s_add_u32 s58, s58, %d' % (WS_XT + 16))
    g('v_lshl_add_u32 v9, v2, 4, v8')
    g('v_add_u32 v9, s58, v9')
    EA = 244
    g('v_lshlrev_b32 v10, 3, v0')
    for i in range(8):
        g('v_add_u32 v%d, %d, v10' % (110 + i, 7 - i))
    for i in range(8):
        g('v_cvt_f32_u32 v%d, v%d' % (EA + i, 110 + i))
    for i in range(0, 8, 2):
        g('v_cvt_pk_bf16_f32 v%d, v%d, v%d' % (120 + i // 2, EA + i, EA + i + 1))
    g('v_cmp_gt_u32 vcc, 32, v0')
    for i in range(8):
        src = 120 + i // 2
        if i % 2 == 0:
            g('v_and_b32 v%d, 0xffff, v%d' % (EA + i, src))
        else:
            g('v_lshrrev_b32 v%d, 16, v%d' % (EA + i, src))
        g('v_subrev_u32 v%d, 17024, v%d' % (EA + i, EA + i))
        g('v_cndmask_b32 v%d, v%d, v%d, vcc' % (EA + i, EA + i, 110 + i))
        g('v_lshlrev_b32 v%d, 2, v%d' % (EA + i, EA + i))
    g('s_waitcnt vmcnt(%d)' % ((8 if os.environ.get('CPF', '1') == '1' else 7) + (8 if os.environ.get('L2PF', '1') == '1' else 0)))
    g('ds_write_b128 v6, v[16:19]')
    g('ds_write_b128 v6, v[20:23] offset:16')
    g('s_waitcnt lgkmcnt(0)')
    g('s_barrier')
    for m in range(2):
        for a in range(2):
            g('ds_read_b64_tr_b16 %s, v7 offset:%d' % (vr(24 + 4 * m + 2 * a, 2), (32 * m + 4 * a) * 144))
    g('s_waitcnt vmcnt(%d) lgkmcnt(0)' % ((2 if os.environ.get('CPF', '1') == '1' else 1) + (8 if os.environ.get('L2PF', '1') == '1' else 0)))
    g('buffer_store_dwordx4 v[24:27], v9, %s, 0 offen sc0 sc1' % sr(S_WS, 4))
    g('buffer_store_dwordx4 v[28:31], v9, %s, 0 offen offset:64 sc0 sc1' % sr(S_WS, 4))
    Lz = g.newlabel('L_nz')
    g('s_cmp_lg_u32 s50, 0')
    g('s_cbranch_scc1 %s' % Lz)
    for i in range(4):
        g('v_mov_b32 v%d, 0' % (12 + i))
    g('s_mov_b64 exec, 0xffff')
    g('buffer_store_dwordx4 v[12:15], v8, %s, 0 offen sc0 sc1' % sr(S_WS, 4))
    g('s_mov_b64 exec, -1')
    g.label(Lz)
    stamp(g, 1)
    if os.environ.get('SCUT') == '1':
        g('s_endpgm'); return
    def renonce():
        Lr = g.newlabel('L_rn')
        g('s_or_b32 s58, s2, s14')
        g('s_cmp_lg_u32 s58, 0')
        g('s_cbranch_scc1 %s' % Lr)
        g('v_mov_b32 v252, s%d' % S_NONCE)
        g('v_mov_b32 v253, s%d' % (S_NONCE + 1))
        g('global_store_dwordx2 v254, v[252:253], %s sc0 sc1' % sr(P_DBG, 2))
        g.label(Lr)
    def xt_flag():
        if os.environ.get('SCUT') == '3': return
        get_nonce(g, 252, 254, 58, pre=True)
        g('s_lshl_b32 s58, s51, 2')
        g('s_add_u32 s58, s58, s14')
        g('s_lshl_b32 s58, s58, 5')
        g('s_add_u32 s58, s58, s50')
        g('s_lshl_b32 s58, s58, 3')
        g('s_add_u32 s58, s58, %d' % WS_FX)
        g('v_mov_b32 v11, s58')
        set_flag(g, 11, 252)
        g('s_setprio %s' % os.environ.get('SP2', '0'))
        stamp(g, 2)
    g.c('K-gen')
    g('s_waitcnt lgkmcnt(0)')
    g('s_lshl_b32 s58, s56, 16')
    g('s_and_b32 s59, s56, 0xffff0000')
    g('s_cmp_ge_u32 s14, 2')
    g('s_cselect_b32 s58, s59, s58')
    DT = 38
    g('v_mov_b32 v40, s58')
    g('v_mul_f32 v41, 0x%x, v40' % f2u(L_HI))
    g('s_mov_b32 s59, 0x%x' % f2u(L_HI))
    g('v_fma_f32 v42, v40, s59, -v41')
    g('v_mul_f32 v43, 0x%x, v40' % f2u(L_LO))
    g('v_add_f32 v42, v42, v43')
    g('v_exp_f32 v41, v41')
    g('v_mul_f32 v42, 0x%x, v42' % f2u(0.6931471805599453))
    g('v_fma_f32 v41, v41, v42, v41')
    g('v_cvt_pk_bf16_f32 v41, v41, v41')
    g('v_lshlrev_b32 v%d, 16, v41' % DT)
    base = {0: 40, 1: 70}
    R = {}
    for m in (0, 1):
        b = base[m]
        R[m] = dict(ar=b, ai=b + 1, B=b + 2, C=b + 4, c=b + 6, t0=b + 8, t1=b + 9, t2=b + 10, t3=b + 11,
                    E1=b + 12, E2=b + 14, E3=b + 16, E4=b + 18, E5=b + 20, E6=b + 22, E7=b + 24, E8=b + 26, L0=b + 28)
    pb = {0: 100, 1: 118}
    for m in (0, 1):
        b = pb[m]
        for i, k in enumerate((128, 256, 384, 512, 640, 768, 896, 1024, 2048)):
            R[m]['E%d' % k] = b + 2 * i
    tmp = {0: [136, 138, 140, 142], 1: [144, 146, 148, 150]}
    pk = [152, 154, 156, 158]; pkc = [0]
    BL = 160; AF = 192; D = [232, 236, 240]
    def unpack(dst, src, m):
        if m == 0: g('v_lshlrev_b32 v%d, 16, v%d' % (dst, src))
        else: g('v_and_b32 v%d, 0xffff0000, v%d' % (dst, src))
    for m in (0, 1):
        r = R[m]
        unpack(r['ar'], 32, m); unpack(r['ai'], 33, m)
        unpack(r['B'], 34, m); unpack(r['B'] + 1, 35, m)
        unpack(r['C'], 36, m); unpack(r['C'] + 1, 37, m)
    for m in (0, 1):
        r = R[m]
        g('v_mul_f32 v%d, v%d, v%d' % (r['ar'], r['ar'], DT))
        g('v_mul_f32 v%d, v%d, v%d' % (r['ai'], r['ai'], DT))
        g('v_mul_f32 v%d, v%d, v%d' % (r['B'], r['B'], DT))
        g('v_mul_f32 v%d, v%d, v%d' % (r['B'] + 1, r['B'] + 1, DT))
    for m in (0, 1):
        r = R[m]
        g('v_mul_f32 v%d, 0x%x, v%d' % (r['ar'], f2u(L_HI), r['ar']))
        g('v_mul_f32 v%d, 0x%x, v%d' % (r['ai'], f2u(0.15915494309189535), r['ai']))
        cmul(g, r['c'], r['C'], r['B'])
    for m in (0, 1):
        cmul2(g, R[m]['c'], R[m]['C'], R[m]['B'])
    def direct(name, k):
        for m in (0, 1):
            r = R[m]
            g('v_mul_f32 v%d, 0x%x, v%d' % (r['t0'], f2u(float(k)), r['ar']))
            g('v_mul_f32 v%d, 0x%x, v%d' % (r['t1'], f2u(float(k)), r['ai']))
        for m in (0, 1):
            r = R[m]
            g('v_exp_f32 v%d, v%d' % (r['t0'], r['t0']))
            g('v_fract_f32 v%d, v%d' % (r['t1'], r['t1']))
        for m in (0, 1):
            r = R[m]
            g('v_cos_f32 v%d, v%d' % (r['t2'], r['t1']))
            g('v_sin_f32 v%d, v%d' % (r['t3'], r['t1']))
        for m in (0, 1):
            r = R[m]
            g('v_pk_mul_f32 %s, %s, %s op_sel_hi:[1,0]' % (vr(r[name], 2), vr(r['t2'], 2), vr(r['t0'], 2)))
    direct('E8', 8); direct('E1', 1); direct('E128', 128)
    g('s_mul_i32 s62, s14, %d' % STG)
    g('v_lshlrev_b32 v12, 3, v1')
    g('v_add_u32 v12, s62, v12')
    g('v_mul_u32_u24 v13, %d, v3' % ROWS)
    g('v_and_b32 v14, 1, v2')
    g('v_lshl_add_u32 v13, v14, 8, v13')
    g('v_lshrrev_b32 v14, 1, v2')
    g('v_lshl_add_u32 v13, v14, 7, v13')
    g('v_add_u32 v13, s62, v13')
    def row(idx, regs, conj):
        t = pk[pkc[0] % 4]; pkc[0] += 1
        for m in (0, 1):
            rr = regs[m]
            if rr == 'one':
                g('v_mov_b32 v%d, 0x3f80' % (t + m))
            else:
                g('v_cvt_pk_bf16_f32 v%d, v%d, %sv%d' % (t + m, rr, '-' if conj else '', rr + 1))
        g('ds_write_b64 v12, %s offset:%d' % (vr(t, 2), idx * ROWS))
    tc = [0]
    def prow(idx, an, bn, conj=True):
        k = tc[0] % 4; tc[0] += 1
        for m in (0, 1): cmul(g, tmp[m][k], R[m][an], R[m][bn])
        for m in (0, 1): cmul2(g, tmp[m][k], R[m][an], R[m][bn])
        row(idx, {0: tmp[0][k], 1: tmp[1][k]}, conj)
    def nrow(idx, an, conj=True):
        row(idx, {0: R[0][an], 1: R[1][an]}, conj)
    nrow(0, 'c', False)
    cur = {0: R[0]['c'], 1: R[1]['c']}
    lt = {0: [R[0]['L0'], R[0]['B']], 1: [R[1]['L0'], R[1]['B']]}
    extra = [('E2', 'E1', 'E1'), ('E256', 'E128', 'E128'), ('E3', 'E2', 'E1'), ('E4', 'E2', 'E2'), ('E384', 'E256', 'E128'), ('E512', 'E256', 'E256'),
             ('E5', 'E4', 'E1'), ('E6', 'E4', 'E2'), ('E7', 'E4', 'E3'), ('E640', 'E512', 'E128'), ('E768', 'E512', 'E256'), ('E896', 'E512', 'E384'),
             ('E1024', 'E512', 'E512'), ('E2048', 'E1024', 'E1024')]
    for w in range(1, 16):
        nx = {m: lt[m][w % 2] for m in (0, 1)}
        for m in (0, 1): cmul(g, nx[m], cur[m], R[m]['E8'])
        if w - 1 < len(extra):
            dn, an, bn = extra[w - 1]
            for m in (0, 1): cmul(g, R[m][dn], R[m][an], R[m][bn])
        for m in (0, 1): cmul2(g, nx[m], cur[m], R[m]['E8'])
        if w - 1 < len(extra):
            for m in (0, 1): cmul2(g, R[m][dn], R[m][an], R[m][bn])
        row(w, nx, False)
        cur = nx
    def reads(dst):
        for t in range(8):
            g('ds_read_b128 %s, v13 offset:%d' % (vr(dst + 4 * t, 4), 16 * t))
    def mfmas(ti, waitn):
        g('s_waitcnt lgkmcnt(%d)' % waitn)
        for t in range(8):
            g('v_mfma_f32_16x16x32_bf16 %s, %s, %s, %s' % (vr(D[ti], 4), vr(AF + 4 * t, 4), vr(BL + 4 * t, 4), '0' if t == 0 else vr(D[ti], 4)))
    reads(BL)
    xt_flag()
    t0rows = [lambda: row(0, {0: 'one', 1: 'one'}, True)] + [(lambda r_=r_: nrow(r_, 'E%d' % r_)) for r_ in range(1, 8)] + \
             [lambda: nrow(8, 'E128')] + [(lambda r_=r_: prow(8 + r_, 'E128', 'E%d' % r_)) for r_ in range(1, 8)]
    t1rows = [lambda: nrow(0, 'E256')] + [(lambda i=i: prow(i, 'E256', 'E%d' % (2 * i))) for i in range(1, 4)] + \
             [lambda: nrow(4, 'E384')] + [(lambda i=i: prow(4 + i, 'E384', 'E%d' % (2 * i))) for i in range(1, 4)]
    for i, k in enumerate((512, 640, 768, 896)):
        t1rows.append(lambda i=i, k=k: nrow(8 + 2 * i, 'E%d' % k))
        t1rows.append(lambda i=i, k=k: prow(9 + 2 * i, 'E%d' % k, 'E4'))
    t2rows = [lambda: nrow(0, 'E1024')] + [(lambda i=i: prow(i, 'E1024', 'E%d' % (128 * i))) for i in range(1, 8)] + [lambda: nrow(8, 'E2048')]
    for f in t0rows: f()
    reads(AF)
    for f in t1rows[:12]: f()
    mfmas(0, 12)
    for f in t1rows[12:]: f()
    reads(AF)
    for f in t2rows: f()
    mfmas(1, 9)
    reads(AF)
    stamp(g, 3)
    if os.environ.get('SCUT') == '3':
        g('s_endpgm'); return
    g.c('poll XT')
    g('s_lshr_b32 s58, s2, 5')
    g('s_bfe_u32 s59, s2, 0x20003')
    g('s_lshl_b32 s58, s58, 2')
    g('s_add_u32 s58, s58, s59')
    g('s_lshl_b32 s58, s58, 8')
    g('s_add_u32 s58, s58, %d' % WS_FX)
    g('v_and_b32 v8, 31, v1')
    g('v_lshlrev_b32 v8, 3, v8')
    g('v_add_u32 v8, s58, v8')
    poll_flags(g, 8, None, 16, 58)
    stamp(g, 4)
    g('s_mul_i32 s58, s2, %d' % (2 * XT_ROW))
    g('s_add_u32 s58, s58, %d' % (WS_XT + 8))
    g('v_lshlrev_b32 v8, 4, v0')
    g('v_add_u32 v8, s58, v8')
    XR = 40
    for c2 in range(2):
        for k, off in enumerate((8, 4, 0)):
            g('buffer_load_dwordx4 %s, v8, %s, 0 offen offset:%d sc0 sc1' % (vr(XR + 12 * c2 + 4 * k, 4), sr(S_WS, 4), off + c2 * XT_ROW if False else off) if c2 == 0 else
              'buffer_load_dwordx4 %s, v9, %s, 0 offen offset:%d sc0 sc1' % (vr(XR + 12 * c2 + 4 * k, 4), sr(S_WS, 4), off))
        if c2 == 0:
            g('v_add_u32 v9, %d, v8' % XT_ROW)
    g('v_lshrrev_b32 v14, 1, v2')
    g('v_and_b32 v15, 1, v2')
    g('v_lshlrev_b32 v4, 9, v14')
    g('v_lshl_add_u32 v4, v3, 5, v4')
    g('v_lshl_add_u32 v4, v15, 4, v4')
    g('v_add_u32 v4, s62, v4')
    g('v_lshlrev_b32 v5, 8, v2')
    g('v_add_u32 v5, 1024, v5')
    g('v_add_u32 v5, s62, v5')
    g('v_lshl_add_u32 v6, v3, 4, v5')
    g('v_lshl_add_u32 v7, v3, 3, v5')
    g('v_cmp_gt_u32 vcc, 2, v2')
    g('v_cndmask_b32 v5, v7, v6, vcc')
    g('v_add_u32 v6, 8, v5')
    g('v_add_u32 v7, 128, v5')
    g('v_cndmask_b32 v6, v7, v6, vcc')
    g('v_lshlrev_b32 v7, 8, v2')
    g('v_lshl_add_u32 v7, v3, 2, v7')
    g('v_add_u32 v7, 2048, v7')
    g('v_add_u32 v7, s62, v7')
    mfmas(2, 0)
    g('ds_write_b128 v4, %s' % vr(D[0], 4))
    g('ds_write_b64 v5, %s' % vr(D[1], 2))
    g('ds_write_b64 v6, %s' % vr(D[1] + 2, 2))
    for r_ in range(4):
        g('ds_write_b32 v7, v%d offset:%d' % (D[2] + r_, 64 * r_))
    g('s_waitcnt lgkmcnt(0)')
    g('s_barrier')
    g.c('expansion')
    KR = 64
    for ch in range(2):
        for hf in range(2):
            for i in range(8):
                g('ds_read_b32 v%d, v%d offset:%d' % (KR + 16 * ch + 8 * hf + i, EA + i, (2 * ch + hf) * STG))
    g('v_lshlrev_b32 v10, 4, v0')
    g('v_sub_u32 v10, %d, v10' % (RB + 4080))
    for i in range(4):
        g('v_mov_b32 v%d, 0' % (96 + i))
    g('s_mov_b32 s58, 0x%x' % ((1 << 32) // 18 + 1))
    g('v_mul_hi_u32 v11, v0, s58')
    g('v_mul_u32_u24 v12, 18, v11')
    g('v_sub_u32 v12, v0, v12')
    g('v_mul_u32_u24 v11, %d, v11' % CS)
    g('v_lshl_add_u32 v11, v12, 4, v11')
    g('v_lshrrev_b32 v12, 4, v12')
    g('v_lshl_add_u32 v11, v12, 5, v11')
    g('v_add_u32 v11, %d, v11' % XC)
    g('v_subrev_u32 v12, 144, v0')
    g('v_and_b32 v13, 15, v12')
    g('v_lshrrev_b32 v12, 4, v12')
    g('v_mul_u32_u24 v12, %d, v12' % (2 * STG))
    g('v_lshl_add_u32 v12, v13, 4, v12')
    g('v_add_u32 v12, %d, v12' % (RB + 4096))
    g('v_cmp_gt_u32 vcc, 144, v0')
    g('v_cndmask_b32 v11, v12, v11, vcc')
    g('v_cmp_gt_u32 vcc, 176, v0')
    g('s_and_saveexec_b64 s[58:59], vcc')
    Lq = g.newlabel('L_zq')
    g('s_cbranch_execz %s' % Lq)
    g('ds_write_b128 v11, v[96:99]')
    g.label(Lq)
    g('s_mov_b64 exec, s[58:59]')
    g('v_lshlrev_b32 v11, 3, v0')
    g('v_add_u32 v11, 144, v11')
    g('v_lshrrev_b32 v12, 7, v11')
    g('v_lshlrev_b32 v11, 1, v11')
    g('v_lshl_add_u32 v11, v12, 5, v11')
    g('v_add_u32 v11, %d, v11' % XC)
    g('s_waitcnt lgkmcnt(0)')
    for ch in range(2):
        for i in range(8):
            g('v_add_f32 v%d, v%d, v%d' % (KR + 16 * ch + i, KR + 16 * ch + i, KR + 16 * ch + 8 + i))
        for i in range(0, 8, 2):
            g('v_cvt_pk_bf16_f32 v%d, v%d, v%d' % (100 + 4 * ch + i // 2, KR + 16 * ch + i, KR + 16 * ch + i + 1))
        g('ds_write_b128 v10, %s offset:%d' % (vr(100 + 4 * ch, 4), ch * 2 * STG))
    g('s_waitcnt vmcnt(0)')
    for ch in range(2):
        A = XR + 12 * ch; B = A + 4; C = A + 8
        c1 = 108 + 8 * ch; c3 = c1 + 4
        for k in range(4):
            g('v_alignbit_b32 v%d, v%d, v%d, 16' % (c1 + k, A + k, B + k))
            g('v_alignbit_b32 v%d, v%d, v%d, 16' % (c3 + k, B + k, C + k))
        g('ds_write_b128 v11, %s offset:%d' % (vr(A, 4), (4 * ch + 0) * CS))
        g('ds_write_b128 v11, %s offset:%d' % (vr(c1, 4), (4 * ch + 1) * CS))
        g('ds_write_b128 v11, %s offset:%d' % (vr(B, 4), (4 * ch + 2) * CS))
        g('ds_write_b128 v11, %s offset:%d' % (vr(c3, 4), (4 * ch + 3) * CS))
    g.c('conv')
    g('s_lshr_b32 s58, s14, 1')
    g('s_and_b32 s59, s14, 1')
    g('s_mul_i32 s60, s58, %d' % (2 * STG))
    g('s_lshl_b32 s61, s59, 8')
    g('s_sub_u32 s60, s60, s61')
    g('s_add_u32 s60, s60, %d' % (RB + 4272 - 3584))
    g('v_sub_u32 v4, v2, v3')
    g('v_lshlrev_b32 v4, 4, v4')
    g('v_add_u32 v4, s60, v4')
    g('v_lshrrev_b32 v5, 3, v3')
    g('v_lshlrev_b32 v5, 7, v5')
    g('v_lshl_add_u32 v5, v2, 3, v5')
    g('v_and_b32 v6, 4, v3')
    g('v_add_u32 v5, v5, v6')
    g('s_lshl_b32 s61, s59, 7')
    g('s_sub_u32 s61, 236, s61')
    g('v_add_u32 v5, s61, v5')
    g('v_and_b32 v6, 3, v3')
    g('v_sub_u32 v6, 3, v6')
    g('v_mul_u32_u24 v6, %d, v6' % CS)
    g('s_mul_i32 s61, s58, %d' % (4 * CS))
    g('s_add_u32 s61, s61, %d' % XC)
    g('v_add_u32 v6, s61, v6')
    g('s_waitcnt lgkmcnt(0)')
    g('s_barrier')
    stamp(g, 5)
    g('s_setprio %s' % os.environ.get('SPC', '0'))
    ACC = 16; F = 48; GG = 80
    for i in range(32):
        g('v_mov_b32 v%d, 0' % (ACC + i))
    SETS = [(48, 80), (112, 144)]
    def rd_list(st):
        F_, G_ = SETS[st]
        out = []
        out.append('v_lshrrev_b32 v7, 7, v5'); out.append('v_lshlrev_b32 v8, 1, v5'); out.append('v_lshl_add_u32 v7, v7, 5, v8'); out.append('v_add_u32 v7, v6, v7')
        out.append('v_add_u32 v8, 4, v5'); out.append('v_lshrrev_b32 v9, 7, v8'); out.append('v_lshlrev_b32 v8, 1, v8'); out.append('v_lshl_add_u32 v8, v9, 5, v8'); out.append('v_add_u32 v8, v6, v8')
        out.append('ds_read_b128 %s, v4 offset:%d' % (vr(F_, 4), 512 * 7))
        for w in range(8):
            out.append('ds_read_b64 %s, v7 offset:%d' % (vr(G_ + 4 * w, 2), 576 * w))
            out.append('ds_read_b64 %s, v8 offset:%d' % (vr(G_ + 4 * w + 2, 2), 576 * w))
        for v in range(1, 8):
            out.append('ds_read_b128 %s, v4 offset:%d' % (vr(F_ + 4 * v, 4), 512 * (7 - v)))
        out.append('v_subrev_u32 v4, 64, v4'); out.append('v_subrev_u32 v5, 32, v5')
        return out
    def mf_list(st):
        F_, G_ = SETS[st]
        return ['v_mfma_f32_16x16x32_bf16 %s, %s, %s, %s' % (vr(ACC + 4 * (v + w), 4), vr(G_ + 4 * w, 4), vr(F_ + 4 * v, 4), vr(ACC + 4 * (v + w), 4))
                for v in range(8) for w in range(8 - v)]
    for l in rd_list(0): g(l)
    for rr in range(4):
        g('s_waitcnt lgkmcnt(0)')
        m_ = mf_list(rr & 1)
        r_ = rd_list((rr + 1) & 1) if rr < 3 else []
        k = 0
        for i, l in enumerate(m_):
            g(l)
            while k < len(r_) and k < (i + 1) * 2:
                g(r_[k]); k += 1
    stamp(g, 6)
    g('s_setprio %s' % os.environ.get('SP3', '3'))
    g('s_barrier')
    g('v_lshrrev_b32 v14, 1, v2')
    g('v_and_b32 v15, 1, v2')
    g('v_lshlrev_b32 v4, 9, v14')
    g('v_lshl_add_u32 v4, v3, 5, v4')
    g('v_lshl_add_u32 v4, v15, 4, v4')
    g('s_lshl_b32 s58, s14, 13')
    g('s_add_u32 s58, s58, %d' % XC)
    g('v_add_u32 v4, s58, v4')
    for ct in range(8):
        g('ds_write_b128 v4, %s offset:%d' % (vr(ACC + 4 * ct, 4), 1024 * ct))
    g('s_waitcnt lgkmcnt(0)')
    g('s_barrier')
    g('v_lshlrev_b32 v4, 5, v0')
    g('v_add_u32 v4, %d, v4' % XC)
    for a_ in range(4):
        g('ds_read_b128 %s, v4 offset:%d' % (vr(48 + 8 * a_, 4), 8192 * a_))
        g('ds_read_b128 %s, v4 offset:%d' % (vr(52 + 8 * a_, 4), 8192 * a_ + 16))
    g('s_lshl_b32 s58, s2, 13')
    g('s_add_u32 s58, s58, %d' % WS_Y2)
    g('v_lshlrev_b32 v5, 5, v0')
    g('v_add_u32 v5, s58, v5')
    g('s_waitcnt lgkmcnt(0)')
    for i in range(8):
        g('v_add_f32 v%d, v%d, v%d' % (48 + i, 48 + i, 56 + i))
        g('v_add_f32 v%d, v%d, v%d' % (64 + i, 64 + i, 72 + i))
    for i in range(8):
        g('v_cvt_pk_bf16_f32 v%d, v%d, v%d' % (80 + i, 48 + i, 64 + i))
    g('buffer_store_dwordx4 v[80:83], v5, %s, 0 offen sc0 sc1' % sr(S_WS, 4))
    g('buffer_store_dwordx4 v[84:87], v5, %s, 0 offen offset:16 sc0 sc1' % sr(S_WS, 4))
    g('s_lshr_b32 s59, s2, 5')
    g('s_and_b32 s60, s2, 31')
    g('s_lshl_b32 s59, s59, 2')
    g('s_add_u32 s59, s59, s14')
    g('s_lshl_b32 s59, s59, 5')
    g('s_add_u32 s59, s59, s60')
    g('s_lshl_b32 s59, s59, 3')
    g('s_add_u32 s59, s59, %d' % WS_FY)
    g('v_mov_b32 v6, s59')
    g('s_waitcnt vmcnt(0)')
    stamp(g, 7)
    set_flag(g, 6, 8)
    stamp(g, 8)
    stamp(g, 9)
    stamp_flush(g)
    g('s_endpgm')
```

```python
from common import *
import os
import struct
def f2u(x): return struct.unpack('<I', struct.pack('<f', x))[0]
L2E = f2u(1.4426950408889634); LN2 = f2u(0.6931471805599453)
WK = 0; WV = 28672; WQ = 57344; WQ6 = 53248; RED = 0; KVX = 61440
XF = 144
S_W = 64
S_P = 68
S_UP = 72
S_L28 = 74
S_F28 = 76
S_TT = 78; S_H = 79; S_L2E = 80; S_LN2 = 81; S_TT64 = 82; S_CG = 83

def srd(g, s, ptr, nbytes):
    g('s_mov_b32 s%d, s%d' % (s, ptr)); g('s_mov_b32 s%d, s%d' % (s + 1, ptr + 1))
    g('s_mov_b32 s%d, %d' % (s + 2, nbytes)); g('s_mov_b32 s%d, 0x00020000' % (s + 3))

def softmax_stats(g, DP, T, want_c):
    MX, MN, SP, SM, A, B, TM, TN = T, T + 1, T + 2, T + 3, T + 4, T + 5, T + 6, T + 7
    EP = T + 8; EM = T + 24
    for i in range(12, 16):
        g('v_cndmask_b32 v%d, v%d, v%d, %s' % (DP + i, DP + i, DP + 11, sr(S_UP, 2)))
    g('v_max3_f32 v%d, v%d, v%d, v%d' % (MX, DP, DP + 1, DP + 2))
    g('v_min3_f32 v%d, v%d, v%d, v%d' % (MN, DP, DP + 1, DP + 2))
    for i in range(3, 15, 2):
        g('v_max3_f32 v%d, v%d, v%d, v%d' % (MX, MX, DP + i, DP + i + 1))
        g('v_min3_f32 v%d, v%d, v%d, v%d' % (MN, MN, DP + i, DP + i + 1))
    g('v_max_f32 v%d, v%d, v%d' % (MX, MX, DP + 15))
    g('v_min_f32 v%d, v%d, v%d' % (MN, MN, DP + 15))
    g('v_mov_b32 v%d, v%d' % (A, MX)); g('v_mov_b32 v%d, v%d' % (B, MX))
    g('v_mov_b32 v%d, v%d' % (TM, MN)); g('v_mov_b32 v%d, v%d' % (TN, MN))
    g('v_permlane32_swap_b32 v%d, v%d' % (A, B))
    g('v_permlane32_swap_b32 v%d, v%d' % (TM, TN))
    g('v_max_f32 v%d, v%d, v%d' % (MX, A, B))
    g('v_min_f32 v%d, v%d, v%d' % (MN, TM, TN))
    g('v_mul_f32 v%d, s%d, v%d' % (TM, S_L2E, MX))
    g('v_mul_f32 v%d, s%d, v%d' % (TN, S_L2E, MN))
    for i in range(16):
        g('v_fma_f32 v%d, v%d, s%d, -v%d' % (EP + i, DP + i, S_L2E, TM))
        g('v_fma_f32 v%d, -v%d, s%d, v%d' % (EM + i, DP + i, S_L2E, TN))
    for i in range(16):
        g('v_exp_f32 v%d, v%d' % (EP + i, EP + i))
        g('v_exp_f32 v%d, v%d' % (EM + i, EM + i))
    for i in range(12, 16):
        g('v_cndmask_b32 v%d, v%d, 0, %s' % (EP + i, EP + i, sr(S_UP, 2)))
        g('v_cndmask_b32 v%d, v%d, 0, %s' % (EM + i, EM + i, sr(S_UP, 2)))
    g('v_add_f32 v%d, v%d, v%d' % (SP, EP, EP + 1)); g('v_add_f32 v%d, v%d, v%d' % (SM, EM, EM + 1))
    g('v_add_f32 v%d, v%d, v%d' % (A, EP + 2, EP + 3)); g('v_add_f32 v%d, v%d, v%d' % (B, EM + 2, EM + 3))
    for i in range(4, 16, 2):
        g('v_add_f32 v%d, v%d, v%d' % (SP, SP, EP + i)); g('v_add_f32 v%d, v%d, v%d' % (SM, SM, EM + i))
        g('v_add_f32 v%d, v%d, v%d' % (A, A, EP + i + 1)); g('v_add_f32 v%d, v%d, v%d' % (B, B, EM + i + 1))
    g('v_add_f32 v%d, v%d, v%d' % (SP, SP, A)); g('v_add_f32 v%d, v%d, v%d' % (SM, SM, B))
    g('v_mov_b32 v%d, v%d' % (A, SP)); g('v_mov_b32 v%d, v%d' % (B, SP))
    g('v_mov_b32 v%d, v%d' % (TM, SM)); g('v_mov_b32 v%d, v%d' % (TN, SM))
    g('v_permlane32_swap_b32 v%d, v%d' % (A, B))
    g('v_permlane32_swap_b32 v%d, v%d' % (TM, TN))
    g('v_add_f32 v%d, v%d, v%d' % (SP, A, B))
    g('v_add_f32 v%d, v%d, v%d' % (SM, TM, TN))
    return MX, MN, SP, SM, EP, EM

def gen_A(g, stage=99):
    g.c('---- A type')
    g('s_setprio %s' % os.environ.get('AP1', '1'))
    g('s_sub_u32 s50, s2, %d' % NS)
    g('s_and_b32 s51, s50, 7')
    g('s_lshr_b32 s52, s50, 3')
    g('s_and_b32 s53, s51, 3')
    g('s_lshl_b32 s53, s53, 2')
    g('s_and_b32 s54, s52, 3')
    g('s_add_u32 s%d, s53, s54' % S_TT)
    g('s_lshr_b32 s53, s51, 2')
    g('s_lshl_b32 s53, s53, 3')
    g('s_lshr_b32 s54, s52, 2')
    g('s_add_u32 s%d, s53, s54' % S_H)
    g('s_mul_i32 s53, s52, 37')
    g('s_lshr_b32 s53, s53, 8')
    g('s_mul_i32 s54, s53, 7')
    g('s_sub_u32 s%d, s52, s54' % S_CG)
    g('s_lshl_b32 s54, s51, 2')
    g('s_add_u32 s%d, s54, s53' % S_TT64)
    g('s_cmp_ge_u32 s52, 28')
    g('s_cselect_b32 s%d, 99, s%d' % (S_TT64, S_TT64))
    srd(g, S_W, P_WQKV, 448 * 2688)
    g('v_and_b32 v2, 31, v1')
    g('v_lshrrev_b32 v3, 5, v1')
    g('s_lshl_b32 s53, s%d, 7' % S_TT)
    g('s_lshl_b32 s54, s14, 5')
    g('s_add_u32 s53, s53, s54')
    g('v_and_b32 v4, 3, v1')
    g('v_bfe_u32 v5, v1, 2, 3')
    g('v_lshl_add_u32 v9, v4, 3, v5')
    g('v_add_u32 v5, s53, v5')
    g('v_mul_u32_u24 v5, 896, v5')
    g('v_lshl_add_u32 v5, v3, 6, v5')
    g('v_lshl_add_u32 v5, v4, 4, v5')
    g('v_add_u32 v4, s53, v9')
    g('v_add_u32 v140, %d, v5' % (8 * 896))
    g('v_add_u32 v141, %d, v5' % (16 * 896))
    g('v_add_u32 v142, %d, v5' % (24 * 896))
    g('v_lshrrev_b32 v6, 2, v1')
    g('v_and_b32 v7, 3, v1')
    g('v_mul_u32_u24 v8, 2688, v6')
    g('v_lshl_add_u32 v8, v7, 4, v8')
    g('s_mul_i32 s53, s%d, 56' % S_H)
    g('v_add_u32 v8, s53, v8')
    g('s_mul_i32 s55, s14, %d' % (16 * 2688))
    g('s_lshl_b32 s56, s14, 10')
    W0 = 64; W1 = 68
    XO = (5, 140, 141, 142)
    ROT = os.environ.get('ROT', '1') == '1'
    g('s_mul_i32 s63, s52, 37')
    g('s_lshr_b32 s63, s63, 8')
    g('s_mul_i32 s63, s63, 7')
    g('s_sub_u32 s63, s52, s63')
    if not ROT: g('s_mov_b32 s63, 0')
    g('s_mov_b32 s62, s63')
    srd(g, S_P, P_X, 2048 * 896)
    def adv():
        g('s_add_u32 s62, s62, 1')
        g('s_cmp_eq_u32 s62, 7')
        g('s_cselect_b32 s62, 0, s62')
    def issue_w(c):
        g('s_mul_i32 s58, s62, %d' % (64 * 2688))
        g('s_add_u32 s58, s58, s55')
        g('s_add_u32 s57, s58, 896')
        g('s_add_u32 m0, s56, %d' % (WK + c * 4096))
        g('s_add_u32 s58, s58, 1792')
        g('buffer_load_dwordx4 v8, %s, s57 offen lds' % sr(S_W, 4))
        g('s_add_u32 m0, s56, %d' % (WV + c * 4096))
        adv()
        g('buffer_load_dwordx4 v8, %s, s58 offen lds' % sr(S_W, 4))
    def issue_chunk(c):
        g('s_lshl_b32 s57, s62, 7')
        for i in range(4):
            g('buffer_load_dwordx4 %s, v%d, %s, s57 offen' % (vr(XF + 16 * c + 4 * i, 4), XO[i], sr(S_P, 4)))
    def issue_wq(c):
        if c == 0: g('s_mov_b32 s62, s63')
        g('s_mul_i32 s57, s62, %d' % (64 * 2688))
        g('s_add_u32 s57, s57, s55')
        g('s_add_u32 m0, s56, %d' % ((WQ + c * 4096) if c < 6 else WQ6))
        adv()
        g('buffer_load_dwordx4 v8, %s, s57 offen lds' % sr(S_W, 4))
    PD = int(os.environ.get('PD', '3'))
    for c in range(PD):
        issue_chunk(c); issue_w(c)
    def small_loads():
        srd(g, S_P, P_WPHI, 16 * 784 * 2)
        g('s_mul_i32 s53, s%d, 784' % S_H)
        g('v_mul_u32_u24 v9, 112, v3')
        g('v_add_u32 v9, v9, v2')
        g('v_add_u32 v9, s53, v9')
        g('v_lshlrev_b32 v9, 1, v9')
        g('v_cmp_lt_u32 vcc, 27, v2')
        g('s_mov_b64 %s, vcc' % sr(S_F28, 2))
        g('v_mov_b32 v10, 0x7ffff000')
        g('v_cndmask_b32 v9, v9, v10, vcc')
        W0 = 64; W1 = 68
        for tp in range(2):
            for j in range(8):
                d = 16 * tp + 8 * (j >> 2) + (j & 3)
                g('buffer_load_ushort v%d, v9, %s, 0 offen offset:%d' % (48 + 8 * tp + j, sr(S_P, 4), d * 56))
        srd(g, S_P + 16, P_GW, 896)
        g('v_lshrrev_b32 v10, 4, v1')
        g('v_and_b32 v14, 15, v1')
        g('s_lshl_b32 s53, s14, 4')
        g('v_add_u32 v14, s53, v14')
        g('v_lshl_add_u32 v143, v10, 6, v14')
        g('v_lshlrev_b32 v143, 1, v143')
        for i in range(2):
            g('v_add_u32 v15, s63, v10')
            if i: g('v_add_u32 v15, 4, v15')
            g('v_subrev_u32 v9, 7, v15')
            g('v_cmp_gt_u32 vcc, 7, v15')
            g('v_cndmask_b32 v15, v9, v15, vcc')
            g('v_lshl_add_u32 v15, v15, 6, v14')
            g('v_lshlrev_b32 v15, 1, v15')
            g('buffer_load_ushort v%d, v15, %s, 0 offen' % (12 + i, sr(S_P + 16, 4)))
        if os.environ.get('TLBW', '1') == '1':
            g('v_min_u32 v14, 5, v1')
            g('v_lshlrev_b32 v14, 21, v14')
            g('v_add_u32 v14, 0x1f0000, v14')
            g('buffer_load_dword v15, v14, %s, 0 offen' % sr(S_WS, 4))
            g('v_mov_b32 v14, 0')
            g('global_load_dword v15, v14, %s' % sr(P_OUT, 2))
            g('global_load_dword v15, v14, %s' % sr(P_WO, 2))
    NPRE = 42 + 16 + 2
    stamp(g, 1, 'p1')
    g('s_mov_b32 s%d, 0' % S_UP); g('s_mov_b32 s%d, -1' % (S_UP + 1))
    g('s_mov_b32 s%d, 0x10000000' % S_L28); g('s_mov_b32 s%d, 0x10000000' % (S_L28 + 1))
    g('s_mov_b32 s%d, 0x%x' % (S_L2E, L2E)); g('s_mov_b32 s%d, 0x%x' % (S_LN2, LN2))
    g('v_lshrrev_b32 v10, 4, v1')
    g('v_bfe_u32 v11, v1, 2, 2')
    g('v_lshl_add_u32 v11, v3, 5, v11')
    g('v_lshlrev_b32 v11, 6, v11')
    g('v_and_b32 v14, 1, v10')
    g('v_lshl_add_u32 v11, v14, 5, v11')
    g('v_lshl_add_u32 v11, v7, 3, v11')
    DK = 16; DV = 32; WF = 96
    def mf(c):
        for tq in range(4):
            t = 4 * c + tq
            g('v_mfma_f32_32x32x16_bf16 %s, %s, %s, %s' % (vr(DK, 16), vr(WF + 8 * tq, 4), vr(XF + 4 * t, 4), '0' if t == 0 else vr(DK, 16)))
            g('v_mfma_f32_32x32x16_bf16 %s, %s, %s, %s' % (vr(DV, 16), vr(XF + 4 * t, 4), vr(WF + 8 * tq + 4, 4), '0' if t == 0 else vr(DV, 16)))
    seq = []
    for c in range(PD): seq += [c] * 6
    WFB = (64, 96)
    TT = 128
    def waitx(c):
        last = max(i for i, x in enumerate(seq) if x == c)
        g('s_waitcnt vmcnt(%d)' % (len(seq) - 1 - last))
    def stA(c):
        R = [XF + 16 * c + 4 * i for i in range(4)]
        o = []
        d1 = 'quad_perm:[1,0,3,2] row_mask:0xf bank_mask:0xf'; d2 = 'quad_perm:[2,3,0,1] row_mask:0xf bank_mask:0xf'
        def setv(m): o.append('s_mov_b32 vcc_lo, 0x%x' % m); o.append('s_mov_b32 vcc_hi, 0x%x' % m)
        setv(0x55555555)
        for d in range(4): o.append('v_cndmask_b32_dpp v%d, v%d, v%d, vcc %s' % (TT + d, R[1] + d, R[0] + d, d1))
        for d in range(4): o.append('v_cndmask_b32_dpp v%d, v%d, v%d, vcc %s' % (TT + 4 + d, R[3] + d, R[2] + d, d1))
        setv(0xaaaaaaaa)
        for d in range(4): o.append('v_cndmask_b32_dpp v%d, v%d, v%d, vcc %s' % (R[1] + d, R[0] + d, R[1] + d, d1))
        for d in range(4): o.append('v_cndmask_b32_dpp v%d, v%d, v%d, vcc %s' % (R[3] + d, R[2] + d, R[3] + d, d1))
        setv(0x33333333)
        for d in range(4): o.append('v_cndmask_b32_dpp v%d, v%d, v%d, vcc %s' % (R[0] + d, TT + 4 + d, TT + d, d2))
        setv(0xcccccccc)
        for d in range(4): o.append('v_cndmask_b32_dpp v%d, v%d, v%d, vcc %s' % (R[2] + d, TT + d, TT + 4 + d, d2))
        for d in range(4): o.append('v_cndmask_b32_dpp v%d, v%d, v%d, vcc %s' % (TT + d, R[1] + d, R[3] + d, d2))
        setv(0x33333333)
        for d in range(4): o.append('v_cndmask_b32_dpp v%d, v%d, v%d, vcc %s' % (R[1] + d, R[3] + d, R[1] + d, d2))
        for d in range(4): o.append('v_mov_b32 v%d, v%d' % (R[3] + d, TT + d))
        return o
    def stB(c):
        out = []
        for tq in range(4):
            t = 4 * c + tq
            for sg, segb in ((0, WK), (1, WV)):
                for a_ in range(2):
                    out.append('ds_read_b64_tr_b16 %s, v11 offset:%d' % (vr(WFB[c & 1] + 8 * tq + 4 * sg + 2 * a_, 2), segb + 4096 * c + 512 * tq + 256 * a_))
        return out
    def stC(c):
        out = []
        W_ = WFB[c & 1]
        for tq in range(4):
            t = 4 * c + tq
            out.append('v_mfma_f32_32x32x16_bf16 %s, %s, %s, %s' % (vr(DK, 16), vr(W_ + 8 * tq, 4), vr(XF + 4 * t, 4), '0' if t == 0 else vr(DK, 16)))
            out.append('v_mfma_f32_32x32x16_bf16 %s, %s, %s, %s' % (vr(DV, 16), vr(XF + 4 * t, 4), vr(W_ + 8 * tq + 4, 4), '0' if t == 0 else vr(DV, 16)))
        return out
    def more(c):
        if c < 7:
            issue_chunk(c); issue_w(c); seq.extend([c] * 6)
        if c == 6:
            small_loads(); seq.extend([99] * (21 if os.environ.get('TLBW', '1') == '1' else 18))
    waitx(0)
    g('s_barrier')
    for l in stB(0): g(l)
    for l in stA(0): g(l)
    if PD == 7:
        small_loads(); seq.extend([99] * (21 if os.environ.get('TLBW', '1') == '1' else 18))
    for c in range(7):
        stamp(g, 2 + c, 'p1')
        ra = []; rb = []
        if c + 1 < 7:
            waitx(c + 1)
            g('s_barrier')
            ra = stA(c + 1); rb = stB(c + 1)
        g('s_waitcnt lgkmcnt(0)')
        na = (len(ra) + 7) // 8
        for i, l in enumerate(stC(c)):
            g(l)
            for r_ in rb[2 * i:2 * i + 2]: g(r_)
            for r_ in ra[na * i:na * i + na]: g(r_)
        if c + PD < 7: more(c + PD)
        if c >= 4:
            issue_wq(2 * (c - 4)); issue_wq(2 * (c - 4) + 1); seq.extend([98] * 2)
    stamp(g, 1)
    stamp(g, 9, 'p1')
    g('s_waitcnt vmcnt(6)')
    g('s_setprio %s' % os.environ.get('AP2', '2'))
    g('v_mov_b32 v94, 0')
    g('global_load_dwordx2 v[92:93], v94, %s sc0 sc1' % sr(P_DBG, 2))
    W1Z = 72; W1P = 76; W0N = 80; W1N = 84
    g('v_mov_b32 v14, 0x3f803f80')
    g('v_mov_b32 v15, 0x80008000')
    for i in range(8):
        g('v_lshl_or_b32 v%d, v%d, 16, v%d' % (W0 + i, 48 + 2 * i + 1, 48 + 2 * i))
    for i in range(8):
        g('v_cndmask_b32 v%d, v%d, 0, %s' % (W0 + i, W0 + i, sr(S_F28, 2)))
    for i in range(4):
        g('v_xor_b32 v%d, v15, v%d' % (W0N + i, W0 + i))
        g('v_xor_b32 v%d, v15, v%d' % (W1N + i, W1 + i))
    for i in range(2):
        for dst in (W1Z, W1P):
            g('v_mov_b32 v%d, v%d' % (dst + i, W1 + i))
    g('v_cndmask_b32 v%d, v%d, 0, %s' % (W1Z + 2, W1 + 2, sr(S_UP, 2)))
    g('v_cndmask_b32 v%d, v%d, 0, %s' % (W1Z + 3, W1 + 3, sr(S_UP, 2)))
    g('v_cndmask_b32 v%d, v%d, v14, %s' % (W1P + 2, W1 + 2, sr(S_UP, 2)))
    g('v_cndmask_b32 v%d, v%d, 0, %s' % (W1P + 3, W1 + 3, sr(S_UP, 2)))
    g('v_cndmask_b32 v%d, v%d, 0, %s' % (W1N + 2, W1N + 2, sr(S_UP, 2)))
    g('v_cndmask_b32 v%d, v%d, v14, %s' % (W1N + 3, W1N + 3, sr(S_UP, 2)))
    KB = 48; VB = 56; DP = 16; T = 96
    for i in range(8):
        g('v_cvt_pk_bf16_f32 v%d, v%d, v%d' % (KB + i, DK + 2 * i, DK + 2 * i + 1))
    for i in range(8):
        g('v_cvt_pk_bf16_f32 v%d, v%d, v%d' % (VB + i, DV + 2 * i, DV + 2 * i + 1))
    g('v_mfma_f32_32x32x16_bf16 %s, %s, %s, 0' % (vr(DP, 16), vr(W0, 4), vr(KB, 4)))
    g('v_mfma_f32_32x32x16_bf16 %s, %s, %s, %s' % (vr(DP, 16), vr(W1Z, 4), vr(KB + 4, 4), vr(DP, 16)))
    for i in range(8):
        g('v_cndmask_b32 v%d, v%d, v14, %s' % (VB + i, VB + i, sr(S_L28, 2)))
    MX, MN, SP, SM, EP, EM = softmax_stats(g, DP, T, True)
    A_, B_ = T + 4, T + 5
    g('v_log_f32 v%d, v%d' % (SP, SP)); g('v_log_f32 v%d, v%d' % (SM, SM))
    g('v_fma_f32 v%d, -v%d, s%d, -v%d' % (SP, SP, S_LN2, MX))
    g('v_fma_f32 v%d, -v%d, s%d, v%d' % (SM, SM, S_LN2, MN))
    for r_, tmp in ((SP, A_), (SM, B_)):
        g('v_cvt_pk_bf16_f32 v%d, v%d, v%d' % (tmp, r_, r_))
        g('v_lshlrev_b32 v%d, 16, v%d' % (tmp, tmp))
        g('v_sub_f32 v%d, v%d, v%d' % (tmp, r_, tmp))
        g('v_cvt_pk_bf16_f32 v%d, v%d, v%d' % (tmp, r_, tmp))
    g('v_cndmask_b32 v%d, v%d, v%d, %s' % (KB + 6, KB + 6, A_, sr(S_UP, 2)))
    g('v_cndmask_b32 v%d, v%d, v%d, %s' % (KB + 7, KB + 7, B_, sr(S_UP, 2)))
    DPP = 16; DPM = 32
    g('v_mfma_f32_32x32x16_bf16 %s, %s, %s, 0' % (vr(DPP, 16), vr(KB, 4), vr(W0, 4)))
    g('v_mfma_f32_32x32x16_bf16 %s, %s, %s, 0' % (vr(DPM, 16), vr(KB, 4), vr(W0N, 4)))
    g('v_mfma_f32_32x32x16_bf16 %s, %s, %s, %s' % (vr(DPP, 16), vr(KB + 4, 4), vr(W1P, 4), vr(DPP, 16)))
    g('v_mfma_f32_32x32x16_bf16 %s, %s, %s, %s' % (vr(DPM, 16), vr(KB + 4, 4), vr(W1N, 4), vr(DPM, 16)))
    for i in range(16):
        g('v_mul_f32 v%d, s%d, v%d' % (DPP + i, S_L2E, DPP + i))
    for i in range(16):
        g('v_exp_f32 v%d, v%d' % (DPP + i, DPP + i))
        g('v_mul_f32 v%d, s%d, v%d' % (DPM + i, S_L2E, DPM + i))
    for i in range(16):
        g('v_exp_f32 v%d, v%d' % (DPM + i, DPM + i))
    PH = 96
    for i in range(8):
        g('v_cvt_pk_bf16_f32 v%d, v%d, v%d' % (PH + i, DPP + 2 * i, DPP + 2 * i + 1))
    for i in range(8):
        g('v_cvt_pk_bf16_f32 v%d, v%d, v%d' % (PH + 8 + i, DPM + 2 * i, DPM + 2 * i + 1))
    KVP_ = 16; KVM = 32
    g('v_mfma_f32_32x32x16_bf16 %s, %s, %s, 0' % (vr(KVP_, 16), vr(PH, 4), vr(VB, 4)))
    g('v_mfma_f32_32x32x16_bf16 %s, %s, %s, 0' % (vr(KVM, 16), vr(PH + 8, 4), vr(VB, 4)))
    g('v_mfma_f32_32x32x16_bf16 %s, %s, %s, %s' % (vr(KVP_, 16), vr(PH + 4, 4), vr(VB + 4, 4), vr(KVP_, 16)))
    g('v_mfma_f32_32x32x16_bf16 %s, %s, %s, %s' % (vr(KVM, 16), vr(PH + 12, 4), vr(VB + 4, 4), vr(KVM, 16)))
    g('s_barrier')
    g('s_lshl_b32 s57, s14, 13')
    g('s_add_u32 s57, s57, %d' % RED)
    g('v_lshlrev_b32 v14, 4, v1')
    g('v_add_u32 v15, s57, v14')
    for gq in range(8):
        g('ds_write_b128 v15, %s offset:%d' % (vr(16 + 4 * gq, 4), 1024 * gq))
    g('s_waitcnt lgkmcnt(0)')
    g('s_barrier')
    g('s_lshl_b32 s57, s14, 11')
    g('s_add_u32 s57, s57, %d' % RED)
    g('v_add_u32 v15, s57, v14')
    for wv in range(4):
        for k in range(2):
            g('ds_read_b128 %s, v15 offset:%d' % (vr(96 + 8 * wv + 4 * k, 4), 8192 * wv + 1024 * k))
    g('s_lshl_b32 s57, s%d, 4' % S_H)
    g('s_add_u32 s57, s57, s%d' % S_TT)
    g('s_lshl_b32 s57, s57, 2')
    g('s_add_u32 s57, s57, s14')
    g('s_lshl_b32 s57, s57, 10')
    g('s_add_u32 s57, s57, %d' % WS_KVP)
    g('v_add_u32 v15, s57, v14')
    get_nonce(g, 92, 94, 57, pre=True, cnt=0)
    g('s_waitcnt lgkmcnt(0)')
    for i in range(8):
        g('v_add_f32 v%d, v%d, v%d' % (96 + i, 96 + i, 104 + i))
        g('v_add_f32 v%d, v%d, v%d' % (112 + i, 112 + i, 120 + i))
    for i in range(8):
        g('v_add_f32 v%d, v%d, v%d' % (96 + i, 96 + i, 112 + i))
    for i in range(4):
        g('v_cvt_pk_bf16_f32 v%d, v%d, v%d' % (104 + i, 96 + 2 * i, 97 + 2 * i))
    g('buffer_store_dwordx4 v[104:107], v15, %s, 0 offen sc0 sc1' % sr(S_WS, 4))
    issue_wq(6)
    g('s_lshl_b32 s57, s%d, 2' % S_H)
    g('s_add_u32 s57, s57, s14')
    g('s_lshl_b32 s57, s57, 4')
    g('s_add_u32 s58, s57, s%d' % S_TT)
    g('s_lshl_b32 s58, s58, 3')
    g('s_add_u32 s58, s58, %d' % WS_FK)
    g('v_mov_b32 v86, s58')
    g('s_lshl_b32 s%d, s57, 3' % 88)
    g('v_lshlrev_b32 v14, 5, v143')
    g('ds_write_b16 v14, v12 offset:%d' % (WQ + 56))
    g('v_add_u32 v15, %d, v14' % (256 * 64 + WQ + 56))
    g('v_add_u32 v9, %d, v14' % (256 * 64 - 384 * 64 + WQ6 + 56))
    g('s_mov_b32 exec_hi, 0')
    g('ds_write_b16 v15, v13')
    g('s_mov_b64 exec, -1')
    g('s_waitcnt lgkmcnt(0)')
    g('s_barrier')
    DQ = 16; WF = 88
    g('v_add_u32 v10, %d, v11' % WQ)
    for grp in range(4):
        if grp == 3:
            g('s_waitcnt vmcnt(0)')
            set_flag(g, 86, 84)
            stamp(g, 2)
            g('s_mov_b32 exec_lo, 0')
            g('s_mov_b32 exec_hi, 0xffff')
            g('ds_write_b16 v9, v13')
            g('s_mov_b64 exec, -1')
            g('s_waitcnt lgkmcnt(0)')
            g('s_barrier')
        for tq in range(7):
            t = 7 * grp + tq
            for a in range(2):
                g('ds_read_b64_tr_b16 %s, v%d offset:%d' % (vr(WF + (28 * (grp & 1)) + 4 * tq + 2 * a, 2), 10 if t < 24 else 11, (4096 * (t >> 2) if t < 24 else WQ6) + 512 * (t & 3) + 256 * a))
        if grp > 0:
            pg = grp - 1
            for tq in range(7):
                t = 7 * pg + tq
                if tq == 0: g('s_waitcnt lgkmcnt(14)')
                g('v_mfma_f32_32x32x16_bf16 %s, %s, %s, %s' % (vr(DQ, 16), vr(WF + 28 * (pg & 1) + 4 * tq, 4), vr(XF + 4 * t, 4), '0' if t == 0 else vr(DQ, 16)))
    g('s_waitcnt lgkmcnt(0)')
    for tq in range(7):
        t = 21 + tq
        g('v_mfma_f32_32x32x16_bf16 %s, %s, %s, %s' % (vr(DQ, 16), vr(WF + 28 + 4 * tq, 4), vr(XF + 4 * t, 4), vr(DQ, 16)))
    g('s_barrier')
    QB = 48
    g('v_mov_b32 v14, v%d' % (DQ + 12))
    for i in range(8):
        g('v_cvt_pk_bf16_f32 v%d, v%d, v%d' % (QB + i, DQ + 2 * i, DQ + 2 * i + 1))
    g('v_mfma_f32_32x32x16_bf16 %s, %s, %s, 0' % (vr(DP, 16), vr(W0, 4), vr(QB, 4)))
    g('v_mfma_f32_32x32x16_bf16 %s, %s, %s, %s' % (vr(DP, 16), vr(W1Z, 4), vr(QB + 4, 4), vr(DP, 16)))
    g('v_mul_f32 v14, s%d, v14' % S_L2E)
    g('v_exp_f32 v14, -v14')
    g('v_add_f32 v14, 1.0, v14')
    g('v_rcp_f32 v14, v14')
    Lg = g.newlabel('L_ng')
    g('s_cmp_lg_u32 s%d, 0' % S_H)
    g('s_cbranch_scc1 %s' % Lg)
    g('v_lshlrev_b32 v15, 2, v4')
    g('v_add_u32 v15, %d, v15' % WS_G)
    g('s_mov_b64 exec, %s' % sr(S_UP, 2))
    g('buffer_store_dword v14, v15, %s, 0 offen sc0 sc1' % sr(S_WS, 4))
    g('s_mov_b64 exec, -1')
    g.label(Lg)
    MX, MN, SP, SM, EP, EM = softmax_stats(g, DP, T, False)
    g('v_and_b32 v86, 15, v1')
    g('v_lshlrev_b32 v86, 3, v86')
    g('s_add_u32 s57, s88, %d' % WS_FK)
    g('v_add_u32 v86, s57, v86')
    g('buffer_load_dwordx2 v[84:85], v86, %s, 0 offen sc0 sc1' % sr(S_WS, 4))
    g('v_rcp_f32 v%d, v%d' % (SP, SP)); g('v_rcp_f32 v%d, v%d' % (SM, SM))
    for i in range(16):
        g('v_mul_f32 v%d, v%d, v%d' % (EP + i, EP + i, SP))
        g('v_mul_f32 v%d, v%d, v%d' % (EM + i, EM + i, SM))
    PQ = 48
    for i in range(8):
        g('v_cvt_pk_bf16_f32 v%d, v%d, v%d' % (PQ + i, EP + 2 * i, EP + 2 * i + 1))
        g('v_cvt_pk_bf16_f32 v%d, v%d, v%d' % (PQ + 8 + i, EM + 2 * i, EM + 2 * i + 1))
    SEL = 64
    g('v_lshrrev_b32 v8, 3, v2')
    g('v_bfe_u32 v9, v2, 2, 1')
    g('v_and_b32 v10, 3, v2')
    g('v_lshrrev_b32 v12, 1, v10')
    g('v_lshl_add_u32 v12, v8, 1, v12')
    g('v_and_b32 v13, 1, v10')
    g('v_mov_b32 v14, 0x3f80')
    g('v_mov_b32 v15, 0x3f800000')
    g('v_cmp_eq_u32 vcc, 1, v13')
    g('v_cndmask_b32 v13, v14, v15, vcc')
    g('v_cmp_eq_u32 vcc, v9, v3')
    g('v_cndmask_b32 v13, 0, v13, vcc')
    for i in range(4):
        g('v_cmp_eq_u32 vcc, %d, v12' % i)
        g('v_cndmask_b32 v%d, 0, v13, vcc' % (SEL + i))
    stamp(g, 3)
    Lfk = g.newlabel('L_fkok')
    g('s_waitcnt vmcnt(0)')
    g('v_cmp_eq_u64 vcc, %s, v[84:85]' % sr(S_NONCE, 2))
    g('s_cmp_eq_u64 vcc, exec')
    g('s_cbranch_scc1 %s' % Lfk)
    poll_flags(g, 86, None, 84, 57)
    g.label(Lfk)
    stamp(g, 4)
    stamp(g, 1, 'p3')
    g('s_lshl_b32 s57, s%d, 6' % S_H)
    g('s_add_u32 s57, s57, s14')
    g('s_lshl_b32 s57, s57, 10')
    g('s_add_u32 s57, s57, %d' % WS_KVP)
    g('v_lshlrev_b32 v9, 4, v1')
    g('v_add_u32 v8, s57, v9')
    PL = 144
    PSC = os.environ.get('PSC', 'sc0 sc1')
    for j in range(16):
        g('s_mov_b32 s57, %d' % (j * 4096))
        g('buffer_load_dwordx4 %s, v8, %s, s57 offen %s' % (vr(PL + 4 * j, 4), sr(S_WS, 4), PSC))
    DS_ = 16
    stamp(g, 2, 'p3')
    for j in range(16):
        g('s_waitcnt vmcnt(%d)' % (15 - j))
        g('v_mfma_f32_32x32x16_bf16 %s, %s, %s, %s' % (vr(DS_, 16), vr(SEL, 4), vr(PL + 4 * j, 4), '0' if j == 0 else vr(DS_, 16)))
    for i in range(4):
        g('v_cvt_pk_bf16_f32 v%d, v%d, v%d' % (96 + i, DS_ + 2 * i, DS_ + 2 * i + 1))
    g('s_lshl_b32 s57, s14, 10')
    g('s_add_u32 s57, s57, %d' % KVX)
    g('v_add_u32 v8, s57, v9')
    stamp(g, 3, 'p3')
    g('ds_write_b128 v8, v[96:99]')
    g('s_waitcnt lgkmcnt(0)')
    g('s_barrier')
    stamp(g, 4, 'p3')
    g('v_add_u32 v8, %d, v9' % KVX)
    KF = 100
    for t in range(4):
        g('ds_read_b128 %s, v8 offset:%d' % (vr(KF + 4 * t, 4), 1024 * t))
    DO = 16
    for t in range(4):
        g('s_waitcnt lgkmcnt(%d)' % (3 - t))
        g('v_mfma_f32_32x32x16_bf16 %s, %s, %s, %s' % (vr(DO, 16), vr(KF + 4 * t, 4), vr(PQ + 4 * t, 4), '0' if t == 0 else vr(DO, 16)))
    g('v_mov_b32 v8, v%d' % (DO + 12)); g('v_mov_b32 v9, v%d' % (DO + 12))
    g('v_permlane32_swap_b32 v8, v9')
    g('v_add_f32 v9, 0x%x, v9' % f2u(1e-6))
    g('v_rcp_f32 v9, v9')
    for i in range(16):
        g('v_mul_f32 v%d, v%d, v9' % (DO + i, DO + i))
    for i in range(8):
        g('v_cvt_pk_bf16_f32 v%d, v%d, v%d' % (96 + i, DO + 2 * i, DO + 2 * i + 1))
    g('v_cndmask_b32 v102, v102, 0, %s' % sr(S_UP, 2))
    g('v_cndmask_b32 v103, v103, 0, %s' % sr(S_UP, 2))
    g('s_lshl_b32 s57, s%d, 2' % S_TT)
    g('s_add_u32 s57, s57, s14')
    g('s_lshl_b32 s57, s57, 15')
    g('s_lshl_b32 s58, s%d, 10' % S_H)
    g('s_add_u32 s57, s57, s58')
    g('s_add_u32 s57, s57, %d' % WS_O)
    g('v_lshrrev_b32 v8, 4, v2')
    g('v_lshlrev_b32 v8, 14, v8')
    g('v_lshl_add_u32 v8, v3, 8, v8')
    g('v_and_b32 v10, 15, v2')
    g('v_lshl_add_u32 v8, v10, 4, v8')
    g('v_add_u32 v8, s57, v8')
    g('buffer_store_dwordx4 v[96:99], v8, %s, 0 offen sc0 sc1' % sr(S_WS, 4))
    g('buffer_store_dwordx4 v[100:103], v8, %s, 0 offen offset:512 sc0 sc1' % sr(S_WS, 4))
    stamp(g, 5, 'p3')
    g('s_lshl_b32 s57, s%d, 2' % S_TT)
    g('s_add_u32 s57, s57, s14')
    g('s_lshl_b32 s57, s57, 4')
    g('s_add_u32 s57, s57, s%d' % S_H)
    g('s_lshl_b32 s57, s57, 3')
    g('s_add_u32 s57, s57, %d' % WS_FO)
    g('v_mov_b32 v15, s57')
    Lgo = g.newlabel('L_p4')
    g('s_cmp_lt_u32 s%d, 32' % S_TT64)
    g('s_cbranch_scc1 %s' % Lgo)
    g('s_waitcnt vmcnt(0)')
    set_flag(g, 15, 96)
    for i_ in range(5, 10): stamp(g, i_)
    stamp_flush(g)
    g('s_endpgm')
    g.label(Lgo)
    srd(g, S_P, P_WO, 448 * 896)
    g('v_lshrrev_b32 v6, 2, v1')
    g('v_and_b32 v7, 3, v1')
    g('v_mul_u32_u24 v9, 896, v6')
    g('v_lshl_add_u32 v9, v7, 4, v9')
    g('s_lshl_b32 s53, s%d, 7' % S_CG)
    g('v_add_u32 v9, s53, v9')
    g('s_mul_i32 s55, s14, %d' % (16 * 896))
    NPRE_DMA = int(os.environ.get('NPD', '6'))
    k_ = 0
    for c in range(7):
        for sg in range(2):
            if k_ == NPRE_DMA:
                g('s_waitcnt vmcnt(%d)' % NPRE_DMA)
                set_flag(g, 15, 96)
                stamp(g, 5)
                stamp(g, 6, 'p3')
            g('s_add_u32 s57, s55, %d' % (c * 64 * 896 + 64 * sg))
            g('s_add_u32 m0, s56, %d' % (28672 * sg + c * 4096))
            g('s_nop 0')
            g('buffer_load_dwordx4 v9, %s, s57 offen lds' % sr(S_P, 4))
            k_ += 1
    g('v_and_b32 v2, 15, v1')
    g('v_lshrrev_b32 v3, 4, v1')
    g('s_lshl_b32 s57, s%d, 6' % S_TT64)
    g('s_lshr_b32 s58, s14, 1')
    g('s_lshl_b32 s58, s58, 5')
    g('s_add_u32 s57, s57, s58')
    g('s_and_b32 s58, s14, 1')
    g('s_lshl_b32 s58, s58, 2')
    g('s_add_u32 s57, s57, s58')
    g('v_and_b32 v4, 3, v2')
    g('v_lshlrev_b32 v4, 3, v4')
    g('v_lshrrev_b32 v8, 2, v2')
    g('v_add3_u32 v4, v4, v8, s57')
    srd(g, S_P, P_X, 2048 * 896)
    srd(g, S_W, P_DSK, 896)
    g('s_lshl_b32 s58, s%d, 7' % S_CG)
    g('v_lshlrev_b32 v5, 3, v3')
    g('v_add_u32 v5, s58, v5')
    g('v_mul_u32_u24 v6, 896, v4')
    g('v_add_u32 v6, v6, v5')
    XE = 96; DE = 104
    for m in range(4):
        mo = 32 * m
        g('buffer_load_dwordx2 %s, v6, %s, 0 offen offset:%d' % (vr(XE + 2 * m, 2), sr(S_P, 4), mo))
        g('buffer_load_dwordx2 %s, v5, %s, 0 offen offset:%d' % (vr(DE + 2 * m, 2), sr(S_W, 4), mo))
    g('v_bfe_u32 v7, v1, 2, 2')
    g('v_lshrrev_b32 v8, 1, v3')
    g('v_lshl_add_u32 v7, v8, 4, v7')
    g('v_and_b32 v8, 1, v3')
    g('v_lshl_add_u32 v7, v8, 2, v7')
    g('v_lshlrev_b32 v7, 6, v7')
    g('v_and_b32 v8, 3, v1')
    g('v_lshl_add_u32 v7, v8, 3, v7')
    g('s_lshr_b32 s57, s%d, 1' % S_TT64)
    g('s_lshl_b32 s57, s57, 2')
    g('s_and_b32 s58, s%d, 1' % S_TT64)
    g('s_lshl_b32 s58, s58, 1')
    g('s_add_u32 s57, s57, s58')
    g('s_lshr_b32 s58, s14, 1')
    g('s_add_u32 s57, s57, s58')
    g('s_lshl_b32 s57, s57, 7')
    g('s_add_u32 s57, s57, %d' % WS_FO)
    g('v_lshlrev_b32 v8, 3, v2')
    g('v_add_u32 v8, s57, v8')
    g('s_lshl_b32 s57, s%d, 2' % S_CG)
    g('s_lshr_b32 s58, s%d, 3' % S_TT64)
    g('s_add_u32 s57, s57, s58')
    g('s_lshl_b32 s57, s57, 8')
    g('s_add_u32 s57, s57, %d' % WS_FY)
    g('v_and_b32 v10, 31, v1')
    g('v_lshlrev_b32 v10, 3, v10')
    g('v_add_u32 v10, s57, v10')
    if os.environ.get('COMB', '0') == '1': g('v_cndmask_b32 v8, v8, v10, %s' % sr(S_UP, 2))
    Lp = g.newlabel('L_pfo'); Lpd = g.newlabel('L_pfod')
    g('s_mov_b32 s57, 0')
    g.label(Lp)
    g('buffer_load_dwordx2 v[112:113], v8, %s, 0 offen sc0 sc1' % sr(S_WS, 4))
    g('s_waitcnt vmcnt(0)')
    g('v_cmp_eq_u64 vcc, %s, v[112:113]' % sr(S_NONCE, 2))
    g('s_cmp_eq_u32 vcc_lo, -1')
    g('s_cbranch_scc1 %s' % Lpd)
    g('s_add_u32 s57, s57, 1')
    g('s_cmp_ge_u32 s57, 200000')
    g('s_cbranch_scc1 %s' % Lpd)
    g('s_sleep 1')
    g('s_branch %s' % Lp)
    g.label(Lpd)
    if os.environ.get('COMB', '0') == '1': g('s_mov_b32 s89, vcc_hi')
    else: g('s_mov_b32 s89, 0')
    g('s_lshl_b32 s57, s%d, 18' % S_CG)
    g('s_add_u32 s57, s57, %d' % WS_Y2)
    g('v_lshlrev_b32 v12, 14, v3')
    g('v_lshl_add_u32 v12, v4, 2, v12')
    g('v_add_u32 v12, s57, v12')
    YE = 112
    def yloads():
        for m in range(4):
            for k in range(2):
                pr = 8 * m + k
                g('s_mov_b32 s57, %d' % (pr * 8192))
                g('buffer_load_dword v%d, v12, %s, s57 offen sc0 sc1' % (YE + 2 * m + k, sr(S_WS, 4)))
    Ly = g.newlabel('L_ny')
    g('s_cmp_lg_u32 s89, -1')
    g('s_cbranch_scc1 %s' % Ly)
    yloads()
    g.label(Ly)
    stamp(g, 7, 'p3')
    stamp(g, 6)
    g('s_lshl_b32 s57, s%d, 2' % S_TT64)
    g('s_add_u32 s57, s57, s14')
    g('s_lshl_b32 s57, s57, 14')
    g('s_add_u32 s57, s57, %d' % WS_O)
    g('v_lshlrev_b32 v8, 4, v1')
    g('v_add_u32 v8, s57, v8')
    OF = 144
    for t in range(16):
        g('s_movk_i32 s57, %d' % (1024 * t))
        g('buffer_load_dwordx4 %s, v8, %s, s57 offen sc0 sc1' % (vr(OF + 4 * t, 4), sr(S_WS, 4)))
    g('v_lshlrev_b32 v9, 2, v4')
    g('v_add_u32 v9, %d, v9' % WS_G)
    g('buffer_load_dword v14, v9, %s, 0 offen sc0 sc1' % sr(S_WS, 4))
    g('buffer_load_dwordx2 v[120:121], v10, %s, 0 offen sc0 sc1' % sr(S_WS, 4))
    g('s_barrier')
    stamp(g, 8, 'p3')
    DA = 16
    WFR = 32
    def wreads(t):
        for m in range(4):
            for a in range(2):
                g('ds_read_b64_tr_b16 %s, v7 offset:%d' % (vr(WFR + 16 * (t & 1) + 4 * m + 2 * a, 2), 28672 * (m >> 1) + (28 * t + 8 * a) * 64 + 32 * (m & 1)))
    wreads(0)
    for t in range(16):
        if t < 15:
            wreads(t + 1)
            g('s_waitcnt lgkmcnt(8)')
        else:
            g('s_waitcnt lgkmcnt(0)')
        YT = int(os.environ.get('YT', '12'))
        if t < YT:
            g('s_waitcnt vmcnt(%d)' % (17 - t))
        elif t == YT:
            g('s_waitcnt vmcnt(0)')
            Lyc = g.newlabel('L_yc')
            g('v_cmp_eq_u64 vcc, %s, v[120:121]' % sr(S_NONCE, 2))
            g('s_cmp_lg_u64 vcc, exec')
            g('s_cbranch_scc1 %s' % Lyc)
            g('s_mov_b32 s89, -1')
            yloads()
            g.label(Lyc)
        for m in range(4):
            g('v_mfma_f32_16x16x32_bf16 %s, %s, %s, %s' % (vr(DA + 4 * m, 4), vr(WFR + 16 * (t & 1) + 4 * m, 4), vr(OF + 4 * t, 4), '0' if t == 0 else vr(DA + 4 * m, 4)))
    stamp(g, 7)
    stamp(g, 9, 'p3')
    Ly2 = g.newlabel('L_ny2')
    g('s_cmp_eq_u32 s89, -1')
    g('s_cbranch_scc1 %s' % Ly2)
    poll_flags(g, 10, None, 120, 57)
    yloads()
    g.label(Ly2)
    stamp(g, 8)
    srd(g, S_P, P_OUT, 2048 * 896)
    g('v_sub_f32 v15, 1.0, v14') if False else None
    g('s_waitcnt vmcnt(0)')
    g('v_sub_f32 v15, 1.0, v14')
    for m in range(4):
        U = 64 + 16 * 0
        for k in range(2):
            g('v_lshlrev_b32 v%d, 16, v%d' % (U + 2 * k, XE + 2 * m + k))
            g('v_and_b32 v%d, 0xffff0000, v%d' % (U + 2 * k + 1, XE + 2 * m + k))
            g('v_lshlrev_b32 v%d, 16, v%d' % (U + 4 + 2 * k, DE + 2 * m + k))
            g('v_and_b32 v%d, 0xffff0000, v%d' % (U + 4 + 2 * k + 1, DE + 2 * m + k))
            g('v_lshlrev_b32 v%d, 16, v%d' % (U + 8 + 2 * k, YE + 2 * m + k))
            g('v_and_b32 v%d, 0xffff0000, v%d' % (U + 8 + 2 * k + 1, YE + 2 * m + k))
        for i in range(4):
            g('v_fma_f32 v%d, v%d, v%d, v%d' % (U + 8 + i, U + i, U + 4 + i, U + 8 + i))
            g('v_mul_f32 v%d, v15, v%d' % (U + 8 + i, U + 8 + i))
            g('v_fma_f32 v%d, v14, v%d, v%d' % (U + 8 + i, DA + 4 * m + i, U + 8 + i))
        g('v_cvt_pk_bf16_f32 v%d, v%d, v%d' % (80 + 2 * m, U + 8, U + 9))
        g('v_cvt_pk_bf16_f32 v%d, v%d, v%d' % (80 + 2 * m + 1, U + 10, U + 11))
        mo = 32 * m
        g('buffer_store_dwordx2 %s, v%d, %s, 0 offen offset:%d' % (vr(80 + 2 * m, 2), 6, sr(S_P, 4), mo))
    stamp(g, 9)
    if STSET[0] == 'hw':
        stamp(g, 9, 'hw')
        g('s_memtime s[90:91]')
        g('s_waitcnt lgkmcnt(0)')
        g('s_mov_b32 s96, s90')
    stamp_flush(g)
    g('s_endpgm')
```
